```python
import torch

def _softmax(x, axis=-1):
    return torch.softmax(x, dim=axis)
def _gelu(x):
    return torch.nn.functional.gelu(x, approximate="tanh")
def _silu(x):
    return torch.nn.functional.silu(x)
def _sigmoid(x):
    return torch.sigmoid(x)
def _layernorm(x, axis=-1, eps=1e-5):
    m = x.mean(dim=axis, keepdim=True)
    v = x.var(dim=axis, keepdim=True, unbiased=False)
    return (x - m) / torch.sqrt(v + eps)
def _scatter_add(tgt, idx, src, axis=0):
    return tgt.clone().index_add_(axis, idx, src)
def _segment_sum(src, seg, n):
    out = torch.zeros((n,) + src.shape[1:], dtype=src.dtype)
    return out.index_add_(0, seg, src)
def _pad(x, pw):
    flat = tuple(v for pair in reversed(pw) for v in pair)
    return torch.nn.functional.pad(x, flat)

kernel_name = 'standalone__gqa_block_cached__near_ridge'

def setup_inputs():

    _w = (lambda a: (lambda t: t.to(torch.bfloat16) if t.is_floating_point() else t)(torch.as_tensor(a)))
    B, Sq, D = 8, 80, 512
    Hq, Hkv, Sk, Dh = 32, 8, 2048, 128
    assert Hq % Hkv == 0, (Hq, Hkv)
    return {
        "x": _w((lambda *s: torch.randn(*s, dtype=torch.bfloat16) * 0.8)(B, Sq, D)),
        "k_cache": _w((lambda *s: torch.randn(*s, dtype=torch.bfloat16) * 0.8)(B, Hkv, Sk, Dh)),
        "v_cache": _w((lambda *s: torch.randn(*s, dtype=torch.bfloat16) * 0.05)(B, Hkv, Sk, Dh)),
        "wq": _w((lambda *s: torch.randn(*s, dtype=torch.bfloat16) * 0.8)(D, Hq * Dh) * (D ** -0.5)),
        "wo": _w((lambda *s: torch.randn(*s, dtype=torch.bfloat16) * 0.05)(Hq * Dh, D) * ((Hq * Dh) ** -0.5)),
    }

def reference(x, k_cache, v_cache, wq, wo):
    B, Sq, D = x.shape
    Hq, Dh = 32, 128
    Hkv = k_cache.shape[1]
    rep = Hq // Hkv
    q = (lambda x, *d: x.permute(*d))((x @ wq).reshape(B, Sq, Hq, Dh), 0, 2, 1, 3)
    k = (lambda x, n, axis: torch.repeat_interleave(x, n, dim=axis))(k_cache, rep, axis=1)
    v = (lambda x, n, axis: torch.repeat_interleave(x, n, dim=axis))(v_cache, rep, axis=1)
    scores = torch.einsum("bhqd,bhkd->bhqk", q, k) * (Dh ** -0.5)
    p = _softmax(scores, axis=-1)
    o = torch.einsum("bhqk,bhkd->bhqd", p, v)
    return (lambda x, *d: x.permute(*d))(o, 0, 2, 1, 3).reshape(B, Sq, Hq * Dh) @ wo
```

```python
import sys
HEADER = open('standalone__gqa_block_cached__near_ridge.s.ref').read().split('; Override launch')[0]

def kd(name, vgpr, accum=None, sgpr=102):
    accum = accum or vgpr
    return f"""
.amdhsa_kernel {name}
  .amdhsa_next_free_vgpr {vgpr}
  .amdhsa_next_free_sgpr {sgpr}
  .amdhsa_accum_offset {accum}
  .amdhsa_group_segment_fixed_size 0
  .amdhsa_kernarg_size 64
  .amdhsa_user_sgpr_count 2
  .amdhsa_user_sgpr_kernarg_segment_ptr 1
  .amdhsa_system_sgpr_workgroup_id_x 1
.end_amdhsa_kernel
"""
def start(name):
    return f""".globl {name}
.p2align 8
.type {name},@function
{name}:
"""
def srd(o, s, argoff, size, add=0):
    o.append(f"    s_load_dwordx2 s[{s}:{s+1}], s[0:1], {argoff}")
def srd_fin(o, s, size, add=0):
    if add:
        o.append(f"    s_add_u32 s{s}, s{s}, {add}")
        o.append(f"    s_addc_u32 s{s+1}, s{s+1}, 0")
    o.append(f"    s_mov_b32 s{s+2}, {size}")
    o.append(f"    s_mov_b32 s{s+3}, 0x00020000")

WS_Q = 0
WS_O = 8 << 20

def gemm_kernel(name, nwg, a_arg, a_add, a_size, a_stride, b_arg, b_size, b_stride, ksteps, nct, c_arg, c_add, c_size, c_stride):
    o = [start(name)]
    o.append(f"    s_cmp_ge_u32 s2, {nwg}")
    o.append(f"    s_cbranch_scc1 L_end_{name}")
    srd(o, 8, a_arg, 0); srd(o, 12, b_arg, 0); srd(o, 16, c_arg, 0)
    o.append("    v_lshrrev_b32 v1, 6, v0")
    o.append("    v_and_b32 v2, 63, v0")
    o.append("    v_and_b32 v3, 15, v2      ; i/n")
    o.append("    v_lshrrev_b32 v4, 4, v2   ; g")
    o.append("    v_readfirstlane_b32 s20, v1")
    o.append("    s_waitcnt lgkmcnt(0)")
    srd_fin(o, 8, a_size, a_add); srd_fin(o, 12, b_size); srd_fin(o, 16, c_size, c_add)
    o.append("    s_lshl_b32 s21, s2, 2")
    o.append("    s_add_u32 s21, s21, s20      ; W")
    lg = nct.bit_length() - 1
    o.append(f"    s_lshr_b32 s22, s21, {lg}   ; rt")
    o.append(f"    s_and_b32 s23, s21, {nct-1} ; ct")
    o.append("    s_lshl_b32 s24, s22, 4")
    o.append("    v_add_u32 v5, s24, v3")
    o.append(f"    s_mov_b32 s25, {a_stride}")
    o.append("    v_mul_lo_u32 v5, v5, s25")
    o.append("    v_lshl_add_u32 v5, v4, 4, v5")
    o.append("    s_lshl_b32 s26, s23, 4")
    o.append("    v_add_u32 v6, s26, v3")
    o.append("    v_lshlrev_b32 v6, 1, v6")
    o.append(f"    s_mov_b32 s25, {8*b_stride}")
    o.append("    v_mul_lo_u32 v7, v4, s25")
    o.append("    v_add_u32 v6, v6, v7")
    for r in range(4): o.append(f"    v_mov_b32 v{20+r}, 0")
    o.append("    s_mov_b32 s27, 0     ; a soffset")
    o.append("    s_mov_b32 s28, 0     ; b soffset")
    o.append(f"    s_mov_b32 s29, {ksteps}")
    o.append(f"L_k_{name}:")
    o.append("    buffer_load_dwordx4 v[8:11], v5, s[8:11], s27 offen")
    o.append("    s_mov_b32 s30, s28")
    for j in range(8):
        o.append(f"    buffer_load_ushort v{32 + j}, v6, s[12:15], s30 offen")
        if j < 7: o.append(f"    s_add_u32 s30, s30, {b_stride}")
    o.append("    s_waitcnt vmcnt(0)")
    for j in range(4):
        o.append(f"    v_lshl_or_b32 v{12 + j}, v{33 + 2*j}, 16, v{32 + 2*j}")
    o.append("    s_nop 1")
    o.append("    v_mfma_f32_16x16x32_bf16 v[20:23], v[8:11], v[12:15], v[20:23]")
    o.append("    s_add_u32 s27, s27, 64")
    o.append(f"    s_add_u32 s28, s28, {32*b_stride}")
    o.append("    s_sub_u32 s29, s29, 1")
    o.append("    s_cmp_lg_u32 s29, 0")
    o.append(f"    s_cbranch_scc1 L_k_{name}")
    o.append("    s_nop 7")
    o.append("    s_nop 7")
    o.append("    v_lshlrev_b32 v7, 2, v4")
    o.append("    v_add_u32 v7, s24, v7")
    o.append(f"    s_mov_b32 s25, {c_stride}")
    o.append("    v_mul_lo_u32 v7, v7, s25")
    o.append("    v_add_u32 v6, s26, v3")
    o.append("    v_lshl_add_u32 v7, v6, 1, v7")
    for r in range(4):
        o.append(f"    v_cvt_pk_bf16_f32 v{24+r}, v{20+r}, v{20+r}")
    o.append("    s_mov_b32 s30, 0")
    for r in range(4):
        o.append(f"    buffer_store_short v{24+r}, v7, s[16:19], s30 offen")
        if r < 3: o.append(f"    s_add_u32 s30, s30, {c_stride}")
    o.append("    s_waitcnt vmcnt(0)")
    o.append(f"L_end_{name}:")
    o.append("    s_endpgm")
    return "\n".join(o) + "\n"

def attn_kernel(name):
    o = [start(name)]
    o.append("    s_cmp_ge_u32 s2, 320")
    o.append(f"    s_cbranch_scc1 L_end_{name}")
    srd(o, 8, 8, 0); srd(o, 12, 16, 0); srd(o, 16, 56, 0); srd(o, 36, 56, 0)
    o.append("    v_lshrrev_b32 v1, 6, v0")
    o.append("    v_and_b32 v2, 63, v0")
    o.append("    v_and_b32 v3, 15, v2      ; i/n")
    o.append("    v_lshrrev_b32 v4, 4, v2   ; g")
    o.append("    v_readfirstlane_b32 s20, v1")
    o.append("    s_waitcnt lgkmcnt(0)")
    srd_fin(o, 8, 32 << 20); srd_fin(o, 12, 32 << 20); srd_fin(o, 16, 640*8192, WS_Q); srd_fin(o, 36, 640*8192, WS_O)
    o.append("    s_lshl_b32 s21, s2, 2")
    o.append("    s_add_u32 s21, s21, s20      ; W 0..1279")
    o.append("    s_mul_hi_u32 s22, s21, %d" % ((1 << 32) // 160 + 1))
    o.append("    s_mul_i32 s23, s22, 160")
    o.append("    s_sub_u32 s23, s21, s23")
    o.append("    s_mul_hi_u32 s24, s23, %d" % ((1 << 32) // 5 + 1))
    o.append("    s_mul_i32 s25, s24, 5")
    o.append("    s_sub_u32 s25, s23, s25      ; qt")
    o.append("    s_mul_i32 s26, s22, 80")
    o.append("    s_lshl_b32 s27, s25, 4")
    o.append("    s_add_u32 s26, s26, s27      ; row0")
    o.append("    v_add_u32 v5, s26, v3")
    o.append("    v_lshlrev_b32 v5, 13, v5")
    o.append("    s_lshl_b32 s27, s24, 8")
    o.append("    v_add_u32 v5, s27, v5        ; row*8192 + h*256")
    o.append("    v_lshl_add_u32 v6, v4, 4, v5")
    for s in range(4):
        o.append(f"    buffer_load_dwordx4 v[{32+4*s}:{35+4*s}], v6, s[16:19], 0 offen offset:{64*s}")
    o.append("    s_lshl_b32 s28, s22, 3")
    o.append("    s_lshr_b32 s29, s24, 2")
    o.append("    s_add_u32 s28, s28, s29")
    o.append("    s_lshl_b32 s28, s28, 19")
    o.append("    v_lshlrev_b32 v7, 8, v3")
    o.append("    v_lshl_add_u32 v7, v4, 4, v7")
    o.append("    v_lshlrev_b32 v8, 10, v4")
    o.append("    v_lshl_add_u32 v8, v3, 1, v8")
    o.append("    v_xor_b32 v9, 16, v2")
    o.append("    v_lshlrev_b32 v9, 2, v9")
    o.append("    v_xor_b32 v10, 32, v2")
    o.append("    v_lshlrev_b32 v10, 2, v10")
    o.append("    v_mov_b32 v11, 0xff800000      ; m = -inf")
    o.append("    v_mov_b32 v12, 0               ; l")
    for r in range(32): o.append(f"    v_mov_b32 v{96+r}, 0")
    o.append("    s_mov_b32 s30, 64")
    o.append("    s_mov_b32 s33, 0x3e0293ee       ; log2e/sqrt(128)")
    o.append(f"L_loop_{name}:")
    for kt in range(2):
        for s in range(4):
            r = 48 + 16*kt + 4*s
            o.append(f"    buffer_load_dwordx4 v[{r}:{r+3}], v7, s[8:11], s28 offen offset:{(kt*4096 + 64*s) & 4095}" if kt == 0 else
                     f"    buffer_load_dwordx4 v[{r}:{r+3}], v7, s[8:11], s31 offen offset:{64*s}")
        if kt == 0: o.append("    s_add_u32 s31, s28, 4096")
    for j in range(8):
        koff = (j if j < 4 else 16 + j - 4) * 256
        o.append(f"    s_add_u32 s32, s28, {koff}")
        for dt in range(8):
            o.append(f"    buffer_load_ushort v{160 + 8*dt + j}, v8, s[12:15], s32 offen offset:{32*dt}")
    o.append("    s_waitcnt vmcnt(0)")
    for dt in range(8):
        for j in range(4):
            o.append(f"    v_lshl_or_b32 v{128 + 4*dt + j}, v{161 + 8*dt + 2*j}, 16, v{160 + 8*dt + 2*j}")
    for kt in range(2):
        for s in range(4):
            r = 48 + 16*kt + 4*s
            c = "0" if s == 0 else f"v[{80+4*kt}:{83+4*kt}]"
            o.append(f"    v_mfma_f32_16x16x32_bf16 v[{80+4*kt}:{83+4*kt}], v[{r}:{r+3}], v[{32+4*s}:{35+4*s}], {c}")
    o.append("    s_nop 7\n    s_nop 7")
    for r in range(8): o.append(f"    v_mul_f32 v{80+r}, s33, v{80+r}")
    o.append("    v_max3_f32 v13, v80, v81, v82")
    o.append("    v_max3_f32 v13, v13, v83, v84")
    o.append("    v_max3_f32 v13, v13, v85, v86")
    o.append("    v_max_f32 v13, v13, v87")
    o.append("    s_nop 1")
    o.append("    ds_bpermute_b32 v14, v9, v13")
    o.append("    s_waitcnt lgkmcnt(0)")
    o.append("    v_max_f32 v13, v13, v14")
    o.append("    s_nop 1")
    o.append("    ds_bpermute_b32 v14, v10, v13")
    o.append("    s_waitcnt lgkmcnt(0)")
    o.append("    v_max3_f32 v13, v13, v14, v11   ; m_new")
    o.append("    v_sub_f32 v14, v11, v13")
    o.append("    v_exp_f32 v14, v14              ; alpha")
    o.append("    v_mov_b32 v11, v13")
    for r in range(8): o.append(f"    v_sub_f32 v{80+r}, v{80+r}, v13")
    for r in range(8): o.append(f"    v_exp_f32 v{80+r}, v{80+r}")
    o.append("    s_nop 0")
    o.append("    v_mul_f32 v12, v12, v14")
    for r in range(8): o.append(f"    v_add_f32 v12, v12, v{80+r}")
    for r in range(32): o.append(f"    v_mul_f32 v{96+r}, v{96+r}, v14")
    for r in range(4): o.append(f"    v_cvt_pk_bf16_f32 v{88+r}, v{80+2*r}, v{81+2*r}")
    o.append("    s_nop 1")
    for dt in range(8):
        o.append(f"    v_mfma_f32_16x16x32_bf16 v[{96+4*dt}:{99+4*dt}], v[{128+4*dt}:{131+4*dt}], v[88:91], v[{96+4*dt}:{99+4*dt}]")
    o.append("    s_add_u32 s28, s28, 8192")
    o.append("    s_sub_u32 s30, s30, 1")
    o.append("    s_cmp_lg_u32 s30, 0")
    o.append(f"    s_cbranch_scc1 L_loop_{name}")
    o.append("    s_nop 7\n    s_nop 7")
    o.append("    ds_bpermute_b32 v14, v9, v12")
    o.append("    s_waitcnt lgkmcnt(0)")
    o.append("    v_add_f32 v12, v12, v14")
    o.append("    s_nop 1")
    o.append("    ds_bpermute_b32 v14, v10, v12")
    o.append("    s_waitcnt lgkmcnt(0)")
    o.append("    v_add_f32 v12, v12, v14")
    o.append("    v_rcp_f32 v12, v12")
    o.append("    s_nop 0")
    for r in range(32): o.append(f"    v_mul_f32 v{96+r}, v{96+r}, v12")
    o.append("    v_lshl_add_u32 v6, v4, 3, v5")
    for dt in range(8):
        o.append(f"    v_cvt_pk_bf16_f32 v{48+2*dt}, v{96+4*dt}, v{97+4*dt}")
        o.append(f"    v_cvt_pk_bf16_f32 v{49+2*dt}, v{98+4*dt}, v{99+4*dt}")
    for dt in range(8):
        o.append(f"    buffer_store_dwordx2 v[{48+2*dt}:{49+2*dt}], v6, s[36:39], 0 offen offset:{32*dt}")
    o.append("    s_waitcnt vmcnt(0)")
    o.append(f"L_end_{name}:")
    o.append("    s_endpgm")
    return "\n".join(o) + "\n"

def probe_kernel(name, mode, sc, mult):
    o = [start(name)]
    o.append(f"""
    s_cmp_ge_u32 s2, 256
    s_cbranch_scc1 L_end_{name}
    s_load_dwordx2 s[8:9], s[0:1], 8
    s_load_dwordx2 s[12:13], s[0:1], 16
    v_lshrrev_b32 v1, 6, v0
    v_and_b32 v2, 63, v0
    s_nop 1
    v_readfirstlane_b32 s20, v1
    s_waitcnt lgkmcnt(0)
    s_mov_b32 s10, 0x2000000
    s_mov_b32 s11, 0x00020000
    s_mov_b32 s14, 0x2000000
    s_mov_b32 s15, 0x00020000
    s_lshl_b32 s25, s2, 17
    s_lshl_b32 s26, s20, 13
    s_add_u32 s25, s25, s26
    v_lshlrev_b32 v3, 4, v2
    s_mul_i32 s28, s20, 40960
    s_memrealtime s[34:35]
    s_waitcnt lgkmcnt(0)
    s_mov_b32 s29, 0
    s_mov_b32 s40, 0
L_loop_{name}:""")
    for srd_ in ("s[8:11]", "s[12:15]"):
        o.append("    s_add_u32 s41, s28, s40\n    s_mov_b32 m0, s41\n    s_add_u32 s42, s25, 4096")
        for i in range(8):
            if i == 4: o.append("    s_add_u32 s41, s41, 4096\n    s_mov_b32 m0, s41\n    s_nop 0")
            so = "s25" if i < 4 else "s42"
            o.append(f"    buffer_load_dwordx4 v3, {srd_}, {so} offen offset:{(i%4)*1024} {sc} lds")
        o.append("    s_waitcnt vmcnt(24)\n    s_add_u32 s40, s40, 8192\n    s_cmp_ge_u32 s40, 40960\n    s_cselect_b32 s40, 0, s40")
    o.append(f"""
    s_add_u32 s25, s25, 0x8000
    s_add_u32 s29, s29, 1
    s_cmp_lt_u32 s29, 4
    s_cbranch_scc1 L_loop_{name}
    s_waitcnt vmcnt(0)
    s_memrealtime s[36:37]
    s_waitcnt lgkmcnt(0)
    s_sub_u32 s38, s36, s34
    s_min_u32 s38, s38, 10000
    s_mul_i32 s38, s38, {mult}
L_spin_{name}:
    s_sleep 8
    s_memrealtime s[44:45]
    s_waitcnt lgkmcnt(0)
    s_sub_u32 s46, s44, s36
    s_cmp_lt_u32 s46, s38
    s_cbranch_scc1 L_spin_{name}
L_end_{name}:
    s_endpgm
""")
    return "\n".join(o) + "\n"

def build(probe=None):
    launches = []
    body = []; kds = []
    if probe:
        launches.append("; @launch kernel=probe_kernel grid=(256,1,1) block=(256,1,1) lds=163840")
        body.append(probe_kernel("probe_kernel", *probe)); kds.append(kd("probe_kernel", 64))
    launches.append("; @launch kernel=qproj_kernel grid=(2560,1,1) block=(256,1,1) lds=0")
    launches.append("; @launch kernel=attn_kernel grid=(320,1,1) block=(256,1,1) lds=0")
    launches.append("; @launch kernel=oproj_kernel grid=(320,1,1) block=(256,1,1) lds=0")
    body.append(gemm_kernel("qproj_kernel", 2560, 0, 0, 640*1024, 1024, 24, 512*8192, 8192, 16, 256, 56, WS_Q, 640*8192, 8192))
    body.append(attn_kernel("attn_kernel"))
    body.append(gemm_kernel("oproj_kernel", 320, 56, WS_O, 640*8192, 8192, 32, 4096*1024, 1024, 128, 32, 40, 0, 640*1024, 1024))
    kds += [kd("qproj_kernel", 64), kd("attn_kernel", 224), kd("oproj_kernel", 64)]
    return HEADER + "\n".join(launches) + "\n" + '.amdgcn_target "amdgcn-amd-amdhsa--gfx950"\n.text\n' + "\n".join(body) + '.section .rodata,"a"\n.p2align 6\n' + "\n.p2align 6\n".join(kds)

if __name__ == "__main__":
    out = sys.argv[1]
    probe = None
    if len(sys.argv) > 2:
        probe = ("B", sys.argv[2] if sys.argv[2] != "plain" else "", int(sys.argv[3]))
    open(out, "w").write(build(probe))
```

```python
import sys
HEADER = open('standalone__gqa_block_cached__near_ridge.s.ref').read().split('; Override launch')[0]

def kd(name, vgpr, accum=None, sgpr=102):
    accum = accum or vgpr
    return f"""
.amdhsa_kernel {name}
  .amdhsa_next_free_vgpr {vgpr}
  .amdhsa_next_free_sgpr {sgpr}
  .amdhsa_accum_offset {accum}
  .amdhsa_group_segment_fixed_size 0
  .amdhsa_kernarg_size 64
  .amdhsa_user_sgpr_count 2
  .amdhsa_user_sgpr_kernarg_segment_ptr 1
  .amdhsa_system_sgpr_workgroup_id_x 1
.end_amdhsa_kernel
"""
def start(name):
    return f""".globl {name}
.p2align 8
.type {name},@function
{name}:
"""
def srd(o, s, argoff, size, add=0):
    o.append(f"    s_load_dwordx2 s[{s}:{s+1}], s[0:1], {argoff}")
def srd_fin(o, s, size, add=0):
    if add:
        o.append(f"    s_add_u32 s{s}, s{s}, {add}")
        o.append(f"    s_addc_u32 s{s+1}, s{s+1}, 0")
    o.append(f"    s_mov_b32 s{s+2}, {size}")
    o.append(f"    s_mov_b32 s{s+3}, 0x00020000")

WS_Q = 0
WS_O = 8 << 20

def gemm_kernel(name, nwg, a_arg, a_add, a_size, a_stride, b_arg, b_size, b_stride, ksteps, nct, c_arg, c_add, c_size, c_stride):
    o = [start(name)]
    o.append(f"    s_cmp_ge_u32 s2, {nwg}")
    o.append(f"    s_cbranch_scc1 L_end_{name}")
    srd(o, 8, a_arg, 0); srd(o, 12, b_arg, 0); srd(o, 16, c_arg, 0)
    o.append("    v_lshrrev_b32 v1, 6, v0")
    o.append("    v_and_b32 v2, 63, v0")
    o.append("    v_and_b32 v3, 15, v2      ; i/n")
    o.append("    v_lshrrev_b32 v4, 4, v2   ; g")
    o.append("    v_readfirstlane_b32 s20, v1")
    o.append("    s_waitcnt lgkmcnt(0)")
    srd_fin(o, 8, a_size, a_add); srd_fin(o, 12, b_size); srd_fin(o, 16, c_size, c_add)
    o.append("    s_lshl_b32 s21, s2, 2")
    o.append("    s_add_u32 s21, s21, s20      ; W")
    lg = nct.bit_length() - 1
    o.append(f"    s_lshr_b32 s22, s21, {lg}   ; rt")
    o.append(f"    s_and_b32 s23, s21, {nct-1} ; ct")
    o.append("    s_lshl_b32 s24, s22, 4")
    o.append("    v_add_u32 v5, s24, v3")
    o.append(f"    s_mov_b32 s25, {a_stride}")
    o.append("    v_mul_lo_u32 v5, v5, s25")
    o.append("    v_lshl_add_u32 v5, v4, 4, v5")
    o.append("    s_lshl_b32 s26, s23, 4")
    o.append("    v_add_u32 v6, s26, v3")
    o.append("    v_lshlrev_b32 v6, 1, v6")
    o.append(f"    s_mov_b32 s25, {8*b_stride}")
    o.append("    v_mul_lo_u32 v7, v4, s25")
    o.append("    v_add_u32 v6, v6, v7")
    for r in range(4): o.append(f"    v_mov_b32 v{20+r}, 0")
    o.append("    s_mov_b32 s27, 0     ; a soffset")
    o.append("    s_mov_b32 s28, 0     ; b soffset")
    o.append(f"    s_mov_b32 s29, {ksteps}")
    o.append(f"L_k_{name}:")
    o.append("    buffer_load_dwordx4 v[8:11], v5, s[8:11], s27 offen")
    o.append("    s_mov_b32 s30, s28")
    for j in range(8):
        o.append(f"    buffer_load_ushort v{32 + j}, v6, s[12:15], s30 offen")
        if j < 7: o.append(f"    s_add_u32 s30, s30, {b_stride}")
    o.append("    s_waitcnt vmcnt(0)")
    for j in range(4):
        o.append(f"    v_lshl_or_b32 v{12 + j}, v{33 + 2*j}, 16, v{32 + 2*j}")
    o.append("    s_nop 1")
    o.append("    v_mfma_f32_16x16x32_bf16 v[20:23], v[8:11], v[12:15], v[20:23]")
    o.append("    s_add_u32 s27, s27, 64")
    o.append(f"    s_add_u32 s28, s28, {32*b_stride}")
    o.append("    s_sub_u32 s29, s29, 1")
    o.append("    s_cmp_lg_u32 s29, 0")
    o.append(f"    s_cbranch_scc1 L_k_{name}")
    o.append("    s_nop 7")
    o.append("    s_nop 7")
    o.append("    v_lshlrev_b32 v7, 2, v4")
    o.append("    v_add_u32 v7, s24, v7")
    o.append(f"    s_mov_b32 s25, {c_stride}")
    o.append("    v_mul_lo_u32 v7, v7, s25")
    o.append("    v_add_u32 v6, s26, v3")
    o.append("    v_lshl_add_u32 v7, v6, 1, v7")
    for r in range(4):
        o.append(f"    v_cvt_pk_bf16_f32 v{24+r}, v{20+r}, v{20+r}")
    o.append("    s_mov_b32 s30, 0")
    for r in range(4):
        o.append(f"    buffer_store_short v{24+r}, v7, s[16:19], s30 offen")
        if r < 3: o.append(f"    s_add_u32 s30, s30, {c_stride}")
    o.append("    s_waitcnt vmcnt(0)")
    o.append(f"L_end_{name}:")
    o.append("    s_endpgm")
    return "\n".join(o) + "\n"

def attn_kernel(name):
    o = [start(name)]
    o.append("    s_cmp_ge_u32 s2, 320")
    o.append(f"    s_cbranch_scc1 L_end_{name}")
    srd(o, 8, 8, 0); srd(o, 12, 16, 0); srd(o, 16, 56, 0); srd(o, 36, 56, 0)
    o.append("    v_lshrrev_b32 v1, 6, v0")
    o.append("    v_and_b32 v2, 63, v0")
    o.append("    v_and_b32 v3, 15, v2      ; i/n")
    o.append("    v_lshrrev_b32 v4, 4, v2   ; g")
    o.append("    v_readfirstlane_b32 s20, v1")
    o.append("    s_waitcnt lgkmcnt(0)")
    srd_fin(o, 8, 32 << 20); srd_fin(o, 12, 32 << 20); srd_fin(o, 16, 640*8192, WS_Q); srd_fin(o, 36, 640*8192, WS_O)
    o.append("    s_lshl_b32 s21, s2, 2")
    o.append("    s_add_u32 s21, s21, s20      ; W 0..1279")
    o.append("    s_mul_hi_u32 s22, s21, %d" % ((1 << 32) // 160 + 1))
    o.append("    s_mul_i32 s23, s22, 160")
    o.append("    s_sub_u32 s23, s21, s23")
    o.append("    s_mul_hi_u32 s24, s23, %d" % ((1 << 32) // 5 + 1))
    o.append("    s_mul_i32 s25, s24, 5")
    o.append("    s_sub_u32 s25, s23, s25      ; qt")
    o.append("    s_mul_i32 s26, s22, 80")
    o.append("    s_lshl_b32 s27, s25, 4")
    o.append("    s_add_u32 s26, s26, s27      ; row0")
    o.append("    v_add_u32 v5, s26, v3")
    o.append("    v_lshlrev_b32 v5, 13, v5")
    o.append("    s_lshl_b32 s27, s24, 8")
    o.append("    v_add_u32 v5, s27, v5        ; row*8192 + h*256")
    o.append("    v_lshl_add_u32 v6, v4, 4, v5")
    for s in range(4):
        o.append(f"    buffer_load_dwordx4 v[{32+4*s}:{35+4*s}], v6, s[16:19], 0 offen offset:{64*s}")
    o.append("    s_lshl_b32 s28, s22, 3")
    o.append("    s_lshr_b32 s29, s24, 2")
    o.append("    s_add_u32 s28, s28, s29")
    o.append("    s_lshl_b32 s28, s28, 19")
    o.append("    v_lshlrev_b32 v7, 8, v3")
    o.append("    v_lshl_add_u32 v7, v4, 4, v7")
    o.append("    v_lshlrev_b32 v8, 10, v4")
    o.append("    v_lshl_add_u32 v8, v3, 1, v8")
    o.append("    v_xor_b32 v9, 16, v2")
    o.append("    v_lshlrev_b32 v9, 2, v9")
    o.append("    v_xor_b32 v10, 32, v2")
    o.append("    v_lshlrev_b32 v10, 2, v10")
    o.append("    v_mov_b32 v11, 0xff800000      ; m = -inf")
    o.append("    v_mov_b32 v12, 0               ; l")
    for r in range(32): o.append(f"    v_mov_b32 v{96+r}, 0")
    o.append("    s_mov_b32 s30, 64")
    o.append("    s_mov_b32 s33, 0x3e0293ee       ; log2e/sqrt(128)")
    o.append(f"L_loop_{name}:")
    for kt in range(2):
        for s in range(4):
            r = 48 + 16*kt + 4*s
            o.append(f"    buffer_load_dwordx4 v[{r}:{r+3}], v7, s[8:11], s28 offen offset:{(kt*4096 + 64*s) & 4095}" if kt == 0 else
                     f"    buffer_load_dwordx4 v[{r}:{r+3}], v7, s[8:11], s31 offen offset:{64*s}")
        if kt == 0: o.append("    s_add_u32 s31, s28, 4096")
    for j in range(8):
        koff = (j if j < 4 else 16 + j - 4) * 256
        o.append(f"    s_add_u32 s32, s28, {koff}")
        for dt in range(8):
            o.append(f"    buffer_load_ushort v{160 + 8*dt + j}, v8, s[12:15], s32 offen offset:{32*dt}")
    o.append("    s_waitcnt vmcnt(0)")
    for dt in range(8):
        for j in range(4):
            o.append(f"    v_lshl_or_b32 v{128 + 4*dt + j}, v{161 + 8*dt + 2*j}, 16, v{160 + 8*dt + 2*j}")
    for kt in range(2):
        for s in range(4):
            r = 48 + 16*kt + 4*s
            c = "0" if s == 0 else f"v[{80+4*kt}:{83+4*kt}]"
            o.append(f"    v_mfma_f32_16x16x32_bf16 v[{80+4*kt}:{83+4*kt}], v[{r}:{r+3}], v[{32+4*s}:{35+4*s}], {c}")
    o.append("    s_nop 7\n    s_nop 7")
    for r in range(8): o.append(f"    v_mul_f32 v{80+r}, s33, v{80+r}")
    o.append("    v_max3_f32 v13, v80, v81, v82")
    o.append("    v_max3_f32 v13, v13, v83, v84")
    o.append("    v_max3_f32 v13, v13, v85, v86")
    o.append("    v_max_f32 v13, v13, v87")
    o.append("    s_nop 1")
    o.append("    ds_bpermute_b32 v14, v9, v13")
    o.append("    s_waitcnt lgkmcnt(0)")
    o.append("    v_max_f32 v13, v13, v14")
    o.append("    s_nop 1")
    o.append("    ds_bpermute_b32 v14, v10, v13")
    o.append("    s_waitcnt lgkmcnt(0)")
    o.append("    v_max3_f32 v13, v13, v14, v11   ; m_new")
    o.append("    v_sub_f32 v14, v11, v13")
    o.append("    v_exp_f32 v14, v14              ; alpha")
    o.append("    v_mov_b32 v11, v13")
    for r in range(8): o.append(f"    v_sub_f32 v{80+r}, v{80+r}, v13")
    for r in range(8): o.append(f"    v_exp_f32 v{80+r}, v{80+r}")
    o.append("    s_nop 0")
    o.append("    v_mul_f32 v12, v12, v14")
    for r in range(8): o.append(f"    v_add_f32 v12, v12, v{80+r}")
    for r in range(32): o.append(f"    v_mul_f32 v{96+r}, v{96+r}, v14")
    for r in range(4): o.append(f"    v_cvt_pk_bf16_f32 v{88+r}, v{80+2*r}, v{81+2*r}")
    o.append("    s_nop 1")
    for dt in range(8):
        o.append(f"    v_mfma_f32_16x16x32_bf16 v[{96+4*dt}:{99+4*dt}], v[{128+4*dt}:{131+4*dt}], v[88:91], v[{96+4*dt}:{99+4*dt}]")
    o.append("    s_add_u32 s28, s28, 8192")
    o.append("    s_sub_u32 s30, s30, 1")
    o.append("    s_cmp_lg_u32 s30, 0")
    o.append(f"    s_cbranch_scc1 L_loop_{name}")
    o.append("    s_nop 7\n    s_nop 7")
    o.append("    ds_bpermute_b32 v14, v9, v12")
    o.append("    s_waitcnt lgkmcnt(0)")
    o.append("    v_add_f32 v12, v12, v14")
    o.append("    s_nop 1")
    o.append("    ds_bpermute_b32 v14, v10, v12")
    o.append("    s_waitcnt lgkmcnt(0)")
    o.append("    v_add_f32 v12, v12, v14")
    o.append("    v_rcp_f32 v12, v12")
    o.append("    s_nop 0")
    for r in range(32): o.append(f"    v_mul_f32 v{96+r}, v{96+r}, v12")
    o.append("    v_lshl_add_u32 v6, v4, 3, v5")
    for dt in range(8):
        o.append(f"    v_cvt_pk_bf16_f32 v{48+2*dt}, v{96+4*dt}, v{97+4*dt}")
        o.append(f"    v_cvt_pk_bf16_f32 v{49+2*dt}, v{98+4*dt}, v{99+4*dt}")
    for dt in range(8):
        o.append(f"    buffer_store_dwordx2 v[{48+2*dt}:{49+2*dt}], v6, s[36:39], 0 offen offset:{32*dt}")
    o.append("    s_waitcnt vmcnt(0)")
    o.append(f"L_end_{name}:")
    o.append("    s_endpgm")
    return "\n".join(o) + "\n"

def probe_kernel(name, mode, sc, mult):
    o = [start(name)]
    if mode == 'B':
        addr = "    s_lshl_b32 s25, s2, 17\n    s_lshl_b32 s26, s20, 13\n    s_add_u32 s25, s25, s26"; nst = 4
    else:
        addr = ("    s_and_b32 s21, s2, 7\n    s_lshr_b32 s22, s2, 5\n    s_lshl_b32 s25, s22, 3\n    s_add_u32 s25, s25, s21\n    s_lshl_b32 s25, s25, 19\n"
                "    s_lshl_b32 s26, s20, 13\n    s_add_u32 s25, s25, s26"); nst = 16
    o.append(f"""
    s_cmp_ge_u32 s2, 256
    s_cbranch_scc1 L_end_{name}
    s_load_dwordx2 s[8:9], s[0:1], 8
    s_load_dwordx2 s[12:13], s[0:1], 16
    v_lshrrev_b32 v1, 6, v0
    v_and_b32 v2, 63, v0
    s_nop 1
    v_readfirstlane_b32 s20, v1
    s_waitcnt lgkmcnt(0)
    s_mov_b32 s10, 0x2000000
    s_mov_b32 s11, 0x00020000
    s_mov_b32 s14, 0x2000000
    s_mov_b32 s15, 0x00020000
{addr}
    v_lshlrev_b32 v3, 4, v2
    s_mul_i32 s28, s20, 40960
    s_memrealtime s[34:35]
    s_waitcnt lgkmcnt(0)
    s_mov_b32 s29, 0
    s_mov_b32 s40, 0
L_loop_{name}:""")
    for srd_ in ("s[8:11]", "s[12:15]"):
        o.append("    s_add_u32 s41, s28, s40\n    s_mov_b32 m0, s41\n    s_add_u32 s42, s25, 4096")
        for i in range(8):
            if i == 4: o.append("    s_add_u32 s41, s41, 4096\n    s_mov_b32 m0, s41\n    s_nop 0")
            so = "s25" if i < 4 else "s42"
            o.append(f"    buffer_load_dwordx4 v3, {srd_}, {so} offen offset:{(i%4)*1024} {sc} lds")
        o.append("    s_waitcnt vmcnt(24)\n    s_add_u32 s40, s40, 8192\n    s_cmp_ge_u32 s40, 40960\n    s_cselect_b32 s40, 0, s40")
    o.append(f"""
    s_add_u32 s25, s25, 0x8000
    s_add_u32 s29, s29, 1
    s_cmp_lt_u32 s29, {nst}
    s_cbranch_scc1 L_loop_{name}
    s_waitcnt vmcnt(0)
    s_memrealtime s[36:37]
    s_waitcnt lgkmcnt(0)
    s_sub_u32 s38, s36, s34
    s_min_u32 s38, s38, 10000
    s_mul_i32 s38, s38, {mult}
L_spin_{name}:
    s_sleep 8
    s_memrealtime s[44:45]
    s_waitcnt lgkmcnt(0)
    s_sub_u32 s46, s44, s36
    s_cmp_lt_u32 s46, s38
    s_cbranch_scc1 L_spin_{name}
L_end_{name}:
    s_endpgm
""")
    return "\n".join(o) + "\n"

def build(probe=None):
    launches = []
    body = []; kds = []
    if probe:
        launches.append("; @launch kernel=probe_kernel grid=(256,1,1) block=(256,1,1) lds=163840")
        body.append(probe_kernel("probe_kernel", *probe)); kds.append(kd("probe_kernel", 64))
    launches.append("; @launch kernel=qproj_kernel grid=(2560,1,1) block=(256,1,1) lds=0")
    launches.append("; @launch kernel=attn_kernel grid=(320,1,1) block=(256,1,1) lds=0")
    launches.append("; @launch kernel=oproj_kernel grid=(320,1,1) block=(256,1,1) lds=0")
    body.append(gemm_kernel("qproj_kernel", 2560, 0, 0, 640*1024, 1024, 24, 512*8192, 8192, 16, 256, 56, WS_Q, 640*8192, 8192))
    body.append(attn_kernel("attn_kernel"))
    body.append(gemm_kernel("oproj_kernel", 320, 56, WS_O, 640*8192, 8192, 32, 4096*1024, 1024, 128, 32, 40, 0, 640*1024, 1024))
    kds += [kd("qproj_kernel", 64), kd("attn_kernel", 224), kd("oproj_kernel", 64)]
    return HEADER + "\n".join(launches) + "\n" + '.amdgcn_target "amdgcn-amd-amdhsa--gfx950"\n.text\n' + "\n".join(body) + '.section .rodata,"a"\n.p2align 6\n' + "\n.p2align 6\n".join(kds)

if __name__ == "__main__":
    out = sys.argv[1]
    probe = None
    if len(sys.argv) > 2:
        probe = (sys.argv[4], sys.argv[2] if sys.argv[2] != "plain" else "", int(sys.argv[3]))
    open(out, "w").write(build(probe))
```

```python
class Asm:
    def __init__(self):
        self.l = []
    def __call__(self, s):
        for x in s.split("\n"):
            x = x.strip()
            if x: self.l.append("    " + x)
    def label(self, s): self.l.append(s + ":")
    def c(self, s): self.l.append("    ; " + s)
    def raw(self, s): self.l.append(s)
    def text(self): return "\n".join(self.l) + "\n"

def vr(base, n=1):
    return f"v{base}" if n == 1 else f"v[{base}:{base+n-1}]"
def ar(base, n=1):
    return f"a{base}" if n == 1 else f"a[{base}:{base+n-1}]"
def sr(base, n=1):
    return f"s{base}" if n == 1 else f"s[{base}:{base+n-1}]"

def kernel_start(name):
    return f""".globl {name}
.p2align 8
.type {name},@function
{name}:
"""
def kernel_desc(name, vgpr, accum, sgpr=102):
    return f""".amdhsa_kernel {name}
  .amdhsa_next_free_vgpr {vgpr}
  .amdhsa_next_free_sgpr {sgpr}
  .amdhsa_accum_offset {accum}
  .amdhsa_group_segment_fixed_size 0
  .amdhsa_kernarg_size 64
  .amdhsa_user_sgpr_count 2
  .amdhsa_user_sgpr_kernarg_segment_ptr 1
  .amdhsa_system_sgpr_workgroup_id_x 1
.end_amdhsa_kernel
"""
HEADER = open('standalone__gqa_block_cached__near_ridge.s.ref').read().split('; Override launch')[0]

def assemble_file(launches, kernels):
    s = HEADER
    for (n, g, b, lds) in launches:
        s += f"; @launch kernel={n} grid=({g},1,1) block=({b},1,1) lds={lds}\n"
    s += '.amdgcn_target "amdgcn-amd-amdhsa--gfx950"\n.text\n'
    for (n, body, vg, ac, sg) in kernels:
        s += kernel_start(n) + body
    s += '.section .rodata,"a"\n'
    for (n, body, vg, ac, sg) in kernels:
        s += ".p2align 6\n" + kernel_desc(n, vg, ac, sg)
    return s
```

```python
import sys, struct, math
from lib import *

def f32(x): return struct.unpack("<I", struct.pack("<f", x))[0]
C_SCALE = math.log2(math.e) / math.sqrt(128.0)

WS_O = 0
WS_P = 8 << 20
OPT = dict(standin=True, fallback=True, dbgq=False)

def gemm_core(A, cfg):
    acc, FA, FB = cfg['acc'], cfg['FA'], cfg['FB']
    def reads(ks):
        buf = ks & 1
        l = []
        w = [cfg['wread'](ks, jt, hf, FA[buf] + 4 * jt + 2 * hf) for jt in range(2) for hf in range(2)]
        x = [cfg['xread'](ks, t, FB[buf] + 4 * t) for t in range(5)]
        l = [w[0], w[1], x[0], w[2], w[3], x[1], x[2], x[3], x[4]]
        return l
    for g in cfg['upfront']: A(g)
    cfg['idle'](A)
    A(f"s_waitcnt vmcnt({cfg['vm'][0]})")
    A("s_barrier")
    for r in reads(0): A(r)
    for ks in range(16):
        buf = ks & 1
        extra = []
        A("s_waitcnt lgkmcnt(0)")
        if ks & 1:
            bar = (ks >> 1) + 1
            if bar <= 7: A(f"s_waitcnt vmcnt({cfg['vm'][bar]})")
            A("s_barrier")
            extra = list(cfg['issue'].get(bar, []))
        fill = reads(ks + 1) if ks < 15 else []
        m = 0
        for t in range(5):
            for jt in range(2):
                d = acc + (jt * 5 + t) * 4
                c = "0" if ks == 0 else vr(d, 4)
                A(f"v_mfma_f32_16x16x32_bf16 {vr(d,4)}, {vr(FA[buf]+4*jt,4)}, {vr(FB[buf]+4*t,4)}, {c}")
                if fill: A(fill.pop(0))
                k = (len(extra) + (9 - m)) // (10 - m) if extra else 0
                for _ in range(min(k, len(extra))): A(extra.pop(0))
                m += 1
        for e in extra: A(e)

V_KA, V_VA, V_KD, V_VD, V_L, V_NEG, V_S, V_P, V_KF, V_VF = 10, 14, 22, 26, 28, 40, 60, 76, 84, 116
A_O, A_Q = 0, 160
S_G, S_B, S_R, S_W, S_H, S_RW = 24, 25, 26, 27, 28, 29
S_T, S_R15, S_W8, S_END, S_OFF, S_OFF2, S_CNT, S_W1K, S_XOFF, S_WK, S_ROT, S_FB = 32, 33, 34, 35, 36, 37, 38, 39, 40, 41, 42, 43
S_T0, S_T1, S_T2 = 60, 61, 62
SRD_X, SRD_K, SRD_V, SRD_W, SRD_O = 4, 8, 12, 16, 20
K0, K1s, V0, V1 = 0, 8192, 16384, 24576
LE = 131072

def off_calc():
    return [f"s_add_u32 s{S_T0}, s{S_T}, s{S_R15}",
            f"s_and_b32 s{S_T0}, s{S_T0}, 0x18000",
            f"s_and_b32 s{S_T1}, s{S_T}, 0x60000",
            f"s_or_b32 s{S_T0}, s{S_T0}, s{S_T1}",
            f"s_or_b32 s{S_OFF}, s{S_T0}, s{S_W8}",
            f"s_cmp_ge_u32 s{S_T}, s{S_END}",
            f"s_cselect_b32 s{S_OFF}, 0x80000, s{S_OFF}",
            f"s_add_u32 s{S_OFF2}, s{S_OFF}, 4096",
            f"s_add_u32 s{S_T}, s{S_T}, 0x8000"]

def kv_dma(which, slot):
    srd = SRD_K if which == 'K' else SRD_V
    base = (K0, K1s)[slot] if which == 'K' else (V0, V1)[slot]
    l = []
    for half in range(2):
        l.append(f"s_add_u32 m0, s{S_RW}, {base + 4096 * half}")
        so = S_OFF if half == 0 else S_OFF2
        for i in range(4):
            vo = V_KD + i if which == 'K' else V_VD + (i & 1)
            l.append(f"buffer_load_dwordx4 v{vo}, {sr(srd,4)}, s{so} offen offset:{1024*i} lds")
    return l
def with_m0_gap(l):
    out = []
    for x in l:
        out.append(x)
        if x.startswith("s_add_u32 m0"): out.append("s_nop 0")
    return out

def k_read(p, slot):
    kt, s = p >> 2, p & 3
    return f"ds_read_b128 {vr(V_KF + 4*p, 4)}, v{V_KA + s} offset:{(K0, K1s)[slot] + 4096*kt}"
def v_read(dt, hf, slot):
    return f"ds_read_b64_tr_b16 {vr(V_VF + 4*dt + 2*hf, 2)}, v{V_VA + dt} offset:{(V0, V1)[slot] + 4096*hf}"
def qk_mfma(p, tq, sbuf, first_c=None):
    kt, s = p >> 2, p & 3
    d = V_S + 8 * sbuf + 4 * kt
    c = (vr(V_NEG + 4 * tq, 4) if first_c is None else first_c) if s == 0 else vr(d, 4)
    return f"v_mfma_f32_16x16x32_bf16 {vr(d,4)}, {vr(V_KF + 4*p, 4)}, {ar(A_Q + (tq*4 + s)*4, 4)}, {c}"
def pv_mfma(dt, tp, pbuf):
    o = A_O + (tp * 8 + dt) * 4
    return f"v_mfma_f32_16x16x32_bf16 {ar(o,4)}, {vr(V_VF + 4*dt, 4)}, {vr(V_P + 4*pbuf, 4)}, {ar(o,4)}"
def sm_valu(ts, buf):
    S = V_S + 8 * buf; P = V_P + 4 * buf; L = V_L + 2 * ts
    g = [[] for _ in range(16)]
    for q in range(4):
        e0, e1 = S + 2 * q, S + 2 * q + 1
        g[4*q + 0].append(f"v_exp_f32 v{e0}, v{e0}")
        g[4*q + 1].append(f"v_exp_f32 v{e1}, v{e1}")
        g[4*q + 2].append(f"v_add_f32 v{L}, v{L}, v{e0}")
        g[4*q + 2].append(f"v_add_f32 v{L+1}, v{L+1}, v{e1}")
        g[4*q + 3].append(f"v_cvt_pk_bf16_f32 v{P + q}, v{e0}, v{e1}")
    return g

def main_stage(A, k):
    tq, ts, tp = k % 5, (k + 4) % 5, (k + 3) % 5
    nv = [[] for _ in range(16)]
    par = 0 if k < 5 else 1
    km = k % 5
    if km == 0:
        slot = par
        oc = off_calc()
        for i, x in enumerate(oc): nv[min(i // 2, 4)].append(x)
        d = kv_dma('K', slot)
        for i, x in enumerate(d): nv[5 + i].append(x)
    if km == 1:
        slot = par
        nv[7].append("s_waitcnt vmcnt(24)")
        for dt in range(8): nv[8 + dt].append(v_read(dt, 0, slot))
    if km == 2:
        slot = par
        for dt in range(8): nv[dt].append(v_read(dt, 1, slot))
        for dt in range(8): nv[7 + dt].append(f"s_waitcnt lgkmcnt({7 - dt})")
    if km == 3:
        slot = par
        d = kv_dma('V', slot)
        for i, x in enumerate(d): nv[i].append(x)
        nv[15].append("s_waitcnt vmcnt(24)")
    if km == 4:
        slot = 1 - par
        for p in range(8): nv[p].append(k_read(p, slot))
        nv[15].append("s_waitcnt lgkmcnt(0)")
    va = sm_valu(ts, (k + 1) & 1)
    for p in range(16):
        A(qk_mfma(p, tq, k & 1) if p < 8 else pv_mfma(p - 8, tp, k & 1))
        for x in nv[p]: A(x)
        for x in va[p]: A(x)

def gen_k1():
    A = Asm()
    A("s_cmp_ge_u32 s2, 256")
    A("s_cbranch_scc1 L_k1_end")
    A(f"s_load_dwordx2 s[{SRD_X}:{SRD_X+1}], s[0:1], 0")
    A(f"s_load_dwordx2 s[{SRD_K}:{SRD_K+1}], s[0:1], 8")
    A(f"s_load_dwordx2 s[{SRD_V}:{SRD_V+1}], s[0:1], 16")
    A(f"s_load_dwordx2 s[{SRD_W}:{SRD_W+1}], s[0:1], 24")
    A(f"s_load_dwordx2 s[{SRD_O}:{SRD_O+1}], s[0:1], 56")
    A(f"""
    v_lshrrev_b32 v2, 6, v0
    v_and_b32 v1, 63, v0
    s_and_b32 s{S_G}, s2, 7
    s_lshr_b32 s30, s2, 3
    v_readfirstlane_b32 s{S_W}, v2
    s_lshr_b32 s{S_B}, s30, 2
    s_and_b32 s{S_R}, s30, 3
    s_lshl_b32 s{S_H}, s{S_G}, 2
    s_add_u32 s{S_H}, s{S_H}, s{S_R}
    v_and_b32 v3, 15, v1
    v_lshrrev_b32 v4, 4, v1
    v_bfe_u32 v5, v1, 2, 2
    v_and_b32 v6, 3, v1
    s_lshl_b32 s{S_RW}, s{S_W}, 15
    s_lshl_b32 s{S_W1K}, s{S_W}, 10
    s_lshl_b32 s{S_W8}, s{S_W}, 13
    s_lshl_b32 s{S_R15}, s{S_R}, 15
    s_and_b32 s30, s{S_B}, 3
    s_lshl_b32 s{S_T}, s30, 15
    s_add_u32 s{S_END}, s{S_T}, 0x80000
    s_add_u32 s{S_ROT}, s{S_B}, s{S_R}
    s_and_b32 s{S_ROT}, s{S_ROT}, 3
    s_mov_b32 s{S_FB}, 0
    """)
    ACC, FA, FB, VX, VAW, VXD, VWD = 148, (188, 196), (204, 224), 244, 252, 254, 255
    A(f"""
    v_xor_b32 v7, v4, v3
    v_lshlrev_b32 v7, 4, v7
    v_lshl_add_u32 v7, v3, 8, v7            ; n*256 + (gq^n)*16
    """)
    for s in range(4):
        A(f"v_xor_b32 v{VX+s}, {64*s}, v7")
        A(f"v_add_u32 v{VX+4+s}, 0x10000, v{VX+s}")
        A(f"v_add_u32 v{V_KA+s}, s{S_RW}, v{VX+s}")
    A(f"""
    s_lshl_b32 s30, s{S_W}, 2
    v_add_u32 v8, s30, v4                   ; 4w+gq
    v_xor_b32 v9, v3, v8
    v_lshlrev_b32 v9, 4, v9
    v_lshl_add_u32 v{VXD}, v8, 10, v9
    v_lshlrev_b32 v9, 2, v4
    v_xor_b32 v9, v3, v9
    v_lshlrev_b32 v9, 4, v9
    v_lshl_add_u32 v{VWD}, v8, 13, v9
    s_waitcnt lgkmcnt(0)
    s_mov_b32 s{SRD_X+2}, {640*1024}
    s_mov_b32 s{SRD_X+3}, 0x00020000
    s_mov_b32 s{SRD_W+2}, {512*8192}
    s_mov_b32 s{SRD_W+3}, 0x00020000
    s_mul_i32 s31, s{S_B}, 81920
    """)
    pool1 = [w*32768 + V0 + h*4096 for w in range(4) for h in range(2)] + [K1s, K1s + 4096]
    pool2 = [w*32768 + K1s + h*4096 for w in (1, 2, 3) for h in range(2)] + [w*32768 + V1 + h*4096 for w in (0, 1) for h in range(2)]
    xarea = lambda a, t: (pool1 if a < 2 else pool2)[(a & 1) * 5 + t]
    wblk = lambda u, e: [[2*32768 + V1, 3*32768 + V1], [LE, LE + 8192], [LE + 16384, LE + 24576]][u % 3][e]
    def xdma(a):
        l = [f"s_add_u32 s{S_T0}, s{S_ROT}, {a}", f"s_and_b32 s{S_T0}, s{S_T0}, 3", f"s_lshl_b32 s{S_T0}, s{S_T0}, 8", f"s_add_u32 s{S_XOFF}, s{S_T0}, s31"]
        for t in range(5):
            l += [f"s_add_u32 m0, s{S_W1K}, {xarea(a, t)}", f"s_add_u32 s{S_T0}, s{S_XOFF}, {t*16384}",
                  f"buffer_load_dwordx4 v{VXD}, {sr(SRD_X,4)}, s{S_T0} offen lds"]
        return l
    def wdma(u):
        l = [f"s_lshl_b32 s{S_T0}, s{S_ROT}, 1", f"s_add_u32 s{S_T0}, s{S_T0}, {u}", f"s_and_b32 s{S_T0}, s{S_T0}, 7", f"s_lshl_b32 s{S_T0}, s{S_T0}, 19",
             f"s_lshl_b32 s{S_T1}, s{S_H}, 8", f"s_add_u32 s{S_WK}, s{S_T0}, s{S_T1}"]
        for e in range(2):
            for hh in range(2):
                l += [f"s_add_u32 m0, s{S_W1K}, {wblk(u, e) + 4096*hh}", f"s_add_u32 s{S_T0}, s{S_WK}, {(32*e + 16*hh)*8192}",
                      f"buffer_load_dwordx4 v{VWD}, {sr(SRD_W,4)}, s{S_T0} offen lds"]
        return l
    def xread(ks, t, dst):
        p = xarea(ks >> 2, t)
        return f"ds_read_b128 {vr(dst,4)}, v{VX + 4*(p >> 16) + (ks & 3)} offset:{p & 0xffff}"
    def wread(ks, jt, hf, dst):
        p = wblk(ks >> 1, ks & 1)
        return f"ds_read_b64_tr_b16 {vr(dst,2)}, v{VAW + (p >> 16) - 1} offset:{(p & 0xffff) + 1024*hf + 8*jt}"
    up = xdma(0) + wdma(0) + wdma(1) + xdma(1) + wdma(2)
    def idle(A):
        A(f"""
        s_mov_b32 s{SRD_K+2}, 0x80000
        s_mov_b32 s{SRD_K+3}, 0x00020000
        s_mov_b32 s{SRD_V+2}, 0x80000
        s_mov_b32 s{SRD_V+3}, 0x00020000
        s_lshl_b32 s30, s{S_B}, 3
        s_add_u32 s30, s30, s{S_G}
        s_lshl_b32 s30, s30, 19
        s_add_u32 s{SRD_K}, s{SRD_K}, s30
        s_addc_u32 s{SRD_K+1}, s{SRD_K+1}, 0
        s_add_u32 s{SRD_V}, s{SRD_V}, s30
        s_addc_u32 s{SRD_V+1}, s{SRD_V+1}, 0
        s_add_u32 s{SRD_O}, s{SRD_O}, {WS_O}
        s_addc_u32 s{SRD_O+1}, s{SRD_O+1}, 0
        s_mov_b32 s{SRD_O+2}, {5 << 20}
        s_mov_b32 s{SRD_O+3}, 0x00020000
        v_lshl_add_u32 v8, v4, 3, v5
        s_lshl_b32 s30, s{S_W}, 2
        v_add_u32 v9, s30, v6
        v_lshlrev_b32 v2, 2, v5
        v_xor_b32 v9, v9, v2
        v_lshlrev_b32 v9, 4, v9
        v_lshl_add_u32 v9, v8, 8, v9
        v_add_u32 v{VAW}, 0x10000, v9
        v_add_u32 v{VAW+1}, 0x20000, v9
        v_lshl_add_u32 v8, v4, 2, v5
        v_and_b32 v9, 7, v8
        v_lshlrev_b32 v9, 5, v9
        v_lshl_add_u32 v9, v8, 8, v9
        v_lshl_add_u32 v9, v6, 3, v9
        """)
        for dt in range(8):
            A(f"v_xor_b32 v{V_VA+dt}, {32*dt}, v9")
            A(f"v_add_u32 v{V_VA+dt}, s{S_RW}, v{V_VA+dt}")
        A(f"""
        v_xor_b32 v9, v3, v4
        v_lshlrev_b32 v9, 4, v9
        v_lshl_add_u32 v9, v4, 8, v9
        """)
        for i in range(4): A(f"v_xor_b32 v{V_KD+i}, {64*i}, v9")
        A(f"""
        v_lshlrev_b32 v9, 1, v4
        v_xor_b32 v9, v3, v9
        v_lshlrev_b32 v9, 4, v9
        v_lshl_add_u32 v{V_VD}, v4, 8, v9
        v_xor_b32 v{V_VD+1}, 128, v{V_VD}
        """)
        for i in range(160): A(f"v_accvgpr_write_b32 a{A_O+i}, 0")
        for i in range(10): A(f"v_mov_b32 v{V_L+i}, 0")
        for i in range(32): A(f"v_mov_b32 v{V_VF+i}, 0")
        for i in range(4): A(f"v_mov_b32 v{V_P+i}, 0")
        for i in range(8): A(f"v_mov_b32 v{V_S+8+i}, 0xff7fffff")
    issue = {1: wdma(3) + xdma(2), 2: wdma(4), 3: wdma(5) + xdma(3), 4: wdma(6),
             5: wdma(7) + off_calc() + with_m0_gap(kv_dma('K', 0)),
             6: with_m0_gap(kv_dma('V', 0)),
             8: off_calc() + with_m0_gap(kv_dma('K', 1)) + with_m0_gap(kv_dma('V', 1))}
    vm = {0: 13, 1: 9, 2: 9, 3: 9, 4: 9, 5: 9, 6: 12, 7: 16}
    gemm_core(A, dict(acc=ACC, FA=FA, FB=FB, upfront=up, idle=idle, vm=vm, issue=issue, xread=xread, wread=wread))
    A(f"s_mov_b32 s30, {hex(f32(C_SCALE))}")
    A(f"v_lshl_add_u32 v8, v1, 4, s{S_W1K}")
    A(f"v_add_u32 v8, {LE}, v8")
    A("s_nop 3")
    for t in range(5):
        for jt in range(2):
            d = ACC + (jt*5 + t)*4
            for r in range(4): A(f"v_mul_f32 v{d+r}, s30, v{d+r}")
        q = FB[0] + 4*t
        for jt in range(2):
            d = ACC + (jt*5 + t)*4
            A(f"v_cvt_pk_bf16_f32 v{q+2*jt}, v{d}, v{d+1}")
            A(f"v_cvt_pk_bf16_f32 v{q+2*jt+1}, v{d+2}, v{d+3}")
        A(f"ds_write_b128 v8, {vr(q,4)} offset:{t*4096}")
    A("s_waitcnt vmcnt(24) lgkmcnt(0)")
    A("s_barrier")
    A(f"v_lshlrev_b32 v8, 4, v1")
    A(f"v_add_u32 v8, {LE}, v8")
    ST = 188
    if OPT['standin']:
        for s in range(4): A(f"ds_read_b128 {vr(ST+4*s,4)}, v{VX+s} offset:{K0}")
    for t in range(5):
        for s in range(4): A(f"ds_read_b128 {ar(A_Q+(t*4+s)*4,4)}, v8 offset:{(t*4+s)*1024}")
    for p in range(8): A(k_read(p, 0))
    if OPT['standin']:
        A("s_waitcnt lgkmcnt(8)")
        for t in range(5):
            for s in range(4):
                d = V_NEG + 4*t
                A(f"v_mfma_f32_16x16x32_bf16 {vr(d,4)}, {vr(ST+4*s,4)}, {ar(A_Q+(t*4+s)*4,4)}, {'0' if s == 0 else vr(d,4)}")
        T = 204
        A("s_nop 7")
        for t in range(5):
            d = V_NEG + 4*t
            A(f"v_max3_f32 v{T+t}, v{d}, v{d+1}, v{d+2}")
        for t in range(5): A(f"v_max_f32 v{T+t}, v{T+t}, v{V_NEG+4*t+3}")
        for swap in ("v_permlane32_swap_b32", "v_permlane16_swap_b32"):
            for t in range(5): A(f"v_mov_b32 v{T+8+t}, v{T+t}")
            for t in range(5): A(f"{swap} v{T+t}, v{T+8+t}")
            for t in range(5): A(f"v_max_f32 v{T+t}, v{T+t}, v{T+8+t}")
        for t in range(5):
            for r in range(4): A(f"v_xor_b32 v{V_NEG+4*t+r}, 0x80000000, v{T+t}")
    else:
        for i in range(20): A(f"v_mov_b32 v{V_NEG+i}, 0")
    A("s_waitcnt lgkmcnt(0)")
    A("s_barrier")
    A(f"s_mov_b32 s{S_CNT}, 8")
    A.raw(".p2align 6")
    A.label("L_k1_loop")
    for k in range(10): main_stage(A, k)
    A(f"s_sub_u32 s{S_CNT}, s{S_CNT}, 1")
    A(f"s_cmp_lg_u32 s{S_CNT}, 0")
    A("s_cbranch_scc1 L_k1_loop")
    va = sm_valu(4, 1)
    for p in range(16):
        if p >= 8: A(pv_mfma(p - 8, 3, 0))
        for x in va[p]: A(x)
        if p < 8 and p % 4 in (1,): A("s_nop 0")
    A("s_nop 1")
    for dt in range(8): A(pv_mfma(dt, 4, 1))
    A.label("L_k1_combine")
    XL = 122880
    A("s_waitcnt vmcnt(0)")
    A("s_barrier")
    A(f"v_lshlrev_b32 v8, 2, v1")
    A(f"s_mul_i32 s30, s{S_W}, 1280")
    A(f"s_add_u32 s30, s30, {XL}")
    A(f"v_add_u32 v9, s30, v8")
    for t in range(5): A(f"v_add_f32 v{V_L+2*t}, v{V_L+2*t}, v{V_L+2*t+1}")
    for t in range(5): A(f"ds_write_b32 v9, v{V_L+2*t} offset:{256*t}")
    TO = 60
    A(f"v_lshlrev_b32 v7, 4, v1")
    for d in range(4):
        A(f"s_cmp_eq_u32 s{S_W}, {d}")
        A(f"s_cbranch_scc1 L_own{d}")
        A(f"s_sub_u32 s30, s{S_W}, {d+1}")
        A(f"s_and_b32 s30, s30, 3")
        A(f"s_mul_i32 s30, s30, 10240")
        A(f"s_add_u32 s30, s30, {d*30720}")
        A(f"v_add_u32 v9, s30, v7")
        for t in range(5):
            for j in range(2):
                A(f"ds_write_b128 v9, {ar(A_O + (t*8 + 2*d + j)*4, 4)} offset:{(t*2+j)*1024}")
        A(f"s_branch L_nxt{d}")
        A.label(f"L_own{d}")
        for t in range(5):
            for j in range(2):
                for r in range(4): A(f"v_accvgpr_read_b32 v{TO + (t*2+j)*4 + r}, a{A_O + (t*8 + 2*d + j)*4 + r}")
        A.label(f"L_nxt{d}")
    A("s_waitcnt lgkmcnt(0)")
    A("s_barrier")
    TL = 100
    A(f"v_add_u32 v9, {XL}, v8")
    for w in range(4):
        for t in range(5): A(f"ds_read_b32 v{TL + w*5 + t}, v9 offset:{w*1280 + t*256}")
    TR = 120
    A(f"s_mul_i32 s30, s{S_W}, 30720")
    A(f"v_add_u32 v9, s30, v7")
    for sl in range(3):
        for q in range(10): A(f"ds_read_b128 {vr(TR + (sl*10 + q)*4, 4)}, v9 offset:{(sl*10+q)*1024}")
    A("s_waitcnt lgkmcnt(0)")
    for t in range(5):
        A(f"v_add_f32 v{TL+t}, v{TL+t}, v{TL+5+t}")
        A(f"v_add_f32 v{TL+10+t}, v{TL+10+t}, v{TL+15+t}")
    for t in range(5): A(f"v_add_f32 v{TL+t}, v{TL+t}, v{TL+10+t}")
    for swap in ("v_permlane32_swap_b32", "v_permlane16_swap_b32"):
        for t in range(5): A(f"v_mov_b32 v{TL+8+t}, v{TL+t}")
        for t in range(5): A(f"{swap} v{TL+t}, v{TL+8+t}")
        for t in range(5): A(f"v_add_f32 v{TL+t}, v{TL+t}, v{TL+8+t}")
    if OPT['fallback']:
        A(f"v_max3_f32 v{TL+8}, v{TL}, v{TL+1}, v{TL+2}")
        A(f"v_max3_f32 v{TL+8}, v{TL+8}, v{TL+3}, v{TL+4}")
        for t in range(5): pass
        A(f"v_add_f32 v{TL+9}, v{TL}, v{TL+1}")
        A(f"v_add_f32 v{TL+9}, v{TL+9}, v{TL+2}")
        A(f"v_add_f32 v{TL+9}, v{TL+9}, v{TL+3}")
        A(f"v_add_f32 v{TL+9}, v{TL+9}, v{TL+4}")
        A(f"s_mov_b32 s30, {hex(f32(2.0**40))}")
        A(f"v_cmp_ngt_f32 vcc, s30, v{TL+9}")
        A("s_nop 4")
        A("s_cmp_eq_u64 vcc, 0")
        A("s_cbranch_scc1 L_k1_ok")
        A(f"s_cmp_eq_u32 s{S_FB}, 0")
        A("s_cbranch_scc1 L_k1_fallback")
        A.label("L_k1_ok")
    for t in range(5): A(f"v_rcp_f32 v{TL+t}, v{TL+t}")
    for sl in range(3):
        for q in range(40): A(f"v_add_f32 v{TO+q}, v{TO+q}, v{TR + sl*40 + q}")
    for t in range(5):
        for q in range(8): A(f"v_mul_f32 v{TO + t*8 + q}, v{TO + t*8 + q}, v{TL+t}")
    A(f"s_lshl_b32 s30, s{S_B}, 7")
    A(f"s_lshl_b32 s31, s{S_H}, 2")
    A(f"s_add_u32 s30, s30, s31")
    A(f"s_add_u32 s30, s30, s{S_W}")
    A(f"s_mul_i32 s30, s30, 5120")
    for t in range(5):
        q = TR + 4*t
        for i in range(4): A(f"v_cvt_pk_bf16_f32 v{q+i}, v{TO + t*8 + 2*i}, v{TO + t*8 + 2*i + 1}")
    for t in range(5):
        so = "s30"
        A(f"buffer_store_dwordx4 {vr(TR+4*t,4)}, v7, {sr(SRD_O,4)}, s30 offen offset:{(t*1024) & 4095}" if t < 4 else
          f"s_add_u32 s30, s30, 4096\nbuffer_store_dwordx4 {vr(TR+4*t,4)}, v7, {sr(SRD_O,4)}, s30 offen")
    A("s_waitcnt vmcnt(0)")
    A.label("L_k1_end")
    A("s_endpgm")
    if OPT['fallback']: gen_fallback(A)
    return A.text()

def gen_fallback(A):
    M, AL, T = V_NEG, V_NEG + 8, 148
    SF = 160
    A.label("L_k1_fallback")
    A(f"s_mov_b32 s{S_FB}, 1")
    A("s_barrier")
    for i in range(160): A(f"v_accvgpr_write_b32 a{A_O+i}, 0")
    for i in range(10): A(f"v_mov_b32 v{V_L+i}, 0")
    for t in range(5): A(f"v_mov_b32 v{M+t}, 0xff7fffff")
    A(f"s_mov_b32 s{S_CNT}, 16")
    A(f"s_mov_b32 s{S_OFF}, s{S_W8}")
    A.label("L_fb_loop")
    A(f"s_add_u32 s{S_OFF2}, s{S_OFF}, 4096")
    for x in with_m0_gap(kv_dma('K', 0)) + with_m0_gap(kv_dma('V', 0)): A(x)
    A("s_waitcnt vmcnt(0)")
    for p in range(8): A(k_read(p, 0))
    for dt in range(8):
        for hf in range(2): A(v_read(dt, hf, 0))
    A("s_waitcnt lgkmcnt(0)")
    for t in range(5):
        for p in range(8):
            kt, s = p >> 2, p & 3
            d = SF + 8*t + 4*kt
            A(f"v_mfma_f32_16x16x32_bf16 {vr(d,4)}, {vr(V_KF+4*p,4)}, {ar(A_Q+(t*4+s)*4,4)}, {'0' if s == 0 else vr(d,4)}")
    A("s_nop 7")
    for t in range(5):
        d = SF + 8*t
        A(f"v_max3_f32 v{T+t}, v{d}, v{d+1}, v{d+2}")
        A(f"v_max3_f32 v{T+t}, v{T+t}, v{d+3}, v{d+4}")
        A(f"v_max3_f32 v{T+t}, v{T+t}, v{d+5}, v{d+6}")
        A(f"v_max3_f32 v{T+t}, v{T+t}, v{d+7}, v{M+t}")
    A("s_nop 1")
    for swap in ("v_permlane32_swap_b32", "v_permlane16_swap_b32"):
        for t in range(5): A(f"v_mov_b32 v{T+5+t}, v{T+t}")
        for t in range(5): A(f"{swap} v{T+t}, v{T+5+t}")
        for t in range(5): A(f"v_max_f32 v{T+t}, v{T+t}, v{T+5+t}")
    for t in range(5): A(f"v_sub_f32 v{AL+t}, v{M+t}, v{T+t}")
    for t in range(5): A(f"v_exp_f32 v{AL+t}, v{AL+t}")
    for t in range(5): A(f"v_mov_b32 v{M+t}, v{T+t}")
    for t in range(5):
        for i in range(8): A(f"v_sub_f32 v{SF+8*t+i}, v{SF+8*t+i}, v{M+t}")
    for t in range(5):
        for i in range(8): A(f"v_exp_f32 v{SF+8*t+i}, v{SF+8*t+i}")
    A("s_nop 0")
    for t in range(5):
        A(f"v_mul_f32 v{V_L+2*t}, v{V_L+2*t}, v{AL+t}")
        for i in range(8): A(f"v_add_f32 v{V_L+2*t}, v{V_L+2*t}, v{SF+8*t+i}")
    for t in range(5):
        for i in range(32):
            A(f"v_accvgpr_read_b32 v{T+10}, a{A_O+t*32+i}")
            A(f"v_mul_f32 v{T+10}, v{T+10}, v{AL+t}")
            A(f"v_accvgpr_write_b32 a{A_O+t*32+i}, v{T+10}")
    PF = 200
    for t in range(5):
        for i in range(4): A(f"v_cvt_pk_bf16_f32 v{PF+4*t+i}, v{SF+8*t+2*i}, v{SF+8*t+2*i+1}")
    A("s_nop 1")
    for t in range(5):
        for dt in range(8):
            o = A_O + (t*8 + dt)*4
            A(f"v_mfma_f32_16x16x32_bf16 {ar(o,4)}, {vr(V_VF+4*dt,4)}, {vr(PF+4*t,4)}, {ar(o,4)}")
    A("s_nop 7")
    A(f"s_add_u32 s{S_OFF}, s{S_OFF}, 0x8000")
    A(f"s_sub_u32 s{S_CNT}, s{S_CNT}, 1")
    A(f"s_cmp_lg_u32 s{S_CNT}, 0")
    A("s_cbranch_scc1 L_fb_loop")
    XL = 122880 + 5120
    A("s_barrier")
    A(f"v_lshlrev_b32 v8, 2, v1")
    A(f"s_mul_i32 s30, s{S_W}, 1280")
    A(f"s_add_u32 s30, s30, {XL}")
    A(f"v_add_u32 v9, s30, v8")
    for t in range(5): A(f"ds_write_b32 v9, v{M+t} offset:{256*t}")
    A("s_waitcnt lgkmcnt(0)")
    A("s_barrier")
    A(f"v_add_u32 v9, {XL}, v8")
    for w in range(4):
        for t in range(5): A(f"ds_read_b32 v{SF + w*5 + t}, v9 offset:{w*1280 + t*256}")
    A("s_waitcnt lgkmcnt(0)")
    for t in range(5):
        A(f"v_max3_f32 v{T+t}, v{SF+t}, v{SF+5+t}, v{SF+10+t}")
        A(f"v_max_f32 v{T+t}, v{T+t}, v{SF+15+t}")
        A(f"v_sub_f32 v{AL+t}, v{M+t}, v{T+t}")
    for t in range(5): A(f"v_exp_f32 v{AL+t}, v{AL+t}")
    A("s_nop 0")
    for t in range(5):
        A(f"v_mul_f32 v{V_L+2*t}, v{V_L+2*t}, v{AL+t}")
        A(f"v_mov_b32 v{V_L+2*t+1}, 0")
        for i in range(32):
            A(f"v_accvgpr_read_b32 v{T+10}, a{A_O+t*32+i}")
            A(f"v_mul_f32 v{T+10}, v{T+10}, v{AL+t}")
            A(f"v_accvgpr_write_b32 a{A_O+t*32+i}, v{T+10}")
    A("s_branch L_k1_combine")

def gen_k2():
    A = Asm()
    SRD_OF, SRD_WO, SRD_PP = 4, 8, 12
    S_C = 26
    A("s_cmp_ge_u32 s2, 256")
    A("s_cbranch_scc1 L_k2_end")
    A(f"s_load_dwordx2 s[{SRD_OF}:{SRD_OF+1}], s[0:1], 56")
    A(f"s_load_dwordx2 s[{SRD_WO}:{SRD_WO+1}], s[0:1], 32")
    A(f"s_load_dwordx2 s[{SRD_PP}:{SRD_PP+1}], s[0:1], 56")
    ACC, FA, FB, VL, VAW, VWD = 16, (56, 64), (72, 92), 10, 11, 13
    A(f"""
    v_lshrrev_b32 v2, 6, v0
    v_and_b32 v1, 63, v0
    s_and_b32 s{S_G}, s2, 7
    s_lshr_b32 s30, s2, 3
    v_readfirstlane_b32 s{S_W}, v2
    s_lshr_b32 s{S_B}, s30, 2
    s_and_b32 s{S_C}, s30, 3
    v_and_b32 v3, 15, v1
    v_lshrrev_b32 v4, 4, v1
    v_bfe_u32 v5, v1, 2, 2
    v_and_b32 v6, 3, v1
    s_lshl_b32 s{S_W1K}, s{S_W}, 10
    s_add_u32 s{S_ROT}, s{S_B}, s{S_C}
    s_and_b32 s{S_ROT}, s{S_ROT}, 3
    v_lshlrev_b32 v{VL}, 4, v1
    s_lshl_b32 s30, s{S_W}, 2
    v_add_u32 v8, s30, v4
    v_lshlrev_b32 v9, 2, v4
    v_xor_b32 v9, v3, v9
    v_lshlrev_b32 v9, 4, v9
    v_lshl_add_u32 v{VWD}, v8, 10, v9
    s_waitcnt lgkmcnt(0)
    s_add_u32 s{SRD_OF}, s{SRD_OF}, {WS_O}
    s_addc_u32 s{SRD_OF+1}, s{SRD_OF+1}, 0
    s_mov_b32 s{SRD_OF+2}, {5 << 20}
    s_mov_b32 s{SRD_OF+3}, 0x00020000
    s_mov_b32 s{SRD_WO+2}, {4096*1024}
    s_mov_b32 s{SRD_WO+3}, 0x00020000
    s_lshl_b32 s30, s{S_B}, 7
    s_lshl_b32 s31, s{S_G}, 4
    s_add_u32 s30, s30, s31
    s_mul_i32 s31, s30, 5120
    s_lshl_b32 s44, s{S_G}, 19
    s_lshl_b32 s30, s{S_C}, 8
    s_add_u32 s44, s44, s30
    """)
    XB, WB = 0, 81920
    xarea = lambda a, t: XB + (a * 5 + t) * 4096
    wblk = lambda u, e: WB + (u % 3) * 16384 + e * 8192
    def xdma(a):
        l = [f"s_add_u32 s{S_T0}, s{S_ROT}, {a}", f"s_and_b32 s{S_T0}, s{S_T0}, 3", f"s_lshl_b32 s{S_T0}, s{S_T0}, 2",
             f"s_add_u32 s{S_T0}, s{S_T0}, s{S_W}", f"s_mul_i32 s{S_T0}, s{S_T0}, 5120", f"s_add_u32 s{S_XOFF}, s{S_T0}, s31"]
        for t in range(5):
            l += [f"s_add_u32 m0, s{S_W1K}, {xarea(a, t)}", f"s_add_u32 s{S_T0}, s{S_XOFF}, {t*1024}",
                  f"buffer_load_dwordx4 v{VL}, {sr(SRD_OF,4)}, s{S_T0} offen lds"]
        return l
    def wdma(u):
        l = [f"s_lshl_b32 s{S_T0}, s{S_ROT}, 1", f"s_add_u32 s{S_T0}, s{S_T0}, {u}", f"s_and_b32 s{S_T0}, s{S_T0}, 7", f"s_lshl_b32 s{S_T0}, s{S_T0}, 16",
             f"s_add_u32 s{S_WK}, s{S_T0}, s44"]
        for e in range(2):
            for hh in range(2):
                l += [f"s_add_u32 m0, s{S_W1K}, {wblk(u, e) + 4096*hh}", f"s_add_u32 s{S_T0}, s{S_WK}, {(32*e + 16*hh)*1024}",
                      f"buffer_load_dwordx4 v{VWD}, {sr(SRD_WO,4)}, s{S_T0} offen lds"]
        return l
    def xread(ks, t, dst):
        p = xarea(ks >> 2, t) + (ks & 3) * 1024
        return f"ds_read_b128 {vr(dst,4)}, v{VL + (2 if p >= 65536 else 0)} offset:{p & 0xffff}"
    def wread(ks, jt, hf, dst):
        p = wblk(ks >> 1, ks & 1)
        return f"ds_read_b64_tr_b16 {vr(dst,2)}, v{VAW} offset:{(p - 65536) + 4096*hf + 8*jt}"
    up = xdma(0) + wdma(0) + wdma(1) + xdma(1) + wdma(2)
    def idle(A):
        A(f"""
        v_add_u32 v{VL+2}, 0x10000, v{VL}
        v_lshl_add_u32 v8, v4, 2, v5
        s_lshl_b32 s30, s{S_W}, 2
        v_add_u32 v9, s30, v6
        v_lshlrev_b32 v2, 2, v5
        v_xor_b32 v9, v9, v2
        v_lshlrev_b32 v9, 4, v9
        v_lshl_add_u32 v9, v8, 8, v9
        v_add_u32 v{VAW}, 0x10000, v9
        s_add_u32 s{SRD_PP}, s{SRD_PP}, {WS_P}
        s_addc_u32 s{SRD_PP+1}, s{SRD_PP+1}, 0
        s_mov_b32 s{SRD_PP+2}, {10 << 20}
        s_mov_b32 s{SRD_PP+3}, 0x00020000
        """)
    issue = {1: wdma(3) + xdma(2), 2: wdma(4), 3: wdma(5) + xdma(3), 4: wdma(6), 5: wdma(7)}
    vm = {0: 13, 1: 9, 2: 9, 3: 9, 4: 9, 5: 9, 6: 4, 7: 0}
    gemm_core(A, dict(acc=ACC, FA=FA, FB=FB, upfront=up, idle=idle, vm=vm, issue=issue, xread=xread, wread=wread))
    A(f"""
    s_lshl_b32 s30, s{S_B}, 2
    s_add_u32 s30, s30, s{S_C}
    s_lshl_b32 s30, s30, 2
    s_add_u32 s30, s30, s{S_W}
    s_mul_i32 s30, s30, 81920
    s_lshl_b32 s31, s{S_G}, 10
    s_add_u32 s30, s30, s31
    s_nop 3
    """)
    for q in (0, 5, 1, 6, 2, 7, 3, 8, 4, 9):
        A(f"s_add_u32 s31, s30, {q*8192}")
        A(f"buffer_store_dwordx4 {vr(ACC+4*q,4)}, v{VL}, {sr(SRD_PP,4)}, s31 offen")
    A("s_waitcnt vmcnt(0)")
    A.label("L_k2_end")
    A("s_endpgm")
    return A.text()

def gen_k3():
    A = Asm()
    A("s_cmp_ge_u32 s2, 160")
    A("s_cbranch_scc1 L_k3_end")
    A("s_load_dwordx2 s[4:5], s[0:1], 56")
    A("s_load_dwordx2 s[8:9], s[0:1], 40")
    A("""
    v_lshrrev_b32 v2, 6, v0
    v_and_b32 v1, 63, v0
    v_lshlrev_b32 v3, 4, v1
    s_lshl_b32 s20, s2, 2
    v_readfirstlane_b32 s21, v2
    v_and_b32 v4, 15, v1
    v_lshrrev_b32 v5, 4, v1
    s_add_u32 s20, s20, s21          ; unit U = 0..639 : (bcw = U / 5, t = U % 5)
    """)
    A(f"s_mul_hi_u32 s22, s20, {(1 << 32)//5 + 1}")
    A("s_mul_i32 s23, s22, 5")
    A("s_sub_u32 s23, s20, s23       ; t")
    A("s_mul_i32 s24, s22, 81920")
    A("s_lshl_b32 s25, s23, 13")
    A("s_add_u32 s24, s24, s25       ; + t*8192")
    A("s_waitcnt lgkmcnt(0)")
    A(f"s_add_u32 s4, s4, {WS_P}")
    A("s_addc_u32 s5, s5, 0")
    A(f"s_mov_b32 s6, {10 << 20}")
    A("s_mov_b32 s7, 0x00020000")
    A(f"s_mov_b32 s10, {640*1024}")
    A("s_mov_b32 s11, 0x00020000")
    for jt in range(2):
        for g in range(8):
            if g % 4 == 0: A(f"s_add_u32 s25, s24, {jt*5*8192 + g*1024}")
            A(f"buffer_load_dwordx4 {vr(8 + (jt*8+g)*4, 4)}, v3, s[4:7], s25 offen offset:{(g%4)*1024}")
    A("""
    s_lshr_b32 s26, s22, 4           ; b
    s_and_b32 s27, s22, 15           ; c*4 + w
    s_mul_i32 s26, s26, 80
    s_lshl_b32 s28, s23, 4
    s_add_u32 s26, s26, s28
    v_add_u32 v4, s26, v4
    v_lshlrev_b32 v4, 10, v4
    s_lshl_b32 s27, s27, 6
    v_lshl_add_u32 v4, v5, 4, v4
    v_add_u32 v4, s27, v4
    """)
    for jt in range(2):
        A(f"s_waitcnt vmcnt({8 if jt == 0 else 0})")
        b = 8 + jt*32
        for g in range(1, 8):
            for r in range(4): A(f"v_add_f32 v{b+r}, v{b+r}, v{b+4*g+r}")
    A("v_cvt_pk_bf16_f32 v72, v8, v9")
    A("v_cvt_pk_bf16_f32 v73, v10, v11")
    A("v_cvt_pk_bf16_f32 v74, v40, v41")
    A("v_cvt_pk_bf16_f32 v75, v42, v43")
    A("buffer_store_dwordx4 v[72:75], v4, s[8:11], 0 offen")
    A("s_waitcnt vmcnt(0)")
    A.label("L_k3_end")
    A("s_endpgm")
    return A.text()

def build():
    launches = [("attn_kernel", 256, 256, 163840), ("oproj_kernel", 256, 256, 131072), ("oreduce_kernel", 160, 256, 0)]
    kernels = [("attn_kernel", gen_k1(), 512, 256, 102), ("oproj_kernel", gen_k2(), 128, 128, 102), ("oreduce_kernel", gen_k3(), 80, 80, 102)]
    return assemble_file(launches, kernels)

if __name__ == "__main__":
    out = sys.argv[1]
    for kv in sys.argv[2:]:
        k_, v_ = kv.split("=")
        OPT[k_] = eval(v_)
    open(out, "w").write(build())
```

```python
import sys, struct, math
from lib import *

def f32(x): return struct.unpack("<I", struct.pack("<f", x))[0]
C_SCALE = math.log2(math.e) / math.sqrt(128.0)

WS_O = 0
WS_P = 8 << 20
OPT = dict(standin=True, fallback=True, dbgq=False, stamps=False, nodma=False, nods=False, novalu=False, nowait=False)
WS_ST = 64 << 20
def stamp(A, i, cyc=False):
    if not OPT['stamps']: return
    A(f"s_memrealtime s[{64+2*i}:{65+2*i}]")
    A("s_waitcnt lgkmcnt(0)")
def stamp_cyc(A, i):
    if not OPT['stamps']: return
    A(f"s_memtime s[{64+2*i}:{65+2*i}]")
    A("s_waitcnt lgkmcnt(0)")
def stamp_out(A, kidx, n, wave_sgpr):
    if not OPT['stamps']: return
    A("s_load_dwordx2 s[92:93], s[0:1], 56")
    A("s_waitcnt lgkmcnt(0)")
    A(f"s_add_u32 s92, s92, {WS_ST + kidx * (1 << 20)}")
    A("s_addc_u32 s93, s93, 0")
    A("s_mov_b32 s94, 0x100000")
    A("s_mov_b32 s95, 0x00020000")
    A("s_lshl_b32 s96, s2, 2")
    A(f"s_add_u32 s96, s96, s{wave_sgpr}")
    A("s_lshl_b32 s96, s96, 6")
    A("v_mov_b32 v2, 0")
    for i in range(n):
        A(f"v_mov_b32 v3, s{64+2*i}")
        A(f"buffer_store_dword v3, v2, s[92:95], s96 offen offset:{4*i}")
    A("s_waitcnt vmcnt(0)")

def gemm_core(A, cfg):
    acc, FA, FB = cfg['acc'], cfg['FA'], cfg['FB']
    def reads(ks):
        buf = ks & 1
        l = []
        w = [cfg['wread'](ks, jt, hf, FA[buf] + 4 * jt + 2 * hf) for jt in range(2) for hf in range(2)]
        x = [cfg['xread'](ks, t, FB[buf] + 4 * t) for t in range(5)]
        l = [w[0], w[1], x[0], w[2], w[3], x[1], x[2], x[3], x[4]]
        return l
    for g in cfg['upfront']: A(g)
    cfg['idle'](A)
    A(f"s_waitcnt vmcnt({cfg['vm'][0]})")
    A("s_barrier")
    stamp(A, 1)
    for r in reads(0): A(r)
    for ks in range(16):
        buf = ks & 1
        extra = []
        A("s_waitcnt lgkmcnt(0)")
        if ks & 1:
            bar = (ks >> 1) + 1
            if bar <= 7: A(f"s_waitcnt vmcnt({cfg['vm'][bar]})")
            A("s_barrier")
            extra = list(cfg['issue'].get(bar, []))
        fill = reads(ks + 1) if ks < 15 else []
        m = 0
        for t in range(5):
            for jt in range(2):
                d = acc + (jt * 5 + t) * 4
                c = "0" if ks == 0 else vr(d, 4)
                A(f"v_mfma_f32_16x16x32_bf16 {vr(d,4)}, {vr(FA[buf]+4*jt,4)}, {vr(FB[buf]+4*t,4)}, {c}")
                if fill: A(fill.pop(0))
                k = (len(extra) + (9 - m)) // (10 - m) if extra else 0
                for _ in range(min(k, len(extra))): A(extra.pop(0))
                m += 1
        for e in extra: A(e)

V_KA, V_VA, V_KD, V_VD, V_L, V_NEG, V_S, V_P, V_KF, V_VF = 10, 14, 22, 26, 28, 40, 60, 76, 84, 116
A_O, A_Q = 0, 160
S_G, S_B, S_R, S_W, S_H, S_RW = 24, 25, 26, 27, 28, 29
S_T, S_R15, S_W8, S_END, S_OFF, S_OFF2, S_CNT, S_W1K, S_XOFF, S_WK, S_ROT, S_FB = 32, 33, 34, 35, 36, 37, 38, 39, 40, 41, 42, 43
S_T0, S_T1, S_T2 = 60, 61, 62
SRD_X, SRD_K, SRD_V, SRD_W, SRD_O = 4, 8, 12, 16, 20
K0, K1s, V0, V1 = 0, 8192, 16384, 24576
LE = 131072

def off_calc():
    return [f"s_add_u32 s{S_T0}, s{S_T}, s{S_R15}",
            f"s_and_b32 s{S_T0}, s{S_T0}, 0x18000",
            f"s_and_b32 s{S_T1}, s{S_T}, 0x60000",
            f"s_or_b32 s{S_T0}, s{S_T0}, s{S_T1}",
            f"s_or_b32 s{S_OFF}, s{S_T0}, s{S_W8}",
            f"s_cmp_ge_u32 s{S_T}, s{S_END}",
            f"s_cselect_b32 s{S_OFF}, 0x80000, s{S_OFF}",
            f"s_add_u32 s{S_OFF2}, s{S_OFF}, 4096",
            f"s_add_u32 s{S_T}, s{S_T}, 0x8000"]

def kv_dma(which, slot):
    srd = SRD_K if which == 'K' else SRD_V
    base = (K0, K1s)[slot] if which == 'K' else (V0, V1)[slot]
    l = []
    for half in range(2):
        l.append(f"s_add_u32 m0, s{S_RW}, {base + 4096 * half}")
        so = S_OFF if half == 0 else S_OFF2
        for i in range(4):
            vo = V_KD + i if which == 'K' else V_VD + (i & 1)
            l.append(f"buffer_load_dwordx4 v{vo}, {sr(srd,4)}, s{so} offen offset:{1024*i} lds")
    return l
def with_m0_gap(l):
    out = []
    for x in l:
        out.append(x)
        if x.startswith("s_add_u32 m0"): out.append("s_nop 0")
    return out

def k_read(p, slot):
    kt, s = p >> 2, p & 3
    return f"ds_read_b128 {vr(V_KF + 4*p, 4)}, v{V_KA + s} offset:{(K0, K1s)[slot] + 4096*kt}"
def v_read(dt, hf, slot):
    return f"ds_read_b64_tr_b16 {vr(V_VF + 4*dt + 2*hf, 2)}, v{V_VA + dt} offset:{(V0, V1)[slot] + 4096*hf}"
def qk_mfma(p, tq, sbuf, first_c=None):
    kt, s = p >> 2, p & 3
    d = V_S + 8 * sbuf + 4 * kt
    c = (vr(V_NEG + 4 * tq, 4) if first_c is None else first_c) if s == 0 else vr(d, 4)
    return f"v_mfma_f32_16x16x32_bf16 {vr(d,4)}, {vr(V_KF + 4*p, 4)}, {ar(A_Q + (tq*4 + s)*4, 4)}, {c}"
def pv_mfma(dt, tp, pbuf):
    o = A_O + (tp * 8 + dt) * 4
    return f"v_mfma_f32_16x16x32_bf16 {ar(o,4)}, {vr(V_VF + 4*dt, 4)}, {vr(V_P + 4*pbuf, 4)}, {ar(o,4)}"
def sm_valu(ts, buf):
    S = V_S + 8 * buf; P = V_P + 4 * buf; L = V_L + 2 * ts
    g = [[] for _ in range(16)]
    for q in range(4):
        e0, e1 = S + 2 * q, S + 2 * q + 1
        g[4*q + 0].append(f"v_exp_f32 v{e0}, v{e0}")
        g[4*q + 1].append(f"v_exp_f32 v{e1}, v{e1}")
        g[4*q + 2].append(f"v_add_f32 v{L}, v{L}, v{e0}")
        g[4*q + 2].append(f"v_add_f32 v{L+1}, v{L+1}, v{e1}")
        g[4*q + 3].append(f"v_cvt_pk_bf16_f32 v{P + q}, v{e0}, v{e1}")
    return g

def main_stage(A, k):
    tq, ts, tp = k % 5, (k + 4) % 5, (k + 3) % 5
    nv = [[] for _ in range(16)]
    par = 0 if k < 5 else 1
    km = k % 5
    if km == 0:
        slot = par
        oc = off_calc()
        for i, x in enumerate(oc): nv[min(i // 2, 4)].append(x)
        d = kv_dma('K', slot)
        for i, x in enumerate(d): nv[5 + i].append(x)
    if km == 1:
        slot = par
        nv[7].append("s_waitcnt vmcnt(24)")
        for dt in range(8): nv[8 + dt].append(v_read(dt, 0, slot))
    if km == 2:
        slot = par
        for dt in range(8): nv[dt].append(v_read(dt, 1, slot))
        for dt in range(8): nv[7 + dt].append(f"s_waitcnt lgkmcnt({7 - dt})")
    if km == 3:
        slot = par
        d = kv_dma('V', slot)
        for i, x in enumerate(d): nv[i].append(x)
        nv[15].append("s_waitcnt vmcnt(24)")
    if km == 4:
        slot = 1 - par
        for p in range(8): nv[p].append(k_read(p, slot))
        nv[15].append("s_waitcnt lgkmcnt(0)")
    va = sm_valu(ts, (k + 1) & 1)
    for p in range(16):
        A(qk_mfma(p, tq, k & 1) if p < 8 else pv_mfma(p - 8, tp, k & 1))
        for x in nv[p]:
            if OPT['nodma'] and x.startswith("buffer_load"): continue
            if OPT['nods'] and x.startswith("ds_read"): continue
            if OPT['nowait'] and x.startswith("s_waitcnt"): continue
            A(x)
        if OPT['novalu']: continue
        for x in va[p]: A(x)

def gen_k1():
    A = Asm()
    A("s_cmp_ge_u32 s2, 256")
    A("s_cbranch_scc1 L_k1_end")
    stamp(A, 0)
    A(f"s_load_dwordx2 s[{SRD_X}:{SRD_X+1}], s[0:1], 0")
    A(f"s_load_dwordx2 s[{SRD_K}:{SRD_K+1}], s[0:1], 8")
    A(f"s_load_dwordx2 s[{SRD_V}:{SRD_V+1}], s[0:1], 16")
    A(f"s_load_dwordx2 s[{SRD_W}:{SRD_W+1}], s[0:1], 24")
    A(f"s_load_dwordx2 s[{SRD_O}:{SRD_O+1}], s[0:1], 56")
    A(f"""
    v_lshrrev_b32 v2, 6, v0
    v_and_b32 v1, 63, v0
    s_and_b32 s{S_G}, s2, 7
    s_lshr_b32 s30, s2, 3
    v_readfirstlane_b32 s{S_W}, v2
    s_lshr_b32 s{S_B}, s30, 2
    s_and_b32 s{S_R}, s30, 3
    s_lshl_b32 s{S_H}, s{S_G}, 2
    s_add_u32 s{S_H}, s{S_H}, s{S_R}
    v_and_b32 v3, 15, v1
    v_lshrrev_b32 v4, 4, v1
    v_bfe_u32 v5, v1, 2, 2
    v_and_b32 v6, 3, v1
    s_lshl_b32 s{S_RW}, s{S_W}, 15
    s_lshl_b32 s{S_W1K}, s{S_W}, 10
    s_lshl_b32 s{S_W8}, s{S_W}, 13
    s_lshl_b32 s{S_R15}, s{S_R}, 15
    s_and_b32 s30, s{S_B}, 3
    s_lshl_b32 s{S_T}, s30, 15
    s_add_u32 s{S_END}, s{S_T}, 0x80000
    s_add_u32 s{S_ROT}, s{S_B}, s{S_R}
    s_and_b32 s{S_ROT}, s{S_ROT}, 3
    s_mov_b32 s{S_FB}, 0
    """)
    ACC, FA, FB, VX, VAW, VXD, VWD = 148, (188, 196), (204, 224), 244, 252, 254, 255
    A(f"""
    v_xor_b32 v7, v4, v3
    v_lshlrev_b32 v7, 4, v7
    v_lshl_add_u32 v7, v3, 8, v7            ; n*256 + (gq^n)*16
    """)
    for s in range(4):
        A(f"v_xor_b32 v{VX+s}, {64*s}, v7")
        A(f"v_add_u32 v{VX+4+s}, 0x10000, v{VX+s}")
        A(f"v_add_u32 v{V_KA+s}, s{S_RW}, v{VX+s}")
    A(f"""
    s_lshl_b32 s30, s{S_W}, 2
    v_add_u32 v8, s30, v4                   ; 4w+gq
    v_xor_b32 v9, v3, v8
    v_lshlrev_b32 v9, 4, v9
    v_lshl_add_u32 v{VXD}, v8, 10, v9
    v_lshlrev_b32 v9, 2, v4
    v_xor_b32 v9, v3, v9
    v_lshlrev_b32 v9, 4, v9
    v_lshl_add_u32 v{VWD}, v8, 13, v9
    s_waitcnt lgkmcnt(0)
    s_mov_b32 s{SRD_X+2}, {640*1024}
    s_mov_b32 s{SRD_X+3}, 0x00020000
    s_mov_b32 s{SRD_W+2}, {512*8192}
    s_mov_b32 s{SRD_W+3}, 0x00020000
    s_mul_i32 s31, s{S_B}, 81920
    """)
    pool1 = [w*32768 + V0 + h*4096 for w in range(4) for h in range(2)] + [K1s, K1s + 4096]
    pool2 = [w*32768 + K1s + h*4096 for w in (1, 2, 3) for h in range(2)] + [w*32768 + V1 + h*4096 for w in (0, 1) for h in range(2)]
    xarea = lambda a, t: (pool1 if a < 2 else pool2)[(a & 1) * 5 + t]
    wblk = lambda u, e: [[2*32768 + V1, 3*32768 + V1], [LE, LE + 8192], [LE + 16384, LE + 24576]][u % 3][e]
    def xdma(a):
        l = [f"s_add_u32 s{S_T0}, s{S_ROT}, {a}", f"s_and_b32 s{S_T0}, s{S_T0}, 3", f"s_lshl_b32 s{S_T0}, s{S_T0}, 8", f"s_add_u32 s{S_XOFF}, s{S_T0}, s31"]
        for t in range(5):
            l += [f"s_add_u32 m0, s{S_W1K}, {xarea(a, t)}", f"s_add_u32 s{S_T0}, s{S_XOFF}, {t*16384}",
                  f"buffer_load_dwordx4 v{VXD}, {sr(SRD_X,4)}, s{S_T0} offen lds"]
        return l
    def wdma(u):
        l = [f"s_lshl_b32 s{S_T0}, s{S_ROT}, 1", f"s_add_u32 s{S_T0}, s{S_T0}, {u}", f"s_and_b32 s{S_T0}, s{S_T0}, 7", f"s_lshl_b32 s{S_T0}, s{S_T0}, 19",
             f"s_lshl_b32 s{S_T1}, s{S_H}, 8", f"s_add_u32 s{S_WK}, s{S_T0}, s{S_T1}"]
        for e in range(2):
            for hh in range(2):
                l += [f"s_add_u32 m0, s{S_W1K}, {wblk(u, e) + 4096*hh}", f"s_add_u32 s{S_T0}, s{S_WK}, {(32*e + 16*hh)*8192}",
                      f"buffer_load_dwordx4 v{VWD}, {sr(SRD_W,4)}, s{S_T0} offen lds"]
        return l
    def xread(ks, t, dst):
        p = xarea(ks >> 2, t)
        return f"ds_read_b128 {vr(dst,4)}, v{VX + 4*(p >> 16) + (ks & 3)} offset:{p & 0xffff}"
    def wread(ks, jt, hf, dst):
        p = wblk(ks >> 1, ks & 1)
        return f"ds_read_b64_tr_b16 {vr(dst,2)}, v{VAW + (p >> 16) - 1} offset:{(p & 0xffff) + 1024*hf + 8*jt}"
    up = xdma(0) + wdma(0) + wdma(1) + xdma(1) + wdma(2)
    def idle(A):
        A(f"""
        s_mov_b32 s{SRD_K+2}, 0x80000
        s_mov_b32 s{SRD_K+3}, 0x00020000
        s_mov_b32 s{SRD_V+2}, 0x80000
        s_mov_b32 s{SRD_V+3}, 0x00020000
        s_lshl_b32 s30, s{S_B}, 3
        s_add_u32 s30, s30, s{S_G}
        s_lshl_b32 s30, s30, 19
        s_add_u32 s{SRD_K}, s{SRD_K}, s30
        s_addc_u32 s{SRD_K+1}, s{SRD_K+1}, 0
        s_add_u32 s{SRD_V}, s{SRD_V}, s30
        s_addc_u32 s{SRD_V+1}, s{SRD_V+1}, 0
        s_add_u32 s{SRD_O}, s{SRD_O}, {WS_O}
        s_addc_u32 s{SRD_O+1}, s{SRD_O+1}, 0
        s_mov_b32 s{SRD_O+2}, {5 << 20}
        s_mov_b32 s{SRD_O+3}, 0x00020000
        v_lshl_add_u32 v8, v4, 3, v5
        s_lshl_b32 s30, s{S_W}, 2
        v_add_u32 v9, s30, v6
        v_lshlrev_b32 v2, 2, v5
        v_xor_b32 v9, v9, v2
        v_lshlrev_b32 v9, 4, v9
        v_lshl_add_u32 v9, v8, 8, v9
        v_add_u32 v{VAW}, 0x10000, v9
        v_add_u32 v{VAW+1}, 0x20000, v9
        v_lshl_add_u32 v8, v4, 2, v5
        v_and_b32 v9, 7, v8
        v_lshlrev_b32 v9, 5, v9
        v_lshl_add_u32 v9, v8, 8, v9
        v_lshl_add_u32 v9, v6, 3, v9
        """)
        for dt in range(8):
            A(f"v_xor_b32 v{V_VA+dt}, {32*dt}, v9")
            A(f"v_add_u32 v{V_VA+dt}, s{S_RW}, v{V_VA+dt}")
        A(f"""
        v_xor_b32 v9, v3, v4
        v_lshlrev_b32 v9, 4, v9
        v_lshl_add_u32 v9, v4, 8, v9
        """)
        for i in range(4): A(f"v_xor_b32 v{V_KD+i}, {64*i}, v9")
        A(f"""
        v_lshlrev_b32 v9, 1, v4
        v_xor_b32 v9, v3, v9
        v_lshlrev_b32 v9, 4, v9
        v_lshl_add_u32 v{V_VD}, v4, 8, v9
        v_xor_b32 v{V_VD+1}, 128, v{V_VD}
        """)
        for i in range(160): A(f"v_accvgpr_write_b32 a{A_O+i}, 0")
        for i in range(10): A(f"v_mov_b32 v{V_L+i}, 0")
        for i in range(32): A(f"v_mov_b32 v{V_VF+i}, 0")
        for i in range(4): A(f"v_mov_b32 v{V_P+i}, 0")
        for i in range(8): A(f"v_mov_b32 v{V_S+8+i}, 0xff7fffff")
    issue = {1: wdma(3) + xdma(2), 2: wdma(4), 3: wdma(5) + xdma(3), 4: wdma(6),
             5: wdma(7) + off_calc() + with_m0_gap(kv_dma('K', 0)),
             6: with_m0_gap(kv_dma('V', 0)),
             8: off_calc() + with_m0_gap(kv_dma('K', 1)) + with_m0_gap(kv_dma('V', 1))}
    vm = {0: 13, 1: 9, 2: 9, 3: 9, 4: 9, 5: 9, 6: 12, 7: 16}
    gemm_core(A, dict(acc=ACC, FA=FA, FB=FB, upfront=up, idle=idle, vm=vm, issue=issue, xread=xread, wread=wread))
    stamp(A, 2)
    A(f"s_mov_b32 s30, {hex(f32(C_SCALE))}")
    A(f"v_lshl_add_u32 v8, v1, 4, s{S_W1K}")
    A(f"v_add_u32 v8, {LE}, v8")
    A("s_nop 3")
    for t in range(5):
        for jt in range(2):
            d = ACC + (jt*5 + t)*4
            for r in range(4): A(f"v_mul_f32 v{d+r}, s30, v{d+r}")
        q = FB[0] + 4*t
        for jt in range(2):
            d = ACC + (jt*5 + t)*4
            A(f"v_cvt_pk_bf16_f32 v{q+2*jt}, v{d}, v{d+1}")
            A(f"v_cvt_pk_bf16_f32 v{q+2*jt+1}, v{d+2}, v{d+3}")
        A(f"ds_write_b128 v8, {vr(q,4)} offset:{t*4096}")
    A("s_waitcnt vmcnt(24) lgkmcnt(0)")
    A("s_barrier")
    A(f"v_lshlrev_b32 v8, 4, v1")
    A(f"v_add_u32 v8, {LE}, v8")
    ST = 188
    if OPT['standin']:
        for s in range(4): A(f"ds_read_b128 {vr(ST+4*s,4)}, v{VX+s} offset:{K0}")
    for t in range(5):
        for s in range(4): A(f"ds_read_b128 {ar(A_Q+(t*4+s)*4,4)}, v8 offset:{(t*4+s)*1024}")
    for p in range(8): A(k_read(p, 0))
    if OPT['standin']:
        A("s_waitcnt lgkmcnt(8)")
        for t in range(5):
            for s in range(4):
                d = V_NEG + 4*t
                A(f"v_mfma_f32_16x16x32_bf16 {vr(d,4)}, {vr(ST+4*s,4)}, {ar(A_Q+(t*4+s)*4,4)}, {'0' if s == 0 else vr(d,4)}")
        T = 204
        A("s_nop 7")
        for t in range(5):
            d = V_NEG + 4*t
            A(f"v_max3_f32 v{T+t}, v{d}, v{d+1}, v{d+2}")
        for t in range(5): A(f"v_max_f32 v{T+t}, v{T+t}, v{V_NEG+4*t+3}")
        for swap in ("v_permlane32_swap_b32", "v_permlane16_swap_b32"):
            for t in range(5): A(f"v_mov_b32 v{T+8+t}, v{T+t}")
            for t in range(5): A(f"{swap} v{T+t}, v{T+8+t}")
            for t in range(5): A(f"v_max_f32 v{T+t}, v{T+t}, v{T+8+t}")
        for t in range(5):
            for r in range(4): A(f"v_xor_b32 v{V_NEG+4*t+r}, 0x80000000, v{T+t}")
    else:
        for i in range(20): A(f"v_mov_b32 v{V_NEG+i}, 0")
    A("s_waitcnt lgkmcnt(0)")
    A("s_barrier")
    A(f"s_mov_b32 s{S_CNT}, 8")
    stamp(A, 3)
    stamp_cyc(A, 8)
    A.raw(".p2align 6")
    A.label("L_k1_loop")
    for k in range(10): main_stage(A, k)
    A(f"s_sub_u32 s{S_CNT}, s{S_CNT}, 1")
    A(f"s_cmp_lg_u32 s{S_CNT}, 0")
    A("s_cbranch_scc1 L_k1_loop")
    stamp(A, 4)
    stamp_cyc(A, 9)
    va = sm_valu(4, 1)
    for p in range(16):
        if p >= 8: A(pv_mfma(p - 8, 3, 0))
        for x in va[p]: A(x)
        if p < 8 and p % 4 in (1,): A("s_nop 0")
    A("s_nop 1")
    for dt in range(8): A(pv_mfma(dt, 4, 1))
    A.label("L_k1_combine")
    XL = 122880
    A("s_waitcnt vmcnt(0)")
    A("s_barrier")
    A(f"v_lshlrev_b32 v8, 2, v1")
    A(f"s_mul_i32 s30, s{S_W}, 1280")
    A(f"s_add_u32 s30, s30, {XL}")
    A(f"v_add_u32 v9, s30, v8")
    for t in range(5): A(f"v_add_f32 v{V_L+2*t}, v{V_L+2*t}, v{V_L+2*t+1}")
    for t in range(5): A(f"ds_write_b32 v9, v{V_L+2*t} offset:{256*t}")
    TO = 60
    A(f"v_lshlrev_b32 v7, 4, v1")
    for d in range(4):
        A(f"s_cmp_eq_u32 s{S_W}, {d}")
        A(f"s_cbranch_scc1 L_own{d}")
        A(f"s_sub_u32 s30, s{S_W}, {d+1}")
        A(f"s_and_b32 s30, s30, 3")
        A(f"s_mul_i32 s30, s30, 10240")
        A(f"s_add_u32 s30, s30, {d*30720}")
        A(f"v_add_u32 v9, s30, v7")
        for t in range(5):
            for j in range(2):
                A(f"ds_write_b128 v9, {ar(A_O + (t*8 + 2*d + j)*4, 4)} offset:{(t*2+j)*1024}")
        A(f"s_branch L_nxt{d}")
        A.label(f"L_own{d}")
        for t in range(5):
            for j in range(2):
                for r in range(4): A(f"v_accvgpr_read_b32 v{TO + (t*2+j)*4 + r}, a{A_O + (t*8 + 2*d + j)*4 + r}")
        A.label(f"L_nxt{d}")
    A("s_waitcnt lgkmcnt(0)")
    A("s_barrier")
    stamp(A, 5)
    TL = 100
    A(f"v_add_u32 v9, {XL}, v8")
    for w in range(4):
        for t in range(5): A(f"ds_read_b32 v{TL + w*5 + t}, v9 offset:{w*1280 + t*256}")
    TR = 120
    A(f"s_mul_i32 s30, s{S_W}, 30720")
    A(f"v_add_u32 v9, s30, v7")
    for sl in range(3):
        for q in range(10): A(f"ds_read_b128 {vr(TR + (sl*10 + q)*4, 4)}, v9 offset:{(sl*10+q)*1024}")
    A("s_waitcnt lgkmcnt(0)")
    for t in range(5):
        A(f"v_add_f32 v{TL+t}, v{TL+t}, v{TL+5+t}")
        A(f"v_add_f32 v{TL+10+t}, v{TL+10+t}, v{TL+15+t}")
    for t in range(5): A(f"v_add_f32 v{TL+t}, v{TL+t}, v{TL+10+t}")
    for swap in ("v_permlane32_swap_b32", "v_permlane16_swap_b32"):
        for t in range(5): A(f"v_mov_b32 v{TL+8+t}, v{TL+t}")
        for t in range(5): A(f"{swap} v{TL+t}, v{TL+8+t}")
        for t in range(5): A(f"v_add_f32 v{TL+t}, v{TL+t}, v{TL+8+t}")
    if OPT['fallback']:
        A(f"v_max3_f32 v{TL+8}, v{TL}, v{TL+1}, v{TL+2}")
        A(f"v_max3_f32 v{TL+8}, v{TL+8}, v{TL+3}, v{TL+4}")
        for t in range(5): pass
        A(f"v_add_f32 v{TL+9}, v{TL}, v{TL+1}")
        A(f"v_add_f32 v{TL+9}, v{TL+9}, v{TL+2}")
        A(f"v_add_f32 v{TL+9}, v{TL+9}, v{TL+3}")
        A(f"v_add_f32 v{TL+9}, v{TL+9}, v{TL+4}")
        A(f"s_mov_b32 s30, {hex(f32(2.0**40))}")
        A(f"v_cmp_ngt_f32 vcc, s30, v{TL+9}")
        A("s_nop 4")
        A("s_cmp_eq_u64 vcc, 0")
        A("s_cbranch_scc1 L_k1_ok")
        A(f"s_cmp_eq_u32 s{S_FB}, 0")
        A("s_cbranch_scc1 L_k1_fallback")
        A.label("L_k1_ok")
    for t in range(5): A(f"v_rcp_f32 v{TL+t}, v{TL+t}")
    for sl in range(3):
        for q in range(40): A(f"v_add_f32 v{TO+q}, v{TO+q}, v{TR + sl*40 + q}")
    for t in range(5):
        for q in range(8): A(f"v_mul_f32 v{TO + t*8 + q}, v{TO + t*8 + q}, v{TL+t}")
    A(f"s_lshl_b32 s30, s{S_B}, 7")
    A(f"s_lshl_b32 s31, s{S_H}, 2")
    A(f"s_add_u32 s30, s30, s31")
    A(f"s_add_u32 s30, s30, s{S_W}")
    A(f"s_mul_i32 s30, s30, 5120")
    for t in range(5):
        q = TR + 4*t
        for i in range(4): A(f"v_cvt_pk_bf16_f32 v{q+i}, v{TO + t*8 + 2*i}, v{TO + t*8 + 2*i + 1}")
    for t in range(5):
        so = "s30"
        A(f"buffer_store_dwordx4 {vr(TR+4*t,4)}, v7, {sr(SRD_O,4)}, s30 offen offset:{(t*1024) & 4095}" if t < 4 else
          f"s_add_u32 s30, s30, 4096\nbuffer_store_dwordx4 {vr(TR+4*t,4)}, v7, {sr(SRD_O,4)}, s30 offen")
    stamp(A, 6)
    A("s_waitcnt vmcnt(0)")
    stamp(A, 7)
    stamp_out(A, 0, 10, S_W)
    A.label("L_k1_end")
    A("s_endpgm")
    if OPT['fallback']: gen_fallback(A)
    return A.text()

def gen_fallback(A):
    M, AL, T = V_NEG, V_NEG + 8, 148
    SF = 160
    A.label("L_k1_fallback")
    A(f"s_mov_b32 s{S_FB}, 1")
    A("s_barrier")
    for i in range(160): A(f"v_accvgpr_write_b32 a{A_O+i}, 0")
    for i in range(10): A(f"v_mov_b32 v{V_L+i}, 0")
    for t in range(5): A(f"v_mov_b32 v{M+t}, 0xff7fffff")
    A(f"s_mov_b32 s{S_CNT}, 16")
    A(f"s_mov_b32 s{S_OFF}, s{S_W8}")
    A.label("L_fb_loop")
    A(f"s_add_u32 s{S_OFF2}, s{S_OFF}, 4096")
    for x in with_m0_gap(kv_dma('K', 0)) + with_m0_gap(kv_dma('V', 0)): A(x)
    A("s_waitcnt vmcnt(0)")
    for p in range(8): A(k_read(p, 0))
    for dt in range(8):
        for hf in range(2): A(v_read(dt, hf, 0))
    A("s_waitcnt lgkmcnt(0)")
    for t in range(5):
        for p in range(8):
            kt, s = p >> 2, p & 3
            d = SF + 8*t + 4*kt
            A(f"v_mfma_f32_16x16x32_bf16 {vr(d,4)}, {vr(V_KF+4*p,4)}, {ar(A_Q+(t*4+s)*4,4)}, {'0' if s == 0 else vr(d,4)}")
    A("s_nop 7")
    for t in range(5):
        d = SF + 8*t
        A(f"v_max3_f32 v{T+t}, v{d}, v{d+1}, v{d+2}")
        A(f"v_max3_f32 v{T+t}, v{T+t}, v{d+3}, v{d+4}")
        A(f"v_max3_f32 v{T+t}, v{T+t}, v{d+5}, v{d+6}")
        A(f"v_max3_f32 v{T+t}, v{T+t}, v{d+7}, v{M+t}")
    A("s_nop 1")
    for swap in ("v_permlane32_swap_b32", "v_permlane16_swap_b32"):
        for t in range(5): A(f"v_mov_b32 v{T+5+t}, v{T+t}")
        for t in range(5): A(f"{swap} v{T+t}, v{T+5+t}")
        for t in range(5): A(f"v_max_f32 v{T+t}, v{T+t}, v{T+5+t}")
    for t in range(5): A(f"v_sub_f32 v{AL+t}, v{M+t}, v{T+t}")
    for t in range(5): A(f"v_exp_f32 v{AL+t}, v{AL+t}")
    for t in range(5): A(f"v_mov_b32 v{M+t}, v{T+t}")
    for t in range(5):
        for i in range(8): A(f"v_sub_f32 v{SF+8*t+i}, v{SF+8*t+i}, v{M+t}")
    for t in range(5):
        for i in range(8): A(f"v_exp_f32 v{SF+8*t+i}, v{SF+8*t+i}")
    A("s_nop 0")
    for t in range(5):
        A(f"v_mul_f32 v{V_L+2*t}, v{V_L+2*t}, v{AL+t}")
        for i in range(8): A(f"v_add_f32 v{V_L+2*t}, v{V_L+2*t}, v{SF+8*t+i}")
    for t in range(5):
        for i in range(32):
            A(f"v_accvgpr_read_b32 v{T+10}, a{A_O+t*32+i}")
            A(f"v_mul_f32 v{T+10}, v{T+10}, v{AL+t}")
            A(f"v_accvgpr_write_b32 a{A_O+t*32+i}, v{T+10}")
    PF = 200
    for t in range(5):
        for i in range(4): A(f"v_cvt_pk_bf16_f32 v{PF+4*t+i}, v{SF+8*t+2*i}, v{SF+8*t+2*i+1}")
    A("s_nop 1")
    for t in range(5):
        for dt in range(8):
            o = A_O + (t*8 + dt)*4
            A(f"v_mfma_f32_16x16x32_bf16 {ar(o,4)}, {vr(V_VF+4*dt,4)}, {vr(PF+4*t,4)}, {ar(o,4)}")
    A("s_nop 7")
    A(f"s_add_u32 s{S_OFF}, s{S_OFF}, 0x8000")
    A(f"s_sub_u32 s{S_CNT}, s{S_CNT}, 1")
    A(f"s_cmp_lg_u32 s{S_CNT}, 0")
    A("s_cbranch_scc1 L_fb_loop")
    XL = 122880 + 5120
    A("s_barrier")
    A(f"v_lshlrev_b32 v8, 2, v1")
    A(f"s_mul_i32 s30, s{S_W}, 1280")
    A(f"s_add_u32 s30, s30, {XL}")
    A(f"v_add_u32 v9, s30, v8")
    for t in range(5): A(f"ds_write_b32 v9, v{M+t} offset:{256*t}")
    A("s_waitcnt lgkmcnt(0)")
    A("s_barrier")
    A(f"v_add_u32 v9, {XL}, v8")
    for w in range(4):
        for t in range(5): A(f"ds_read_b32 v{SF + w*5 + t}, v9 offset:{w*1280 + t*256}")
    A("s_waitcnt lgkmcnt(0)")
    for t in range(5):
        A(f"v_max3_f32 v{T+t}, v{SF+t}, v{SF+5+t}, v{SF+10+t}")
        A(f"v_max_f32 v{T+t}, v{T+t}, v{SF+15+t}")
        A(f"v_sub_f32 v{AL+t}, v{M+t}, v{T+t}")
    for t in range(5): A(f"v_exp_f32 v{AL+t}, v{AL+t}")
    A("s_nop 0")
    for t in range(5):
        A(f"v_mul_f32 v{V_L+2*t}, v{V_L+2*t}, v{AL+t}")
        A(f"v_mov_b32 v{V_L+2*t+1}, 0")
        for i in range(32):
            A(f"v_accvgpr_read_b32 v{T+10}, a{A_O+t*32+i}")
            A(f"v_mul_f32 v{T+10}, v{T+10}, v{AL+t}")
            A(f"v_accvgpr_write_b32 a{A_O+t*32+i}, v{T+10}")
    A("s_branch L_k1_combine")

def gen_k2():
    A = Asm()
    SRD_OF, SRD_WO, SRD_PP = 4, 8, 12
    S_C = 26
    A("s_cmp_ge_u32 s2, 256")
    A("s_cbranch_scc1 L_k2_end")
    stamp(A, 0)
    A(f"s_load_dwordx2 s[{SRD_OF}:{SRD_OF+1}], s[0:1], 56")
    A(f"s_load_dwordx2 s[{SRD_WO}:{SRD_WO+1}], s[0:1], 32")
    A(f"s_load_dwordx2 s[{SRD_PP}:{SRD_PP+1}], s[0:1], 56")
    ACC, FA, FB, VL, VAW, VWD = 16, (56, 64), (72, 92), 10, 11, 13
    A(f"""
    v_lshrrev_b32 v2, 6, v0
    v_and_b32 v1, 63, v0
    s_and_b32 s{S_G}, s2, 7
    s_lshr_b32 s30, s2, 3
    v_readfirstlane_b32 s{S_W}, v2
    s_lshr_b32 s{S_B}, s30, 2
    s_and_b32 s{S_C}, s30, 3
    v_and_b32 v3, 15, v1
    v_lshrrev_b32 v4, 4, v1
    v_bfe_u32 v5, v1, 2, 2
    v_and_b32 v6, 3, v1
    s_lshl_b32 s{S_W1K}, s{S_W}, 10
    s_add_u32 s{S_ROT}, s{S_B}, s{S_C}
    s_and_b32 s{S_ROT}, s{S_ROT}, 3
    v_lshlrev_b32 v{VL}, 4, v1
    s_lshl_b32 s30, s{S_W}, 2
    v_add_u32 v8, s30, v4
    v_lshlrev_b32 v9, 2, v4
    v_xor_b32 v9, v3, v9
    v_lshlrev_b32 v9, 4, v9
    v_lshl_add_u32 v{VWD}, v8, 10, v9
    s_waitcnt lgkmcnt(0)
    s_add_u32 s{SRD_OF}, s{SRD_OF}, {WS_O}
    s_addc_u32 s{SRD_OF+1}, s{SRD_OF+1}, 0
    s_mov_b32 s{SRD_OF+2}, {5 << 20}
    s_mov_b32 s{SRD_OF+3}, 0x00020000
    s_mov_b32 s{SRD_WO+2}, {4096*1024}
    s_mov_b32 s{SRD_WO+3}, 0x00020000
    s_lshl_b32 s30, s{S_B}, 7
    s_lshl_b32 s31, s{S_G}, 4
    s_add_u32 s30, s30, s31
    s_mul_i32 s31, s30, 5120
    s_lshl_b32 s44, s{S_G}, 19
    s_lshl_b32 s30, s{S_C}, 8
    s_add_u32 s44, s44, s30
    """)
    XB, WB = 0, 81920
    xarea = lambda a, t: XB + (a * 5 + t) * 4096
    wblk = lambda u, e: WB + (u % 3) * 16384 + e * 8192
    def xdma(a):
        l = [f"s_add_u32 s{S_T0}, s{S_ROT}, {a}", f"s_and_b32 s{S_T0}, s{S_T0}, 3", f"s_lshl_b32 s{S_T0}, s{S_T0}, 2",
             f"s_add_u32 s{S_T0}, s{S_T0}, s{S_W}", f"s_mul_i32 s{S_T0}, s{S_T0}, 5120", f"s_add_u32 s{S_XOFF}, s{S_T0}, s31"]
        for t in range(5):
            l += [f"s_add_u32 m0, s{S_W1K}, {xarea(a, t)}", f"s_add_u32 s{S_T0}, s{S_XOFF}, {t*1024}",
                  f"buffer_load_dwordx4 v{VL}, {sr(SRD_OF,4)}, s{S_T0} offen lds"]
        return l
    def wdma(u):
        l = [f"s_lshl_b32 s{S_T0}, s{S_ROT}, 1", f"s_add_u32 s{S_T0}, s{S_T0}, {u}", f"s_and_b32 s{S_T0}, s{S_T0}, 7", f"s_lshl_b32 s{S_T0}, s{S_T0}, 16",
             f"s_add_u32 s{S_WK}, s{S_T0}, s44"]
        for e in range(2):
            for hh in range(2):
                l += [f"s_add_u32 m0, s{S_W1K}, {wblk(u, e) + 4096*hh}", f"s_add_u32 s{S_T0}, s{S_WK}, {(32*e + 16*hh)*1024}",
                      f"buffer_load_dwordx4 v{VWD}, {sr(SRD_WO,4)}, s{S_T0} offen lds"]
        return l
    def xread(ks, t, dst):
        p = xarea(ks >> 2, t) + (ks & 3) * 1024
        return f"ds_read_b128 {vr(dst,4)}, v{VL + (2 if p >= 65536 else 0)} offset:{p & 0xffff}"
    def wread(ks, jt, hf, dst):
        p = wblk(ks >> 1, ks & 1)
        return f"ds_read_b64_tr_b16 {vr(dst,2)}, v{VAW} offset:{(p - 65536) + 4096*hf + 8*jt}"
    up = xdma(0) + wdma(0) + wdma(1) + xdma(1) + wdma(2)
    def idle(A):
        A(f"""
        v_add_u32 v{VL+2}, 0x10000, v{VL}
        v_lshl_add_u32 v8, v4, 2, v5
        s_lshl_b32 s30, s{S_W}, 2
        v_add_u32 v9, s30, v6
        v_lshlrev_b32 v2, 2, v5
        v_xor_b32 v9, v9, v2
        v_lshlrev_b32 v9, 4, v9
        v_lshl_add_u32 v9, v8, 8, v9
        v_add_u32 v{VAW}, 0x10000, v9
        s_add_u32 s{SRD_PP}, s{SRD_PP}, {WS_P}
        s_addc_u32 s{SRD_PP+1}, s{SRD_PP+1}, 0
        s_mov_b32 s{SRD_PP+2}, {10 << 20}
        s_mov_b32 s{SRD_PP+3}, 0x00020000
        """)
    issue = {1: wdma(3) + xdma(2), 2: wdma(4), 3: wdma(5) + xdma(3), 4: wdma(6), 5: wdma(7)}
    vm = {0: 13, 1: 9, 2: 9, 3: 9, 4: 9, 5: 9, 6: 4, 7: 0}
    gemm_core(A, dict(acc=ACC, FA=FA, FB=FB, upfront=up, idle=idle, vm=vm, issue=issue, xread=xread, wread=wread))
    stamp(A, 2)
    A(f"""
    s_lshl_b32 s30, s{S_B}, 2
    s_add_u32 s30, s30, s{S_C}
    s_lshl_b32 s30, s30, 2
    s_add_u32 s30, s30, s{S_W}
    s_mul_i32 s30, s30, 81920
    s_lshl_b32 s31, s{S_G}, 10
    s_add_u32 s30, s30, s31
    s_nop 3
    """)
    for q in (0, 5, 1, 6, 2, 7, 3, 8, 4, 9):
        A(f"s_add_u32 s31, s30, {q*8192}")
        A(f"buffer_store_dwordx4 {vr(ACC+4*q,4)}, v{VL}, {sr(SRD_PP,4)}, s31 offen")
    A("s_waitcnt vmcnt(0)")
    stamp(A, 3)
    stamp_out(A, 1, 4, S_W)
    A.label("L_k2_end")
    A("s_endpgm")
    return A.text()

def gen_k3():
    A = Asm()
    A("s_cmp_ge_u32 s2, 160")
    A("s_cbranch_scc1 L_k3_end")
    stamp(A, 0)
    A("s_load_dwordx2 s[4:5], s[0:1], 56")
    A("s_load_dwordx2 s[8:9], s[0:1], 40")
    A("""
    v_lshrrev_b32 v2, 6, v0
    v_and_b32 v1, 63, v0
    v_lshlrev_b32 v3, 4, v1
    s_lshl_b32 s20, s2, 2
    v_readfirstlane_b32 s21, v2
    v_and_b32 v4, 15, v1
    v_lshrrev_b32 v5, 4, v1
    s_add_u32 s20, s20, s21          ; unit U = 0..639 : (bcw = U / 5, t = U % 5)
    """)
    A(f"s_mul_hi_u32 s22, s20, {(1 << 32)//5 + 1}")
    A("s_mul_i32 s23, s22, 5")
    A("s_sub_u32 s23, s20, s23       ; t")
    A("s_mul_i32 s24, s22, 81920")
    A("s_lshl_b32 s25, s23, 13")
    A("s_add_u32 s24, s24, s25       ; + t*8192")
    A("s_waitcnt lgkmcnt(0)")
    A(f"s_add_u32 s4, s4, {WS_P}")
    A("s_addc_u32 s5, s5, 0")
    A(f"s_mov_b32 s6, {10 << 20}")
    A("s_mov_b32 s7, 0x00020000")
    A(f"s_mov_b32 s10, {640*1024}")
    A("s_mov_b32 s11, 0x00020000")
    for jt in range(2):
        for g in range(8):
            if g % 4 == 0: A(f"s_add_u32 s25, s24, {jt*5*8192 + g*1024}")
            A(f"buffer_load_dwordx4 {vr(8 + (jt*8+g)*4, 4)}, v3, s[4:7], s25 offen offset:{(g%4)*1024}")
    A("""
    s_lshr_b32 s26, s22, 4           ; b
    s_and_b32 s27, s22, 15           ; c*4 + w
    s_mul_i32 s26, s26, 80
    s_lshl_b32 s28, s23, 4
    s_add_u32 s26, s26, s28
    v_add_u32 v4, s26, v4
    v_lshlrev_b32 v4, 10, v4
    s_lshl_b32 s27, s27, 6
    v_lshl_add_u32 v4, v5, 4, v4
    v_add_u32 v4, s27, v4
    """)
    for jt in range(2):
        A(f"s_waitcnt vmcnt({8 if jt == 0 else 0})")
        b = 8 + jt*32
        for g in range(1, 8):
            for r in range(4): A(f"v_add_f32 v{b+r}, v{b+r}, v{b+4*g+r}")
    A("v_cvt_pk_bf16_f32 v72, v8, v9")
    A("v_cvt_pk_bf16_f32 v73, v10, v11")
    A("v_cvt_pk_bf16_f32 v74, v40, v41")
    A("v_cvt_pk_bf16_f32 v75, v42, v43")
    A("buffer_store_dwordx4 v[72:75], v4, s[8:11], 0 offen")
    A("s_waitcnt vmcnt(0)")
    stamp(A, 1)
    stamp_out(A, 2, 2, 21)
    A.label("L_k3_end")
    A("s_endpgm")
    return A.text()

def build():
    launches = [("attn_kernel", 256, 256, 163840), ("oproj_kernel", 256, 256, 131072), ("oreduce_kernel", 160, 256, 0)]
    kernels = [("attn_kernel", gen_k1(), 512, 256, 102), ("oproj_kernel", gen_k2(), 128, 128, 102), ("oreduce_kernel", gen_k3(), 80, 80, 102)]
    for i in range(OPT.get('empties', 0)):
        launches.append(("empty_kernel", OPT.get('egrid', 1), 64, 0))
    if OPT.get('empties', 0): kernels.append(("empty_kernel", "    s_endpgm\n", 8, 8, 16))
    return assemble_file(launches, kernels)

if __name__ == "__main__":
    out = sys.argv[1]
    for kv in sys.argv[2:]:
        k_, v_ = kv.split("=")
        OPT[k_] = eval(v_)
    open(out, "w").write(build())
```

```python
import sys, struct, math
from lib import *

def f32(x): return struct.unpack("<I", struct.pack("<f", x))[0]
C_SCALE = math.log2(math.e) / math.sqrt(128.0)

WS_O = 0
WS_P = 8 << 20
OPT = dict(standin=True, fallback=True, dbgq=False, stamps=False, nodma=False, nods=False, novalu=False, nowait=False)
WS_ST = 64 << 20
def stamp(A, i, cyc=False):
    if not OPT['stamps']: return
    A(f"s_memrealtime s[{64+2*i}:{65+2*i}]")
    A("s_waitcnt lgkmcnt(0)")
def stamp_cyc(A, i):
    if not OPT['stamps']: return
    A(f"s_memtime s[{64+2*i}:{65+2*i}]")
    A("s_waitcnt lgkmcnt(0)")
def stamp_out(A, kidx, n, wave_sgpr):
    if not OPT['stamps']: return
    A("s_load_dwordx2 s[92:93], s[0:1], 56")
    A("s_waitcnt lgkmcnt(0)")
    A(f"s_add_u32 s92, s92, {WS_ST + kidx * (1 << 20)}")
    A("s_addc_u32 s93, s93, 0")
    A("s_mov_b32 s94, 0x100000")
    A("s_mov_b32 s95, 0x00020000")
    A("s_lshl_b32 s96, s2, 2")
    A(f"s_add_u32 s96, s96, s{wave_sgpr}")
    A("s_lshl_b32 s96, s96, 6")
    A("v_mov_b32 v2, 0")
    for i in range(n):
        A(f"v_mov_b32 v3, s{64+2*i}")
        A(f"buffer_store_dword v3, v2, s[92:95], s96 offen offset:{4*i}")
    A("s_waitcnt vmcnt(0)")

def gemm_core(A, cfg):
    acc, FA, FB = cfg['acc'], cfg['FA'], cfg['FB']
    def reads(ks):
        buf = ks & 1
        l = []
        w = [cfg['wread'](ks, jt, hf, FA[buf] + 4 * jt + 2 * hf) for jt in range(2) for hf in range(2)]
        x = [cfg['xread'](ks, t, FB[buf] + 4 * t) for t in range(5)]
        l = [w[0], w[1], x[0], w[2], w[3], x[1], x[2], x[3], x[4]]
        return l
    for g in cfg['upfront']: A(g)
    cfg['idle'](A)
    A(f"s_waitcnt vmcnt({cfg['vm'][0]})")
    A("s_barrier")
    stamp(A, 1)
    for r in reads(0): A(r)
    for ks in range(16):
        buf = ks & 1
        extra = []
        A("s_waitcnt lgkmcnt(0)")
        if ks & 1:
            bar = (ks >> 1) + 1
            if bar <= 7: A(f"s_waitcnt vmcnt({cfg['vm'][bar]})")
            A("s_barrier")
            extra = list(cfg['issue'].get(bar, []))
        fill = reads(ks + 1) if ks < 15 else []
        m = 0
        for t in range(5):
            for jt in range(2):
                d = acc + (jt * 5 + t) * 4
                c = "0" if ks == 0 else vr(d, 4)
                A(f"v_mfma_f32_16x16x32_bf16 {vr(d,4)}, {vr(FA[buf]+4*jt,4)}, {vr(FB[buf]+4*t,4)}, {c}")
                if fill: A(fill.pop(0))
                k = (len(extra) + (9 - m)) // (10 - m) if extra else 0
                for _ in range(min(k, len(extra))): A(extra.pop(0))
                m += 1
        for e in extra: A(e)

V_KA, V_VA, V_KD, V_VD, V_L, V_NEG, V_S, V_P, V_KF, V_VF = 10, 14, 22, 26, 28, 40, 60, 76, 84, 116
A_O, A_Q = 0, 160
S_G, S_B, S_R, S_W, S_H, S_RW = 24, 25, 26, 27, 28, 29
S_T, S_R15, S_W8, S_END, S_OFF, S_OFF2, S_CNT, S_W1K, S_XOFF, S_WK, S_ROT, S_FB = 32, 33, 34, 35, 36, 37, 38, 39, 40, 41, 42, 43
S_T0, S_T1, S_T2 = 60, 61, 62
SRD_X, SRD_K, SRD_V, SRD_W, SRD_O = 4, 8, 12, 16, 20
K0, K1s, V0, V1 = 0, 8192, 16384, 24576
LE = 131072

def off_calc():
    return [f"s_add_u32 s{S_T0}, s{S_T}, s{S_R15}",
            f"s_and_b32 s{S_T0}, s{S_T0}, 0x18000",
            f"s_and_b32 s{S_T1}, s{S_T}, 0x60000",
            f"s_or_b32 s{S_T0}, s{S_T0}, s{S_T1}",
            f"s_or_b32 s{S_OFF}, s{S_T0}, s{S_W8}",
            f"s_cmp_ge_u32 s{S_T}, s{S_END}",
            f"s_cselect_b32 s{S_OFF}, 0x80000, s{S_OFF}",
            f"s_add_u32 s{S_OFF2}, s{S_OFF}, 4096",
            f"s_add_u32 s{S_T}, s{S_T}, 0x8000"]

def kv_dma(which, slot):
    srd = SRD_K if which == 'K' else SRD_V
    base = (K0, K1s)[slot] if which == 'K' else (V0, V1)[slot]
    l = []
    for half in range(2):
        l.append(f"s_add_u32 m0, s{S_RW}, {base + 4096 * half}")
        so = S_OFF if half == 0 else S_OFF2
        for i in range(4):
            vo = V_KD + i if which == 'K' else V_VD + (i & 1)
            l.append(f"buffer_load_dwordx4 v{vo}, {sr(srd,4)}, s{so} offen offset:{1024*i} lds")
    return l
def with_m0_gap(l):
    out = []
    for x in l:
        out.append(x)
        if x.startswith("s_add_u32 m0"): out.append("s_nop 0")
    return out

def k_read(p, slot):
    kt, s = p >> 2, p & 3
    return f"ds_read_b128 {vr(V_KF + 4*p, 4)}, v{V_KA + s} offset:{(K0, K1s)[slot] + 4096*kt}"
def v_read(dt, hf, slot):
    return f"ds_read_b64_tr_b16 {vr(V_VF + 4*dt + 2*hf, 2)}, v{V_VA + dt} offset:{(V0, V1)[slot] + 4096*hf}"
def qk_mfma(p, tq, sbuf, first_c=None):
    kt, s = p >> 2, p & 3
    d = V_S + 8 * sbuf + 4 * kt
    c = (vr(V_NEG + 4 * tq, 4) if first_c is None else first_c) if s == 0 else vr(d, 4)
    return f"v_mfma_f32_16x16x32_bf16 {vr(d,4)}, {vr(V_KF + 4*p, 4)}, {ar(A_Q + (tq*4 + s)*4, 4)}, {c}"
def pv_mfma(dt, tp, pbuf):
    o = A_O + (tp * 8 + dt) * 4
    return f"v_mfma_f32_16x16x32_bf16 {ar(o,4)}, {vr(V_VF + 4*dt, 4)}, {vr(V_P + 4*pbuf, 4)}, {ar(o,4)}"
def sm_valu(ts, buf):
    S = V_S + 8 * buf; P = V_P + 4 * buf; L = V_L + 2 * ts
    g = [[] for _ in range(16)]
    for q in range(4):
        e0, e1 = S + 2 * q, S + 2 * q + 1
        g[4*q + 0].append(f"v_exp_f32 v{e0}, v{e0}")
        g[4*q + 1].append(f"v_exp_f32 v{e1}, v{e1}")
        g[4*q + 2].append(f"v_add_f32 v{L}, v{L}, v{e0}")
        g[4*q + 2].append(f"v_add_f32 v{L+1}, v{L+1}, v{e1}")
        g[4*q + 3].append(f"v_cvt_pk_bf16_f32 v{P + q}, v{e0}, v{e1}")
    return g

def main_stage(A, k):
    tq, ts, tp = k % 5, (k + 4) % 5, (k + 3) % 5
    nv = [[] for _ in range(16)]
    par = 0 if k < 5 else 1
    km = k % 5
    if km == 0:
        slot = par
        oc = off_calc()
        for i, x in enumerate(oc): nv[min(i // 2, 4)].append(x)
        d = kv_dma('K', slot)
        for i, x in enumerate(d): nv[5 + i].append(x)
    if km == 1:
        slot = par
        nv[7].append("s_waitcnt vmcnt(24)")
        for dt in range(8): nv[8 + dt].append(v_read(dt, 0, slot))
    if km == 2:
        slot = par
        for dt in range(8): nv[dt].append(v_read(dt, 1, slot))
        for dt in range(8): nv[7 + dt].append(f"s_waitcnt lgkmcnt({7 - dt})")
    if km == 3:
        slot = par
        d = kv_dma('V', slot)
        for i, x in enumerate(d): nv[i].append(x)
        nv[15].append("s_waitcnt vmcnt(24)")
    if km == 4:
        slot = 1 - par
        for p in range(8): nv[p].append(k_read(p, slot))
        nv[15].append("s_waitcnt lgkmcnt(0)")
    va = sm_valu(ts, (k + 1) & 1)
    for p in range(16):
        A(qk_mfma(p, tq, k & 1) if p < 8 else pv_mfma(p - 8, tp, k & 1))
        for x in nv[p]:
            if OPT['nodma'] and x.startswith("buffer_load"): continue
            if OPT['nods'] and x.startswith("ds_read"): continue
            if OPT['nowait'] and x.startswith("s_waitcnt"): continue
            A(x)
        if OPT['novalu']: continue
        for x in va[p]: A(x)

def gen_k1():
    A = Asm()
    A("s_cmp_ge_u32 s2, 256")
    A("s_cbranch_scc1 L_k1_end")
    stamp(A, 0)
    A(f"s_load_dwordx2 s[{SRD_X}:{SRD_X+1}], s[0:1], 0")
    A(f"s_load_dwordx2 s[{SRD_K}:{SRD_K+1}], s[0:1], 8")
    A(f"s_load_dwordx2 s[{SRD_V}:{SRD_V+1}], s[0:1], 16")
    A(f"s_load_dwordx2 s[{SRD_W}:{SRD_W+1}], s[0:1], 24")
    A(f"s_load_dwordx2 s[{SRD_O}:{SRD_O+1}], s[0:1], 56")
    A(f"""
    v_lshrrev_b32 v2, 6, v0
    v_and_b32 v1, 63, v0
    s_and_b32 s{S_G}, s2, 7
    s_lshr_b32 s30, s2, 3
    v_readfirstlane_b32 s{S_W}, v2
    s_lshr_b32 s{S_B}, s30, 2
    s_and_b32 s{S_R}, s30, 3
    s_lshl_b32 s{S_H}, s{S_G}, 2
    s_add_u32 s{S_H}, s{S_H}, s{S_R}
    v_and_b32 v3, 15, v1
    v_lshrrev_b32 v4, 4, v1
    v_bfe_u32 v5, v1, 2, 2
    v_and_b32 v6, 3, v1
    s_lshl_b32 s{S_RW}, s{S_W}, 15
    s_lshl_b32 s{S_W1K}, s{S_W}, 10
    s_lshl_b32 s{S_W8}, s{S_W}, 13
    s_lshl_b32 s{S_R15}, s{S_R}, 15
    s_and_b32 s30, s{S_B}, 3
    s_lshl_b32 s{S_T}, s30, 15
    s_add_u32 s{S_END}, s{S_T}, 0x80000
    s_add_u32 s{S_ROT}, s{S_B}, s{S_R}
    s_and_b32 s{S_ROT}, s{S_ROT}, 3
    s_mov_b32 s{S_FB}, 0
    """)
    ACC, FA, FB, VX, VAW, VXD, VWD = 148, (188, 196), (204, 224), 244, 252, 254, 255
    A(f"""
    v_xor_b32 v7, v4, v3
    v_lshlrev_b32 v7, 4, v7
    v_lshl_add_u32 v7, v3, 8, v7            ; n*256 + (gq^n)*16
    """)
    for s in range(4):
        A(f"v_xor_b32 v{VX+s}, {64*s}, v7")
        A(f"v_add_u32 v{VX+4+s}, 0x10000, v{VX+s}")
        A(f"v_add_u32 v{V_KA+s}, s{S_RW}, v{VX+s}")
    A(f"""
    s_lshl_b32 s30, s{S_W}, 2
    v_add_u32 v8, s30, v4                   ; 4w+gq
    v_xor_b32 v9, v3, v8
    v_lshlrev_b32 v9, 4, v9
    v_lshl_add_u32 v{VXD}, v8, 10, v9
    v_lshlrev_b32 v9, 2, v4
    v_xor_b32 v9, v3, v9
    v_lshlrev_b32 v9, 4, v9
    v_lshl_add_u32 v{VWD}, v8, 13, v9
    s_waitcnt lgkmcnt(0)
    s_mov_b32 s{SRD_X+2}, {640*1024}
    s_mov_b32 s{SRD_X+3}, 0x00020000
    s_mov_b32 s{SRD_W+2}, {512*8192}
    s_mov_b32 s{SRD_W+3}, 0x00020000
    s_mul_i32 s31, s{S_B}, 81920
    """)
    pool1 = [w*32768 + V0 + h*4096 for w in range(4) for h in range(2)] + [K1s, K1s + 4096]
    pool2 = [w*32768 + K1s + h*4096 for w in (1, 2, 3) for h in range(2)] + [w*32768 + V1 + h*4096 for w in (0, 1) for h in range(2)]
    xarea = lambda a, t: (pool1 if a < 2 else pool2)[(a & 1) * 5 + t]
    wblk = lambda u, e: [[2*32768 + V1, 3*32768 + V1], [LE, LE + 8192], [LE + 16384, LE + 24576]][u % 3][e]
    def xdma(a):
        l = [f"s_add_u32 s{S_T0}, s{S_ROT}, {a}", f"s_and_b32 s{S_T0}, s{S_T0}, 3", f"s_lshl_b32 s{S_T0}, s{S_T0}, 8", f"s_add_u32 s{S_XOFF}, s{S_T0}, s31"]
        for t in range(5):
            l += [f"s_add_u32 m0, s{S_W1K}, {xarea(a, t)}", f"s_add_u32 s{S_T0}, s{S_XOFF}, {t*16384}",
                  f"buffer_load_dwordx4 v{VXD}, {sr(SRD_X,4)}, s{S_T0} offen lds"]
        return l
    def wdma(u):
        l = [f"s_lshl_b32 s{S_T0}, s{S_ROT}, 1", f"s_add_u32 s{S_T0}, s{S_T0}, {u}", f"s_and_b32 s{S_T0}, s{S_T0}, 7", f"s_lshl_b32 s{S_T0}, s{S_T0}, 19",
             f"s_lshl_b32 s{S_T1}, s{S_H}, 8", f"s_add_u32 s{S_WK}, s{S_T0}, s{S_T1}"]
        for e in range(2):
            for hh in range(2):
                l += [f"s_add_u32 m0, s{S_W1K}, {wblk(u, e) + 4096*hh}", f"s_add_u32 s{S_T0}, s{S_WK}, {(32*e + 16*hh)*8192}",
                      f"buffer_load_dwordx4 v{VWD}, {sr(SRD_W,4)}, s{S_T0} offen lds"]
        return l
    def xread(ks, t, dst):
        p = xarea(ks >> 2, t)
        return f"ds_read_b128 {vr(dst,4)}, v{VX + 4*(p >> 16) + (ks & 3)} offset:{p & 0xffff}"
    def wread(ks, jt, hf, dst):
        p = wblk(ks >> 1, ks & 1)
        return f"ds_read_b64_tr_b16 {vr(dst,2)}, v{VAW + (p >> 16) - 1} offset:{(p & 0xffff) + 1024*hf + 8*jt}"
    up = xdma(0) + wdma(0) + wdma(1) + xdma(1) + wdma(2)
    def idle(A):
        A(f"""
        s_mov_b32 s{SRD_K+2}, 0x80000
        s_mov_b32 s{SRD_K+3}, 0x00020000
        s_mov_b32 s{SRD_V+2}, 0x80000
        s_mov_b32 s{SRD_V+3}, 0x00020000
        s_lshl_b32 s30, s{S_B}, 3
        s_add_u32 s30, s30, s{S_G}
        s_lshl_b32 s30, s30, 19
        s_add_u32 s{SRD_K}, s{SRD_K}, s30
        s_addc_u32 s{SRD_K+1}, s{SRD_K+1}, 0
        s_add_u32 s{SRD_V}, s{SRD_V}, s30
        s_addc_u32 s{SRD_V+1}, s{SRD_V+1}, 0
        s_add_u32 s{SRD_O}, s{SRD_O}, {WS_O}
        s_addc_u32 s{SRD_O+1}, s{SRD_O+1}, 0
        s_mov_b32 s{SRD_O+2}, {5 << 20}
        s_mov_b32 s{SRD_O+3}, 0x00020000
        v_lshl_add_u32 v8, v4, 3, v5
        s_lshl_b32 s30, s{S_W}, 2
        v_add_u32 v9, s30, v6
        v_lshlrev_b32 v2, 2, v5
        v_xor_b32 v9, v9, v2
        v_lshlrev_b32 v9, 4, v9
        v_lshl_add_u32 v9, v8, 8, v9
        v_add_u32 v{VAW}, 0x10000, v9
        v_add_u32 v{VAW+1}, 0x20000, v9
        v_lshl_add_u32 v8, v4, 2, v5
        v_and_b32 v9, 7, v8
        v_lshlrev_b32 v9, 5, v9
        v_lshl_add_u32 v9, v8, 8, v9
        v_lshl_add_u32 v9, v6, 3, v9
        """)
        for dt in range(8):
            A(f"v_xor_b32 v{V_VA+dt}, {32*dt}, v9")
            A(f"v_add_u32 v{V_VA+dt}, s{S_RW}, v{V_VA+dt}")
        A(f"""
        v_xor_b32 v9, v3, v4
        v_lshlrev_b32 v9, 4, v9
        v_lshl_add_u32 v9, v4, 8, v9
        """)
        for i in range(4): A(f"v_xor_b32 v{V_KD+i}, {64*i}, v9")
        A(f"""
        v_lshlrev_b32 v9, 1, v4
        v_xor_b32 v9, v3, v9
        v_lshlrev_b32 v9, 4, v9
        v_lshl_add_u32 v{V_VD}, v4, 8, v9
        v_xor_b32 v{V_VD+1}, 128, v{V_VD}
        """)
        for i in range(160): A(f"v_accvgpr_write_b32 a{A_O+i}, 0")
        for i in range(10): A(f"v_mov_b32 v{V_L+i}, 0")
        for i in range(32): A(f"v_mov_b32 v{V_VF+i}, 0")
        for i in range(4): A(f"v_mov_b32 v{V_P+i}, 0")
        for i in range(8): A(f"v_mov_b32 v{V_S+8+i}, 0xff7fffff")
    issue = {1: wdma(3) + xdma(2), 2: wdma(4), 3: wdma(5) + xdma(3), 4: wdma(6),
             5: wdma(7) + off_calc() + with_m0_gap(kv_dma('K', 0)),
             6: with_m0_gap(kv_dma('V', 0)),
             8: off_calc() + with_m0_gap(kv_dma('K', 1)) + with_m0_gap(kv_dma('V', 1))}
    vm = {0: 13, 1: 9, 2: 9, 3: 9, 4: 9, 5: 9, 6: 12, 7: 16}
    gemm_core(A, dict(acc=ACC, FA=FA, FB=FB, upfront=up, idle=idle, vm=vm, issue=issue, xread=xread, wread=wread))
    stamp(A, 2)
    A(f"s_mov_b32 s30, {hex(f32(C_SCALE))}")
    A(f"v_lshl_add_u32 v8, v1, 4, s{S_W1K}")
    A(f"v_add_u32 v8, {LE}, v8")
    A("s_nop 3")
    for t in range(5):
        for jt in range(2):
            d = ACC + (jt*5 + t)*4
            for r in range(4): A(f"v_mul_f32 v{d+r}, s30, v{d+r}")
        q = FB[0] + 4*t
        for jt in range(2):
            d = ACC + (jt*5 + t)*4
            A(f"v_cvt_pk_bf16_f32 v{q+2*jt}, v{d}, v{d+1}")
            A(f"v_cvt_pk_bf16_f32 v{q+2*jt+1}, v{d+2}, v{d+3}")
        A(f"ds_write_b128 v8, {vr(q,4)} offset:{t*4096}")
    A("s_waitcnt vmcnt(24) lgkmcnt(0)")
    A("s_barrier")
    A(f"v_lshlrev_b32 v8, 4, v1")
    A(f"v_add_u32 v8, {LE}, v8")
    ST = 188
    if OPT['standin']:
        for s in range(4): A(f"ds_read_b128 {vr(ST+4*s,4)}, v{VX+s} offset:{K0}")
    for t in range(5):
        for s in range(4): A(f"ds_read_b128 {ar(A_Q+(t*4+s)*4,4)}, v8 offset:{(t*4+s)*1024}")
    for p in range(8): A(k_read(p, 0))
    if OPT['standin']:
        A("s_waitcnt lgkmcnt(8)")
        for t in range(5):
            for s in range(4):
                d = V_NEG + 4*t
                A(f"v_mfma_f32_16x16x32_bf16 {vr(d,4)}, {vr(ST+4*s,4)}, {ar(A_Q+(t*4+s)*4,4)}, {'0' if s == 0 else vr(d,4)}")
        T = 204
        A("s_nop 7")
        for t in range(5):
            d = V_NEG + 4*t
            A(f"v_max3_f32 v{T+t}, v{d}, v{d+1}, v{d+2}")
        for t in range(5): A(f"v_max_f32 v{T+t}, v{T+t}, v{V_NEG+4*t+3}")
        for swap in ("v_permlane32_swap_b32", "v_permlane16_swap_b32"):
            for t in range(5): A(f"v_mov_b32 v{T+8+t}, v{T+t}")
            for t in range(5): A(f"{swap} v{T+t}, v{T+8+t}")
            for t in range(5): A(f"v_max_f32 v{T+t}, v{T+t}, v{T+8+t}")
        for t in range(5):
            for r in range(4): A(f"v_xor_b32 v{V_NEG+4*t+r}, 0x80000000, v{T+t}")
    else:
        for i in range(20): A(f"v_mov_b32 v{V_NEG+i}, 0")
    A("s_waitcnt lgkmcnt(0)")
    A("s_barrier")
    A(f"s_mov_b32 s{S_CNT}, 8")
    stamp(A, 3)
    stamp_cyc(A, 8)
    A.raw(".p2align 6")
    A.label("L_k1_loop")
    for k in range(10): main_stage(A, k)
    A(f"s_sub_u32 s{S_CNT}, s{S_CNT}, 1")
    A(f"s_cmp_lg_u32 s{S_CNT}, 0")
    A("s_cbranch_scc1 L_k1_loop")
    stamp(A, 4)
    stamp_cyc(A, 9)
    va = sm_valu(4, 1)
    for p in range(16):
        if p >= 8: A(pv_mfma(p - 8, 3, 0))
        for x in va[p]: A(x)
        if p < 8 and p % 4 in (1,): A("s_nop 0")
    A("s_nop 1")
    for dt in range(8): A(pv_mfma(dt, 4, 1))
    A.label("L_k1_combine")
    XL = 122880
    A("s_waitcnt vmcnt(0)")
    A("s_barrier")
    A(f"v_lshlrev_b32 v8, 2, v1")
    A(f"s_mul_i32 s30, s{S_W}, 1280")
    A(f"s_add_u32 s30, s30, {XL}")
    A(f"v_add_u32 v9, s30, v8")
    for t in range(5): A(f"v_add_f32 v{V_L+2*t}, v{V_L+2*t}, v{V_L+2*t+1}")
    for t in range(5): A(f"ds_write_b32 v9, v{V_L+2*t} offset:{256*t}")
    TO = 60
    A(f"v_lshlrev_b32 v7, 4, v1")
    for d in range(4):
        A(f"s_cmp_eq_u32 s{S_W}, {d}")
        A(f"s_cbranch_scc1 L_own{d}")
        A(f"s_sub_u32 s30, s{S_W}, {d+1}")
        A(f"s_and_b32 s30, s30, 3")
        A(f"s_mul_i32 s30, s30, 10240")
        A(f"s_add_u32 s30, s30, {d*30720}")
        A(f"v_add_u32 v9, s30, v7")
        for t in range(5):
            for j in range(2):
                A(f"ds_write_b128 v9, {ar(A_O + (t*8 + 2*d + j)*4, 4)} offset:{(t*2+j)*1024}")
        A(f"s_branch L_nxt{d}")
        A.label(f"L_own{d}")
        for t in range(5):
            for j in range(2):
                for r in range(4): A(f"v_accvgpr_read_b32 v{TO + (t*2+j)*4 + r}, a{A_O + (t*8 + 2*d + j)*4 + r}")
        A.label(f"L_nxt{d}")
    A("s_waitcnt lgkmcnt(0)")
    A("s_barrier")
    stamp(A, 5)
    TL = 100
    A(f"v_add_u32 v9, {XL}, v8")
    for w in range(4):
        for t in range(5): A(f"ds_read_b32 v{TL + w*5 + t}, v9 offset:{w*1280 + t*256}")
    TR = 120
    A(f"s_mul_i32 s30, s{S_W}, 30720")
    A(f"v_add_u32 v9, s30, v7")
    for sl in range(3):
        for q in range(10): A(f"ds_read_b128 {vr(TR + (sl*10 + q)*4, 4)}, v9 offset:{(sl*10+q)*1024}")
    A("s_waitcnt lgkmcnt(0)")
    for t in range(5):
        A(f"v_add_f32 v{TL+t}, v{TL+t}, v{TL+5+t}")
        A(f"v_add_f32 v{TL+10+t}, v{TL+10+t}, v{TL+15+t}")
    for t in range(5): A(f"v_add_f32 v{TL+t}, v{TL+t}, v{TL+10+t}")
    for swap in ("v_permlane32_swap_b32", "v_permlane16_swap_b32"):
        for t in range(5): A(f"v_mov_b32 v{TL+8+t}, v{TL+t}")
        for t in range(5): A(f"{swap} v{TL+t}, v{TL+8+t}")
        for t in range(5): A(f"v_add_f32 v{TL+t}, v{TL+t}, v{TL+8+t}")
    if OPT['fallback']:
        A(f"v_max3_f32 v{TL+8}, v{TL}, v{TL+1}, v{TL+2}")
        A(f"v_max3_f32 v{TL+8}, v{TL+8}, v{TL+3}, v{TL+4}")
        for t in range(5): pass
        A(f"v_add_f32 v{TL+9}, v{TL}, v{TL+1}")
        A(f"v_add_f32 v{TL+9}, v{TL+9}, v{TL+2}")
        A(f"v_add_f32 v{TL+9}, v{TL+9}, v{TL+3}")
        A(f"v_add_f32 v{TL+9}, v{TL+9}, v{TL+4}")
        A(f"s_mov_b32 s30, {hex(f32(2.0**40))}")
        A(f"v_cmp_ngt_f32 vcc, s30, v{TL+9}")
        A("s_nop 4")
        A("s_cmp_eq_u64 vcc, 0")
        A("s_cbranch_scc1 L_k1_ok")
        A(f"s_cmp_eq_u32 s{S_FB}, 0")
        A("s_cbranch_scc1 L_k1_fallback")
        A.label("L_k1_ok")
    for t in range(5): A(f"v_rcp_f32 v{TL+t}, v{TL+t}")
    for sl in range(3):
        for q in range(40): A(f"v_add_f32 v{TO+q}, v{TO+q}, v{TR + sl*40 + q}")
    for t in range(5):
        for q in range(8): A(f"v_mul_f32 v{TO + t*8 + q}, v{TO + t*8 + q}, v{TL+t}")
    A(f"s_lshl_b32 s30, s{S_B}, 7")
    A(f"s_lshl_b32 s31, s{S_H}, 2")
    A(f"s_add_u32 s30, s30, s31")
    A(f"s_add_u32 s30, s30, s{S_W}")
    A(f"s_mul_i32 s30, s30, 5120")
    for t in range(5):
        q = TR + 4*t
        for i in range(4): A(f"v_cvt_pk_bf16_f32 v{q+i}, v{TO + t*8 + 2*i}, v{TO + t*8 + 2*i + 1}")
    for t in range(5):
        so = "s30"
        A(f"buffer_store_dwordx4 {vr(TR+4*t,4)}, v7, {sr(SRD_O,4)}, s30 offen offset:{(t*1024) & 4095}" if t < 4 else
          f"s_add_u32 s30, s30, 4096\nbuffer_store_dwordx4 {vr(TR+4*t,4)}, v7, {sr(SRD_O,4)}, s30 offen")
    stamp(A, 6)
    A("s_waitcnt vmcnt(0)")
    stamp(A, 7)
    stamp_out(A, 0, 10, S_W)
    A.label("L_k1_end")
    A("s_endpgm")
    if OPT['fallback']: gen_fallback(A)
    return A.text()

def gen_fallback(A):
    M, AL, T = V_NEG, V_NEG + 8, 148
    SF = 160
    A.label("L_k1_fallback")
    A(f"s_mov_b32 s{S_FB}, 1")
    A("s_barrier")
    for i in range(160): A(f"v_accvgpr_write_b32 a{A_O+i}, 0")
    for i in range(10): A(f"v_mov_b32 v{V_L+i}, 0")
    for t in range(5): A(f"v_mov_b32 v{M+t}, 0xff7fffff")
    A(f"s_mov_b32 s{S_CNT}, 16")
    A(f"s_mov_b32 s{S_OFF}, s{S_W8}")
    A.label("L_fb_loop")
    A(f"s_add_u32 s{S_OFF2}, s{S_OFF}, 4096")
    for x in with_m0_gap(kv_dma('K', 0)) + with_m0_gap(kv_dma('V', 0)): A(x)
    A("s_waitcnt vmcnt(0)")
    for p in range(8): A(k_read(p, 0))
    for dt in range(8):
        for hf in range(2): A(v_read(dt, hf, 0))
    A("s_waitcnt lgkmcnt(0)")
    for t in range(5):
        for p in range(8):
            kt, s = p >> 2, p & 3
            d = SF + 8*t + 4*kt
            A(f"v_mfma_f32_16x16x32_bf16 {vr(d,4)}, {vr(V_KF+4*p,4)}, {ar(A_Q+(t*4+s)*4,4)}, {'0' if s == 0 else vr(d,4)}")
    A("s_nop 7")
    for t in range(5):
        d = SF + 8*t
        A(f"v_max3_f32 v{T+t}, v{d}, v{d+1}, v{d+2}")
        A(f"v_max3_f32 v{T+t}, v{T+t}, v{d+3}, v{d+4}")
        A(f"v_max3_f32 v{T+t}, v{T+t}, v{d+5}, v{d+6}")
        A(f"v_max3_f32 v{T+t}, v{T+t}, v{d+7}, v{M+t}")
    A("s_nop 1")
    for swap in ("v_permlane32_swap_b32", "v_permlane16_swap_b32"):
        for t in range(5): A(f"v_mov_b32 v{T+5+t}, v{T+t}")
        for t in range(5): A(f"{swap} v{T+t}, v{T+5+t}")
        for t in range(5): A(f"v_max_f32 v{T+t}, v{T+t}, v{T+5+t}")
    for t in range(5): A(f"v_sub_f32 v{AL+t}, v{M+t}, v{T+t}")
    for t in range(5): A(f"v_exp_f32 v{AL+t}, v{AL+t}")
    for t in range(5): A(f"v_mov_b32 v{M+t}, v{T+t}")
    for t in range(5):
        for i in range(8): A(f"v_sub_f32 v{SF+8*t+i}, v{SF+8*t+i}, v{M+t}")
    for t in range(5):
        for i in range(8): A(f"v_exp_f32 v{SF+8*t+i}, v{SF+8*t+i}")
    A("s_nop 0")
    for t in range(5):
        A(f"v_mul_f32 v{V_L+2*t}, v{V_L+2*t}, v{AL+t}")
        for i in range(8): A(f"v_add_f32 v{V_L+2*t}, v{V_L+2*t}, v{SF+8*t+i}")
    for t in range(5):
        for i in range(32):
            A(f"v_accvgpr_read_b32 v{T+10}, a{A_O+t*32+i}")
            A(f"v_mul_f32 v{T+10}, v{T+10}, v{AL+t}")
            A(f"v_accvgpr_write_b32 a{A_O+t*32+i}, v{T+10}")
    PF = 200
    for t in range(5):
        for i in range(4): A(f"v_cvt_pk_bf16_f32 v{PF+4*t+i}, v{SF+8*t+2*i}, v{SF+8*t+2*i+1}")
    A("s_nop 1")
    for t in range(5):
        for dt in range(8):
            o = A_O + (t*8 + dt)*4
            A(f"v_mfma_f32_16x16x32_bf16 {ar(o,4)}, {vr(V_VF+4*dt,4)}, {vr(PF+4*t,4)}, {ar(o,4)}")
    A("s_nop 7")
    A(f"s_add_u32 s{S_OFF}, s{S_OFF}, 0x8000")
    A(f"s_sub_u32 s{S_CNT}, s{S_CNT}, 1")
    A(f"s_cmp_lg_u32 s{S_CNT}, 0")
    A("s_cbranch_scc1 L_fb_loop")
    XL = 122880 + 5120
    A("s_barrier")
    A(f"v_lshlrev_b32 v8, 2, v1")
    A(f"s_mul_i32 s30, s{S_W}, 1280")
    A(f"s_add_u32 s30, s30, {XL}")
    A(f"v_add_u32 v9, s30, v8")
    for t in range(5): A(f"ds_write_b32 v9, v{M+t} offset:{256*t}")
    A("s_waitcnt lgkmcnt(0)")
    A("s_barrier")
    A(f"v_add_u32 v9, {XL}, v8")
    for w in range(4):
        for t in range(5): A(f"ds_read_b32 v{SF + w*5 + t}, v9 offset:{w*1280 + t*256}")
    A("s_waitcnt lgkmcnt(0)")
    for t in range(5):
        A(f"v_max3_f32 v{T+t}, v{SF+t}, v{SF+5+t}, v{SF+10+t}")
        A(f"v_max_f32 v{T+t}, v{T+t}, v{SF+15+t}")
        A(f"v_sub_f32 v{AL+t}, v{M+t}, v{T+t}")
    for t in range(5): A(f"v_exp_f32 v{AL+t}, v{AL+t}")
    A("s_nop 0")
    for t in range(5):
        A(f"v_mul_f32 v{V_L+2*t}, v{V_L+2*t}, v{AL+t}")
        A(f"v_mov_b32 v{V_L+2*t+1}, 0")
        for i in range(32):
            A(f"v_accvgpr_read_b32 v{T+10}, a{A_O+t*32+i}")
            A(f"v_mul_f32 v{T+10}, v{T+10}, v{AL+t}")
            A(f"v_accvgpr_write_b32 a{A_O+t*32+i}, v{T+10}")
    A("s_branch L_k1_combine")

def gen_k2():
    A = Asm()
    SRD_OF, SRD_WO, SRD_PP = 4, 8, 12
    S_C = 26
    A("s_cmp_ge_u32 s2, 256")
    A("s_cbranch_scc1 L_k2_end")
    stamp(A, 0)
    A(f"s_load_dwordx2 s[{SRD_OF}:{SRD_OF+1}], s[0:1], 56")
    A(f"s_load_dwordx2 s[{SRD_WO}:{SRD_WO+1}], s[0:1], 32")
    A(f"s_load_dwordx2 s[{SRD_PP}:{SRD_PP+1}], s[0:1], 56")
    ACC, FA, FB, VL, VAW, VWD = 16, (56, 64), (72, 92), 10, 11, 13
    A(f"""
    v_lshrrev_b32 v2, 6, v0
    v_and_b32 v1, 63, v0
    s_and_b32 s{S_G}, s2, 7
    s_lshr_b32 s30, s2, 3
    v_readfirstlane_b32 s{S_W}, v2
    s_lshr_b32 s{S_B}, s30, 2
    s_and_b32 s{S_C}, s30, 3
    v_and_b32 v3, 15, v1
    v_lshrrev_b32 v4, 4, v1
    v_bfe_u32 v5, v1, 2, 2
    v_and_b32 v6, 3, v1
    s_lshl_b32 s{S_W1K}, s{S_W}, 10
    s_add_u32 s{S_ROT}, s{S_B}, s{S_C}
    s_and_b32 s{S_ROT}, s{S_ROT}, 3
    v_lshlrev_b32 v{VL}, 4, v1
    s_lshl_b32 s30, s{S_W}, 2
    v_add_u32 v8, s30, v4
    v_lshlrev_b32 v9, 2, v4
    v_xor_b32 v9, v3, v9
    v_lshlrev_b32 v9, 4, v9
    v_lshl_add_u32 v{VWD}, v8, 10, v9
    s_waitcnt lgkmcnt(0)
    s_add_u32 s{SRD_OF}, s{SRD_OF}, {WS_O}
    s_addc_u32 s{SRD_OF+1}, s{SRD_OF+1}, 0
    s_mov_b32 s{SRD_OF+2}, {5 << 20}
    s_mov_b32 s{SRD_OF+3}, 0x00020000
    s_mov_b32 s{SRD_WO+2}, {4096*1024}
    s_mov_b32 s{SRD_WO+3}, 0x00020000
    s_lshl_b32 s30, s{S_B}, 7
    s_lshl_b32 s31, s{S_G}, 4
    s_add_u32 s30, s30, s31
    s_mul_i32 s31, s30, 5120
    s_lshl_b32 s44, s{S_G}, 19
    s_lshl_b32 s30, s{S_C}, 8
    s_add_u32 s44, s44, s30
    """)
    XB, WB = 0, 81920
    xarea = lambda a, t: XB + (a * 5 + t) * 4096
    wblk = lambda u, e: WB + (u % 3) * 16384 + e * 8192
    def xdma(a):
        l = [f"s_add_u32 s{S_T0}, s{S_ROT}, {a}", f"s_and_b32 s{S_T0}, s{S_T0}, 3", f"s_lshl_b32 s{S_T0}, s{S_T0}, 2",
             f"s_add_u32 s{S_T0}, s{S_T0}, s{S_W}", f"s_mul_i32 s{S_T0}, s{S_T0}, 5120", f"s_add_u32 s{S_XOFF}, s{S_T0}, s31"]
        for t in range(5):
            l += [f"s_add_u32 m0, s{S_W1K}, {xarea(a, t)}", f"s_add_u32 s{S_T0}, s{S_XOFF}, {t*1024}",
                  f"buffer_load_dwordx4 v{VL}, {sr(SRD_OF,4)}, s{S_T0} offen lds"]
        return l
    def wdma(u):
        l = [f"s_lshl_b32 s{S_T0}, s{S_ROT}, 1", f"s_add_u32 s{S_T0}, s{S_T0}, {u}", f"s_and_b32 s{S_T0}, s{S_T0}, 7", f"s_lshl_b32 s{S_T0}, s{S_T0}, 16",
             f"s_add_u32 s{S_WK}, s{S_T0}, s44"]
        for e in range(2):
            for hh in range(2):
                l += [f"s_add_u32 m0, s{S_W1K}, {wblk(u, e) + 4096*hh}", f"s_add_u32 s{S_T0}, s{S_WK}, {(32*e + 16*hh)*1024}",
                      f"buffer_load_dwordx4 v{VWD}, {sr(SRD_WO,4)}, s{S_T0} offen lds"]
        return l
    def xread(ks, t, dst):
        p = xarea(ks >> 2, t) + (ks & 3) * 1024
        return f"ds_read_b128 {vr(dst,4)}, v{VL + (2 if p >= 65536 else 0)} offset:{p & 0xffff}"
    def wread(ks, jt, hf, dst):
        p = wblk(ks >> 1, ks & 1)
        return f"ds_read_b64_tr_b16 {vr(dst,2)}, v{VAW} offset:{(p - 65536) + 4096*hf + 8*jt}"
    up = xdma(0) + wdma(0) + wdma(1) + xdma(1) + wdma(2)
    def idle(A):
        A(f"""
        v_add_u32 v{VL+2}, 0x10000, v{VL}
        v_lshl_add_u32 v8, v4, 2, v5
        s_lshl_b32 s30, s{S_W}, 2
        v_add_u32 v9, s30, v6
        v_lshlrev_b32 v2, 2, v5
        v_xor_b32 v9, v9, v2
        v_lshlrev_b32 v9, 4, v9
        v_lshl_add_u32 v9, v8, 8, v9
        v_add_u32 v{VAW}, 0x10000, v9
        s_add_u32 s{SRD_PP}, s{SRD_PP}, {WS_P}
        s_addc_u32 s{SRD_PP+1}, s{SRD_PP+1}, 0
        s_mov_b32 s{SRD_PP+2}, {10 << 20}
        s_mov_b32 s{SRD_PP+3}, 0x00020000
        """)
    issue = {1: wdma(3) + xdma(2), 2: wdma(4), 3: wdma(5) + xdma(3), 4: wdma(6), 5: wdma(7)}
    vm = {0: 13, 1: 9, 2: 9, 3: 9, 4: 9, 5: 9, 6: 4, 7: 0}
    gemm_core(A, dict(acc=ACC, FA=FA, FB=FB, upfront=up, idle=idle, vm=vm, issue=issue, xread=xread, wread=wread))
    stamp(A, 2)
    A(f"""
    s_lshl_b32 s30, s{S_B}, 2
    s_add_u32 s30, s30, s{S_C}
    s_lshl_b32 s30, s30, 2
    s_add_u32 s30, s30, s{S_W}
    s_mul_i32 s30, s30, 81920
    s_lshl_b32 s31, s{S_G}, 10
    s_add_u32 s30, s30, s31
    s_nop 3
    """)
    for q in (0, 5, 1, 6, 2, 7, 3, 8, 4, 9):
        A(f"s_add_u32 s31, s30, {q*8192}")
        A(f"buffer_store_dwordx4 {vr(ACC+4*q,4)}, v{VL}, {sr(SRD_PP,4)}, s31 offen")
    A("s_waitcnt vmcnt(0)")
    stamp(A, 3)
    stamp_out(A, 1, 4, S_W)
    A.label("L_k2_end")
    A("s_endpgm")
    return A.text()

def gen_k3():
    A = Asm()
    A("s_cmp_ge_u32 s2, 160")
    A("s_cbranch_scc1 L_k3_end")
    stamp(A, 0)
    A("s_load_dwordx2 s[4:5], s[0:1], 56")
    A("s_load_dwordx2 s[8:9], s[0:1], 40")
    A("""
    v_lshrrev_b32 v2, 6, v0
    v_and_b32 v1, 63, v0
    v_lshlrev_b32 v3, 4, v1
    s_lshl_b32 s20, s2, 2
    v_readfirstlane_b32 s21, v2
    v_and_b32 v4, 15, v1
    v_lshrrev_b32 v5, 4, v1
    s_add_u32 s20, s20, s21          ; unit U = 0..639 : (bcw = U / 5, t = U % 5)
    """)
    A(f"s_mul_hi_u32 s22, s20, {(1 << 32)//5 + 1}")
    A("s_mul_i32 s23, s22, 5")
    A("s_sub_u32 s23, s20, s23       ; t")
    A("s_mul_i32 s24, s22, 81920")
    A("s_lshl_b32 s25, s23, 13")
    A("s_add_u32 s24, s24, s25       ; + t*8192")
    A("s_waitcnt lgkmcnt(0)")
    A(f"s_add_u32 s4, s4, {WS_P}")
    A("s_addc_u32 s5, s5, 0")
    A(f"s_mov_b32 s6, {10 << 20}")
    A("s_mov_b32 s7, 0x00020000")
    A(f"s_mov_b32 s10, {640*1024}")
    A("s_mov_b32 s11, 0x00020000")
    for jt in range(2):
        for g in range(8):
            if g % 4 == 0: A(f"s_add_u32 s25, s24, {jt*5*8192 + g*1024}")
            A(f"buffer_load_dwordx4 {vr(8 + (jt*8+g)*4, 4)}, v3, s[4:7], s25 offen offset:{(g%4)*1024}")
    A("""
    s_lshr_b32 s26, s22, 4           ; b
    s_and_b32 s27, s22, 15           ; c*4 + w
    s_mul_i32 s26, s26, 80
    s_lshl_b32 s28, s23, 4
    s_add_u32 s26, s26, s28
    v_add_u32 v4, s26, v4
    v_lshlrev_b32 v4, 10, v4
    s_lshl_b32 s27, s27, 6
    v_lshl_add_u32 v4, v5, 4, v4
    v_add_u32 v4, s27, v4
    """)
    for jt in range(2):
        A(f"s_waitcnt vmcnt({8 if jt == 0 else 0})")
        b = 8 + jt*32
        for g in range(1, 8):
            for r in range(4): A(f"v_add_f32 v{b+r}, v{b+r}, v{b+4*g+r}")
    A("v_cvt_pk_bf16_f32 v72, v8, v9")
    A("v_cvt_pk_bf16_f32 v73, v10, v11")
    A("v_cvt_pk_bf16_f32 v74, v40, v41")
    A("v_cvt_pk_bf16_f32 v75, v42, v43")
    A("buffer_store_dwordx4 v[72:75], v4, s[8:11], 0 offen")
    A("s_waitcnt vmcnt(0)")
    stamp(A, 1)
    stamp_out(A, 2, 2, 21)
    if OPT.get('amp'):
        (k0, i0), (k1, i1), M = OPT['amp']
        A("s_cmp_eq_u32 s20, 0")
        A("s_cbranch_scc0 L_k3_end")
        A("s_load_dwordx2 s[40:41], s[0:1], 56")
        A("s_waitcnt lgkmcnt(0)")
        A(f"s_add_u32 s40, s40, {WS_ST}")
        A("s_addc_u32 s41, s41, 0")
        A(f"s_load_dword s42, s[40:41], {k0*(1<<20) + 4*i0}")
        A(f"s_load_dword s43, s[40:41], {k1*(1<<20) + 4*i1}" if k1 * (1 << 20) < (1 << 20) else "s_nop 0")
        if k1 == 2: A(f"s_mov_b32 s43, s{64+2*i1}")
        if k1 == 1:
            A("s_add_u32 s44, s40, 0x100000")
            A("s_addc_u32 s45, s41, 0")
            A(f"s_load_dword s43, s[44:45], {4*i1}")
        A("s_waitcnt lgkmcnt(0)")
        A("s_sub_u32 s42, s43, s42")
        A("s_min_u32 s42, s42, 10000")
        A(f"s_mul_i32 s42, s42, {M}")
        A("s_memrealtime s[46:47]")
        A("s_waitcnt lgkmcnt(0)")
        A.label("L_amp")
        A("s_sleep 4")
        A("s_memrealtime s[48:49]")
        A("s_waitcnt lgkmcnt(0)")
        A("s_sub_u32 s50, s48, s46")
        A("s_cmp_lt_u32 s50, s42")
        A("s_cbranch_scc1 L_amp")
    A.label("L_k3_end")
    A("s_endpgm")
    return A.text()

def build():
    launches = [("attn_kernel", 256, 256, 163840), ("oproj_kernel", 256, 256, 131072), ("oreduce_kernel", 160, 256, 0)]
    kernels = [("attn_kernel", gen_k1(), 512, 256, 102), ("oproj_kernel", gen_k2(), 128, 128, 102), ("oreduce_kernel", gen_k3(), 80, 80, 102)]
    for i in range(OPT.get('empties', 0)):
        launches.append(("empty_kernel", OPT.get('egrid', 1), 64, 0))
    if OPT.get('empties', 0): kernels.append(("empty_kernel", "    s_endpgm\n", 8, 8, 16))
    return assemble_file(launches, kernels)

if __name__ == "__main__":
    out = sys.argv[1]
    for kv in sys.argv[2:]:
        k_, v_ = kv.split("=")
        OPT[k_] = eval(v_)
    open(out, "w").write(build())
```

```python
import sys, struct, math
from lib import *

def f32(x): return struct.unpack("<I", struct.pack("<f", x))[0]
C_SCALE = math.log2(math.e) / math.sqrt(128.0)
NAME = "standalone__gqa_block_cached__near_ridge_kernel"

WS_O = 0
WS_P = 8 << 20
WS_F = 24 << 20
WS_ST = 64 << 20
OPT = dict(standin=True, fallback=True, stamps=False, nodma=False, nods=False, novalu=False, nowait=False, wopf=True)

V_KA, V_VA, V_KD, V_VD, V_L, V_L16, V_NEG, V_S, V_P, V_KF, V_VF = 10, 14, 22, 26, 28, 38, 40, 60, 76, 84, 116
A_O, A_Q = 0, 160
S_G, S_B, S_R, S_W, S_H, S_RW = 24, 25, 26, 27, 28, 29
S_T, S_R15, S_W8, S_END, S_OFF, S_OFF2, S_CNT, S_W1K, S_XOFF, S_WK, S_ROT, S_FB = 32, 33, 34, 35, 36, 37, 38, 39, 40, 41, 42, 43
S_T0, S_T1, S_T2, S_SPIN = 60, 61, 62, 63
SRD_X, SRD_K, SRD_V, SRD_W, SRD_O, SRD_WO, SRD_PP, SRD_FL, SRD_DBG, SRD_OUT = 4, 8, 12, 16, 20, 44, 48, 52, 56, 84
S_POFF, S_F1, S_F2, S_XB = 88, 89, 90, 91
K0, K1s, V0, V1 = 0, 8192, 16384, 24576
LE = 131072
SPIN_MAX = 20000

def stamp(A, i):
    if not OPT['stamps']: return
    A(f"s_memrealtime s[{64+2*(i%10)}:{65+2*(i%10)}]")
    A("s_waitcnt lgkmcnt(0)")
    A(f"v_writelane_b32 v39, s{64+2*(i%10)}, {i}")
def stamp_cyc(A, i):
    if not OPT['stamps']: return
    A(f"s_memtime s[{64+2*(i%10)}:{65+2*(i%10)}]")
    A("s_waitcnt lgkmcnt(0)")
    A(f"v_writelane_b32 v39, s{64+2*(i%10)}, {i}")
def stamp_out(A):
    if not OPT['stamps']: return
    A("s_load_dwordx2 s[92:93], s[0:1], 56")
    A("s_waitcnt lgkmcnt(0)")
    A(f"s_add_u32 s92, s92, {WS_ST}")
    A("s_addc_u32 s93, s93, 0")
    A("s_mov_b32 s94, 0x100000")
    A("s_mov_b32 s95, 0x00020000")
    A("s_lshl_b32 s96, s2, 2")
    A(f"s_add_u32 s96, s96, s{S_W}")
    A("s_lshl_b32 s96, s96, 8")
    A("v_lshlrev_b32 v2, 2, v1")
    A("buffer_store_dword v39, v2, s[92:95], s96 offen")
    A("s_waitcnt vmcnt(0)")

def gemm_core(A, acc, FA, FB, xread, wread, plan):
    def reads(ks):
        buf = ks & 1
        w = [wread(ks, jt, hf, FA[buf] + 4 * jt + 2 * hf) for jt in range(2) for hf in range(2)]
        x = [xread(ks, t, FB[buf] + 4 * t) for t in range(5)]
        return [w[0], w[1], x[0], w[2], w[3], x[1], x[2], x[3], x[4]]
    for r in reads(0): A(r)
    for ks in range(16):
        buf = ks & 1
        p = plan.get(ks, {})
        A("s_waitcnt lgkmcnt(0)")
        for x in p.get('pre', []): A(x)
        extra = list(p.get('fill', []))
        late = p.get('late')
        fill = reads(ks + 1) if (ks < 15 and late is None) else []
        m = 0
        for t in range(5):
            for jt in range(2):
                d = acc + (jt * 5 + t) * 4
                c = "0" if ks == 0 else vr(d, 4)
                A(f"v_mfma_f32_16x16x32_bf16 {vr(d,4)}, {vr(FA[buf]+4*jt,4)}, {vr(FB[buf]+4*t,4)}, {c}")
                if fill: A(fill.pop(0))
                k = (len(extra) + (9 - m)) // (10 - m) if extra else 0
                for _ in range(min(k, len(extra))): A(extra.pop(0))
                m += 1
        for e in extra: A(e)
        if late is not None:
            late(A) if callable(late) else [A(x) for x in late]
            if ks < 15:
                for r in reads(ks + 1): A(r)

def off_calc():
    return [f"s_add_u32 s{S_T0}, s{S_T}, s{S_R15}",
            f"s_and_b32 s{S_T0}, s{S_T0}, 0x18000",
            f"s_and_b32 s{S_T1}, s{S_T}, 0x60000",
            f"s_or_b32 s{S_T0}, s{S_T0}, s{S_T1}",
            f"s_or_b32 s{S_OFF}, s{S_T0}, s{S_W8}",
            f"s_cmp_ge_u32 s{S_T}, s{S_END}",
            f"s_cselect_b32 s{S_OFF}, 0x80000, s{S_OFF}",
            f"s_add_u32 s{S_OFF2}, s{S_OFF}, 4096",
            f"s_add_u32 s{S_T}, s{S_T}, 0x8000"]
def kv_dma(which, slot):
    srd = SRD_K if which == 'K' else SRD_V
    base = (K0, K1s)[slot] if which == 'K' else (V0, V1)[slot]
    l = []
    for half in range(2):
        l.append(f"s_add_u32 m0, s{S_RW}, {base + 4096 * half}")
        so = S_OFF if half == 0 else S_OFF2
        for i in range(4):
            vo = V_KD + i if which == 'K' else V_VD + (i & 1)
            l.append(f"buffer_load_dwordx4 v{vo}, {sr(srd,4)}, s{so} offen offset:{1024*i} lds")
    return l
def with_m0_gap(l):
    out = []
    for x in l:
        out.append(x)
        if x.startswith("s_add_u32 m0"): out.append("s_nop 0")
    return out
def k_read(p, slot):
    kt, s = p >> 2, p & 3
    return f"ds_read_b128 {vr(V_KF + 4*p, 4)}, v{V_KA + s} offset:{(K0, K1s)[slot] + 4096*kt}"
def v_read(dt, hf, slot):
    return f"ds_read_b64_tr_b16 {vr(V_VF + 4*dt + 2*hf, 2)}, v{V_VA + dt} offset:{(V0, V1)[slot] + 4096*hf}"
def qk_mfma(p, tq, sbuf):
    kt, s = p >> 2, p & 3
    d = V_S + 8 * sbuf + 4 * kt
    c = vr(V_NEG + 4 * tq, 4) if s == 0 else vr(d, 4)
    return f"v_mfma_f32_16x16x32_bf16 {vr(d,4)}, {vr(V_KF + 4*p, 4)}, {ar(A_Q + (tq*4 + s)*4, 4)}, {c}"
def pv_mfma(dt, tp, pbuf):
    o = A_O + (tp * 8 + dt) * 4
    return f"v_mfma_f32_16x16x32_bf16 {ar(o,4)}, {vr(V_VF + 4*dt, 4)}, {vr(V_P + 4*pbuf, 4)}, {ar(o,4)}"
def sm_valu(ts, buf):
    S = V_S + 8 * buf; P = V_P + 4 * buf; L = V_L + 2 * ts
    g = [[] for _ in range(16)]
    for q in range(4):
        e0, e1 = S + 2 * q, S + 2 * q + 1
        g[4*q + 0].append(f"v_exp_f32 v{e0}, v{e0}")
        g[4*q + 1].append(f"v_exp_f32 v{e1}, v{e1}")
        g[4*q + 2].append(f"v_add_f32 v{L}, v{L}, v{e0}")
        g[4*q + 2].append(f"v_add_f32 v{L+1}, v{L+1}, v{e1}")
        g[4*q + 3].append(f"v_cvt_pk_bf16_f32 v{P + q}, v{e0}, v{e1}")
    return g

def main_stage(A, k):
    tq, ts, tp = k % 5, (k + 4) % 5, (k + 3) % 5
    nv = [[] for _ in range(16)]
    par = 0 if k < 5 else 1
    km = k % 5
    if km == 0:
        oc = off_calc()
        for i, x in enumerate(oc): nv[min(i // 2, 4)].append(x)
        d = kv_dma('K', par)
        for i, x in enumerate(d): nv[5 + i].append(x)
        if k == 0 and OPT['wopf']:
            nv[15] += [f"s_cmp_eq_u32 s{S_CNT}, 2", "s_cbranch_scc0 L_nopf", f"s_lshl_b32 s{S_T0}, s{S_W}, 12", f"s_add_u32 m0, s{S_T0}, {LE}", "s_nop 0"]
            nv[15] += [f"buffer_load_dwordx4 v{V_L16}, {sr(SRD_WO,4)}, s{S_POFF} offen offset:{1024*i} lds" for i in range(4)]
            nv[15] += ["L_nopf:"]
    if km == 1:
        nv[7].append("s_waitcnt vmcnt(24)")
        for dt in range(8): nv[8 + dt].append(v_read(dt, 0, par))
    if km == 2:
        for dt in range(8): nv[dt].append(v_read(dt, 1, par))
        for dt in range(8): nv[7 + dt].append(f"s_waitcnt lgkmcnt({7 - dt})")
    if km == 3:
        d = kv_dma('V', par)
        for i, x in enumerate(d): nv[i].append(x)
        nv[15].append("s_waitcnt vmcnt(24)")
    if km == 4:
        for p in range(8): nv[p].append(k_read(p, 1 - par))
        nv[15].append("s_waitcnt lgkmcnt(0)")
    va = sm_valu(ts, (k + 1) & 1)
    for p in range(16):
        A(qk_mfma(p, tq, k & 1) if p < 8 else pv_mfma(p - 8, tp, k & 1))
        for x in nv[p]:
            if x.endswith(":"): A.raw(x); continue
            if OPT['nodma'] and x.startswith("buffer_load"): continue
            if OPT['nods'] and x.startswith("ds_read"): continue
            if OPT['nowait'] and x.startswith("s_waitcnt"): continue
            A(x)
        if OPT['novalu']: continue
        for x in va[p]: A(x)

def poll(A, tag, srd, soff, nwords, want, vtmp):
    A(f"s_mov_b32 s{S_SPIN}, {SPIN_MAX}")
    A.label(f"L_poll_{tag}")
    for i in range(nwords // 4):
        A(f"buffer_load_dwordx4 {vr(vtmp + 4*i, 4)}, off, {sr(srd,4)}, s{soff} offset:{16*i} sc1")
    A("s_waitcnt vmcnt(0)")
    for i in range(nwords): A(f"v_xor_b32 v{vtmp+i}, {want}, v{vtmp+i}")
    for i in range(1, nwords): A(f"v_or_b32 v{vtmp}, v{vtmp}, v{vtmp+i}")
    A("s_nop 0")
    A(f"v_readfirstlane_b32 s{S_T0}, v{vtmp}")
    A("s_nop 3")
    A(f"s_cmp_eq_u32 s{S_T0}, 0")
    A(f"s_cbranch_scc1 L_done_{tag}")
    A(f"s_sub_u32 s{S_SPIN}, s{S_SPIN}, 1")
    A(f"s_cmp_eq_u32 s{S_SPIN}, 0")
    A(f"s_cbranch_scc1 L_done_{tag}")
    A("s_sleep 1")
    A(f"s_branch L_poll_{tag}")
    A.label(f"L_done_{tag}")

def one_lane(A, instrs):
    A("s_mov_b64 exec, 1")
    for x in instrs: A(x)
    A("s_mov_b64 exec, -1")

def gen():
    A = Asm()
    A("s_cmp_ge_u32 s2, 256")
    A("s_cbranch_scc1 L_end")
    stamp(A, 0)
    A(f"s_load_dwordx2 s[{SRD_X}:{SRD_X+1}], s[0:1], 0")
    A(f"s_load_dwordx2 s[{SRD_W}:{SRD_W+1}], s[0:1], 24")
    A(f"s_load_dwordx2 s[{SRD_K}:{SRD_K+1}], s[0:1], 8")
    A(f"s_load_dwordx2 s[{SRD_V}:{SRD_V+1}], s[0:1], 16")
    A(f"s_load_dwordx2 s[{SRD_WO}:{SRD_WO+1}], s[0:1], 32")
    A(f"s_load_dwordx2 s[{SRD_OUT}:{SRD_OUT+1}], s[0:1], 40")
    A(f"s_load_dwordx2 s[{SRD_DBG}:{SRD_DBG+1}], s[0:1], 48")
    A(f"s_load_dwordx2 s[{SRD_O}:{SRD_O+1}], s[0:1], 56")
    A(f"""
    v_lshrrev_b32 v2, 6, v0
    v_and_b32 v1, 63, v0
    s_and_b32 s{S_G}, s2, 7
    s_lshr_b32 s30, s2, 3
    v_readfirstlane_b32 s{S_W}, v2
    s_lshr_b32 s{S_B}, s30, 2
    s_and_b32 s{S_R}, s30, 3
    s_lshl_b32 s{S_H}, s{S_G}, 2
    s_add_u32 s{S_H}, s{S_H}, s{S_R}
    v_and_b32 v3, 15, v1
    v_lshrrev_b32 v4, 4, v1
    v_bfe_u32 v5, v1, 2, 2
    v_and_b32 v6, 3, v1
    s_lshl_b32 s{S_W1K}, s{S_W}, 10
    s_add_u32 s{S_ROT}, s{S_B}, s{S_R}
    s_and_b32 s{S_ROT}, s{S_ROT}, 3
    """)
    ACC, FA, FB, VX, VAW, VXD, VWD = 148, (188, 196), (204, 224), 244, 252, 254, 255
    A(f"""
    s_lshl_b32 s30, s{S_W}, 2
    v_add_u32 v8, s30, v4                   ; 4w+gq
    v_xor_b32 v9, v3, v8
    v_lshlrev_b32 v9, 4, v9
    v_lshl_add_u32 v{VXD}, v8, 10, v9
    v_lshlrev_b32 v9, 2, v4
    v_xor_b32 v9, v3, v9
    v_lshlrev_b32 v9, 4, v9
    v_lshl_add_u32 v{VWD}, v8, 13, v9
    s_mul_i32 s31, s{S_B}, 81920
    s_waitcnt lgkmcnt(0)
    s_mov_b32 s{SRD_X+2}, {640*1024}
    s_mov_b32 s{SRD_X+3}, 0x00020000
    s_mov_b32 s{SRD_W+2}, {512*8192}
    s_mov_b32 s{SRD_W+3}, 0x00020000
    """)
    pool1 = [w*32768 + V0 + h*4096 for w in range(4) for h in range(2)] + [K1s, K1s + 4096]
    pool2 = [w*32768 + K1s + h*4096 for w in (1, 2, 3) for h in range(2)] + [w*32768 + V1 + h*4096 for w in (0, 1) for h in range(2)]
    xarea = lambda a, t: (pool1 if a < 2 else pool2)[(a & 1) * 5 + t]
    wblk = lambda u, e: [[2*32768 + V1, 3*32768 + V1], [LE, LE + 8192], [LE + 16384, LE + 24576]][u % 3][e]
    def xdma(a):
        l = [f"s_add_u32 s{S_T0}, s{S_ROT}, {a}", f"s_and_b32 s{S_T0}, s{S_T0}, 3", f"s_lshl_b32 s{S_T0}, s{S_T0}, 8", f"s_add_u32 s{S_XOFF}, s{S_T0}, s31"]
        for t in range(5):
            l += [f"s_add_u32 m0, s{S_W1K}, {xarea(a, t)}", f"s_add_u32 s{S_T0}, s{S_XOFF}, {t*16384}",
                  f"buffer_load_dwordx4 v{VXD}, {sr(SRD_X,4)}, s{S_T0} offen lds"]
        return l
    def wdma(u):
        l = [f"s_lshl_b32 s{S_T0}, s{S_ROT}, 1", f"s_add_u32 s{S_T0}, s{S_T0}, {u}", f"s_and_b32 s{S_T0}, s{S_T0}, 7", f"s_lshl_b32 s{S_T0}, s{S_T0}, 19",
             f"s_lshl_b32 s{S_T1}, s{S_H}, 8", f"s_add_u32 s{S_WK}, s{S_T0}, s{S_T1}"]
        for e in range(2):
            for hh in range(2):
                l += [f"s_add_u32 m0, s{S_W1K}, {wblk(u, e) + 4096*hh}", f"s_add_u32 s{S_T0}, s{S_WK}, {(32*e + 16*hh)*8192}",
                      f"buffer_load_dwordx4 v{VWD}, {sr(SRD_W,4)}, s{S_T0} offen lds"]
        return l
    def xread(ks, t, dst):
        p = xarea(ks >> 2, t)
        return f"ds_read_b128 {vr(dst,4)}, v{VX + 4*(p >> 16) + (ks & 3)} offset:{p & 0xffff}"
    def wread(ks, jt, hf, dst):
        p = wblk(ks >> 1, ks & 1)
        return f"ds_read_b64_tr_b16 {vr(dst,2)}, v{VAW + (p >> 16) - 1} offset:{(p & 0xffff) + 1024*hf + 8*jt}"
    for x in xdma(0) + wdma(0) + wdma(1) + xdma(1) + wdma(2): A(x)
    A(f"""
    s_lshl_b32 s{S_RW}, s{S_W}, 15
    s_lshl_b32 s{S_W8}, s{S_W}, 13
    s_lshl_b32 s{S_R15}, s{S_R}, 15
    s_and_b32 s30, s{S_B}, 3
    s_lshl_b32 s{S_T}, s30, 15
    s_add_u32 s{S_END}, s{S_T}, 0x80000
    s_mov_b32 s{S_FB}, 0
    s_mov_b32 s{SRD_K+2}, 0x80000
    s_mov_b32 s{SRD_K+3}, 0x00020000
    s_mov_b32 s{SRD_V+2}, 0x80000
    s_mov_b32 s{SRD_V+3}, 0x00020000
    s_lshl_b32 s30, s{S_B}, 3
    s_add_u32 s30, s30, s{S_G}               ; b*8+g
    s_lshl_b32 s{S_F1}, s30, 7
    s_lshl_b32 s30, s30, 19
    s_add_u32 s{SRD_K}, s{SRD_K}, s30
    s_addc_u32 s{SRD_K+1}, s{SRD_K+1}, 0
    s_add_u32 s{SRD_V}, s{SRD_V}, s30
    s_addc_u32 s{SRD_V+1}, s{SRD_V+1}, 0
    s_mov_b32 s{SRD_PP}, s{SRD_O}
    s_mov_b32 s{SRD_PP+1}, s{SRD_O+1}
    s_mov_b32 s{SRD_FL}, s{SRD_O}
    s_mov_b32 s{SRD_FL+1}, s{SRD_O+1}
    s_add_u32 s{SRD_PP}, s{SRD_PP}, {WS_P}
    s_addc_u32 s{SRD_PP+1}, s{SRD_PP+1}, 0
    s_mov_b32 s{SRD_PP+2}, {10 << 20}
    s_mov_b32 s{SRD_PP+3}, 0x00020000
    s_add_u32 s{SRD_FL}, s{SRD_FL}, {WS_F}
    s_addc_u32 s{SRD_FL+1}, s{SRD_FL+1}, 0
    s_mov_b32 s{SRD_FL+2}, 16384
    s_mov_b32 s{SRD_FL+3}, 0x00020000
    s_mov_b32 s{SRD_O+2}, {5 << 20}
    s_mov_b32 s{SRD_O+3}, 0x00020000
    s_mov_b32 s{SRD_WO+2}, {4096*1024}
    s_mov_b32 s{SRD_WO+3}, 0x00020000
    s_mov_b32 s{SRD_DBG+2}, 256
    s_mov_b32 s{SRD_DBG+3}, 0x00020000
    s_mov_b32 s{SRD_OUT+2}, {640*1024}
    s_mov_b32 s{SRD_OUT+3}, 0x00020000
    s_lshl_b32 s30, s{S_B}, 2
    s_add_u32 s30, s30, s{S_R}               ; b*4+r
    s_lshl_b32 s{S_F2}, s30, 7
    s_add_u32 s{S_F2}, s{S_F2}, 8192
    s_lshl_b32 s{S_POFF}, s{S_G}, 19
    s_lshl_b32 s30, s30, 14
    s_add_u32 s{S_POFF}, s{S_POFF}, s30
    s_lshl_b32 s30, s{S_W}, 12
    s_add_u32 s{S_POFF}, s{S_POFF}, s30
    v_lshlrev_b32 v{V_L16}, 4, v1
    """)
    A(f"s_cmp_eq_u32 s{S_W}, 0")
    A("s_cbranch_scc0 L_noclr")
    A(f"s_lshl_b32 s{S_T0}, s{S_R}, 2")
    A(f"s_add_u32 s{S_T0}, s{S_T0}, s{S_F1}")
    A(f"s_lshl_b32 s{S_T1}, s{S_G}, 2")
    A(f"s_add_u32 s{S_T1}, s{S_T1}, s{S_F2}")
    A("v_mov_b32 v2, 0")
    one_lane(A, [f"buffer_store_dword v2, off, {sr(SRD_FL,4)}, s{S_T0} sc1", f"buffer_store_dword v2, off, {sr(SRD_FL,4)}, s{S_T1} sc1"])
    A.label("L_noclr")
    A(f"""
    v_xor_b32 v7, v4, v3
    v_lshlrev_b32 v7, 4, v7
    v_lshl_add_u32 v7, v3, 8, v7            ; n*256 + (gq^n)*16
    """)
    for s in range(4):
        A(f"v_xor_b32 v{VX+s}, {64*s}, v7")
        A(f"v_add_u32 v{VX+4+s}, 0x10000, v{VX+s}")
        A(f"v_add_u32 v{V_KA+s}, s{S_RW}, v{VX+s}")
    A(f"""
    v_lshl_add_u32 v8, v4, 3, v5
    s_lshl_b32 s30, s{S_W}, 2
    v_add_u32 v9, s30, v6
    v_lshlrev_b32 v2, 2, v5
    v_xor_b32 v9, v9, v2
    v_lshlrev_b32 v9, 4, v9
    v_lshl_add_u32 v9, v8, 8, v9
    v_add_u32 v{VAW}, 0x10000, v9
    v_add_u32 v{VAW+1}, 0x20000, v9
    v_lshl_add_u32 v8, v4, 2, v5
    v_and_b32 v9, 7, v8
    v_lshlrev_b32 v9, 5, v9
    v_lshl_add_u32 v9, v8, 8, v9
    v_lshl_add_u32 v9, v6, 3, v9
    """)
    for dt in range(8):
        A(f"v_xor_b32 v{V_VA+dt}, {32*dt}, v9")
        A(f"v_add_u32 v{V_VA+dt}, s{S_RW}, v{V_VA+dt}")
    A(f"""
    v_xor_b32 v9, v3, v4
    v_lshlrev_b32 v9, 4, v9
    v_lshl_add_u32 v9, v4, 8, v9
    """)
    for i in range(4): A(f"v_xor_b32 v{V_KD+i}, {64*i}, v9")
    A(f"""
    v_lshlrev_b32 v9, 1, v4
    v_xor_b32 v9, v3, v9
    v_lshlrev_b32 v9, 4, v9
    v_lshl_add_u32 v{V_VD}, v4, 8, v9
    v_xor_b32 v{V_VD+1}, 128, v{V_VD}
    """)
    for i in range(160): A(f"v_accvgpr_write_b32 a{A_O+i}, 0")
    for i in range(10): A(f"v_mov_b32 v{V_L+i}, 0")
    for i in range(32): A(f"v_mov_b32 v{V_VF+i}, 0")
    for i in range(4): A(f"v_mov_b32 v{V_P+i}, 0")
    for i in range(8): A(f"v_mov_b32 v{V_S+8+i}, 0xff7fffff")
    A("s_waitcnt vmcnt(13)")
    A("s_barrier")
    stamp(A, 1)
    bar = lambda n: ([f"s_waitcnt vmcnt({n})"] if n is not None else []) + ["s_barrier"]
    arrive = [f"s_cmp_eq_u32 s{S_W}, 0", "s_cbranch_scc0 L_noarr", f"s_lshr_b32 s{S_T0}, s{S_F1}, 5", "v_mov_b32 v2, 1", "s_mov_b64 exec, 1",
              f"buffer_atomic_add v2, off, {sr(SRD_DBG,4)}, s{S_T0} sc1", "s_mov_b64 exec, -1", "L_noarr:"]
    plan = {1: dict(pre=bar(9), fill=wdma(3) + xdma(2)), 3: dict(pre=bar(9) + arrive, fill=wdma(4)), 5: dict(pre=bar(9), fill=wdma(5) + xdma(3)),
            7: dict(pre=bar(9), fill=wdma(6)), 9: dict(pre=bar(9), fill=wdma(7) + off_calc() + with_m0_gap(kv_dma('K', 0))),
            11: dict(pre=bar(12), fill=with_m0_gap(kv_dma('V', 0))), 13: dict(pre=bar(16)),
            15: dict(pre=bar(None), fill=off_calc() + with_m0_gap(kv_dma('K', 1)) + with_m0_gap(kv_dma('V', 1)))}
    gemm_core(A, ACC, FA, FB, xread, wread, plan)
    stamp(A, 2)
    A(f"s_mov_b32 s30, {hex(f32(C_SCALE))}")
    A(f"v_add_u32 v8, s{S_W1K}, v{V_L16}")
    A(f"v_add_u32 v8, {LE}, v8")
    A("s_nop 3")
    for t in range(5):
        for jt in range(2):
            d = ACC + (jt*5 + t)*4
            for r in range(4): A(f"v_mul_f32 v{d+r}, s30, v{d+r}")
        q = FB[0] + 4*t
        for jt in range(2):
            d = ACC + (jt*5 + t)*4
            A(f"v_cvt_pk_bf16_f32 v{q+2*jt}, v{d}, v{d+1}")
            A(f"v_cvt_pk_bf16_f32 v{q+2*jt+1}, v{d+2}, v{d+3}")
        A(f"ds_write_b128 v8, {vr(q,4)} offset:{t*4096}")
    A("s_waitcnt vmcnt(24) lgkmcnt(0)")
    A("s_barrier")
    A(f"v_add_u32 v8, {LE}, v{V_L16}")
    ST = 188
    if OPT['standin']:
        for s in range(4): A(f"ds_read_b128 {vr(ST+4*s,4)}, v{VX+s} offset:{K0}")
    for t in range(5):
        for s in range(4): A(f"ds_read_b128 {ar(A_Q+(t*4+s)*4,4)}, v8 offset:{(t*4+s)*1024}")
    for p in range(8): A(k_read(p, 0))
    VL2, VA2, VWD2, VCHK = 244, 245, 247, 248
    A(f"""
    v_lshl_add_u32 v8, v4, 2, v5
    s_lshl_b32 s30, s{S_W}, 2
    v_add_u32 v9, s30, v6
    v_lshlrev_b32 v2, 2, v5
    v_xor_b32 v9, v9, v2
    v_lshlrev_b32 v9, 4, v9
    v_lshl_add_u32 v9, v8, 8, v9
    v_add_u32 v8, s30, v4
    v_lshlrev_b32 v2, 2, v4
    v_xor_b32 v2, v3, v2
    v_lshlrev_b32 v2, 4, v2
    """)
    if OPT['standin']:
        A("s_waitcnt lgkmcnt(8)")
        for t in range(5):
            for s in range(4):
                d = V_NEG + 4*t
                A(f"v_mfma_f32_16x16x32_bf16 {vr(d,4)}, {vr(ST+4*s,4)}, {ar(A_Q+(t*4+s)*4,4)}, {'0' if s == 0 else vr(d,4)}")
    A(f"v_add_u32 v{VA2}, 0x10000, v9")
    A(f"v_add_u32 v{VA2+1}, 0x20000, v9")
    A(f"v_lshl_add_u32 v{VWD2}, v8, 10, v2")
    A(f"v_add_u32 v{VL2}, 0x10000, v{V_L16}")
    if OPT['standin']:
        T = 204
        A("s_nop 4")
        for t in range(5):
            d = V_NEG + 4*t
            A(f"v_max3_f32 v{T+t}, v{d}, v{d+1}, v{d+2}")
        for t in range(5): A(f"v_max_f32 v{T+t}, v{T+t}, v{V_NEG+4*t+3}")
        for swap in ("v_permlane32_swap_b32", "v_permlane16_swap_b32"):
            for t in range(5): A(f"v_mov_b32 v{T+8+t}, v{T+t}")
            for t in range(5): A(f"{swap} v{T+t}, v{T+8+t}")
            for t in range(5): A(f"v_max_f32 v{T+t}, v{T+t}, v{T+8+t}")
        for t in range(5):
            for r in range(4): A(f"v_xor_b32 v{V_NEG+4*t+r}, 0x80000000, v{T+t}")
    else:
        for i in range(20): A(f"v_mov_b32 v{V_NEG+i}, 0")
    A("s_waitcnt lgkmcnt(0)")
    A("s_barrier")
    A(f"s_mov_b32 s{S_CNT}, 8")
    stamp(A, 3)
    stamp_cyc(A, 20)
    A.raw(".p2align 6")
    A.label("L_loop")
    for k in range(10): main_stage(A, k)
    A(f"s_sub_u32 s{S_CNT}, s{S_CNT}, 1")
    A(f"s_cmp_lg_u32 s{S_CNT}, 0")
    A("s_cbranch_scc1 L_loop")
    stamp(A, 4)
    stamp_cyc(A, 21)
    xarea2 = lambda a, t: (a * 5 + t) * 4096
    wslot = [LE, LE + 16384, 81920, 98304, 114688]
    wblk2 = lambda u, e: wslot[u % 5] + 8192 * e
    def wdma2(u):
        l = [f"s_lshl_b32 s{S_T0}, s{S_R}, 1", f"s_add_u32 s{S_T0}, s{S_T0}, {u}", f"s_and_b32 s{S_T0}, s{S_T0}, 7", f"s_lshl_b32 s{S_T0}, s{S_T0}, 16",
             f"s_lshl_b32 s{S_T1}, s{S_G}, 19", f"s_add_u32 s{S_T0}, s{S_T0}, s{S_T1}", f"s_lshl_b32 s{S_T1}, s{S_R}, 8", f"s_add_u32 s{S_WK}, s{S_T0}, s{S_T1}"]
        for e in range(2):
            for hh in range(2):
                l += [f"s_add_u32 m0, s{S_W1K}, {wblk2(u, e) + 4096*hh}", f"s_add_u32 s{S_T0}, s{S_WK}, {(32*e + 16*hh)*1024}",
                      f"buffer_load_dwordx4 v{VWD2}, {sr(SRD_WO,4)}, s{S_T0} offen lds"]
        return l
    def xdma2(a):
        l = [f"s_add_u32 s{S_T0}, s{S_R}, {a}", f"s_and_b32 s{S_T0}, s{S_T0}, 3", f"s_lshl_b32 s{S_T0}, s{S_T0}, 2",
             f"s_add_u32 s{S_T0}, s{S_T0}, s{S_W}", f"s_mul_i32 s{S_T0}, s{S_T0}, 5120", f"s_add_u32 s{S_XOFF}, s{S_T0}, s{S_XB}"]
        for t in range(5):
            l += [f"s_add_u32 m0, s{S_W1K}, {xarea2(a, t)}", f"s_add_u32 s{S_T0}, s{S_XOFF}, {t*1024}",
                  f"buffer_load_dwordx4 v{V_L16}, {sr(SRD_O,4)}, s{S_T0} offen sc1 lds"]
        return l
    def xread2(ks, t, dst):
        p = xarea2(ks >> 2, t) + (ks & 3) * 1024
        return f"ds_read_b128 {vr(dst,4)}, v{V_L16 if p < 65536 else VL2} offset:{p & 0xffff}"
    def wread2(ks, jt, hf, dst):
        p = wblk2(ks >> 1, ks & 1)
        return f"ds_read_b64_tr_b16 {vr(dst,2)}, v{VA2 + (p >> 16) - 1} offset:{(p & 0xffff) + 4096*hf + 8*jt}"
    A(f"s_lshl_b32 s{S_T2}, s{S_B}, 5")
    A(f"buffer_load_dwordx4 {vr(VCHK,4)}, off, {sr(SRD_DBG,4)}, s{S_T2} sc1")
    A(f"buffer_load_dwordx4 {vr(VCHK+4,4)}, off, {sr(SRD_DBG,4)}, s{S_T2} offset:16 sc1")
    for x in wdma2(0) + wdma2(1): A(x)
    A(f"s_lshl_b32 s30, s{S_B}, 7")
    A(f"s_lshl_b32 s31, s{S_G}, 4")
    A(f"s_add_u32 s30, s30, s31")
    A(f"s_mul_i32 s{S_XB}, s30, 5120")
    va = sm_valu(4, 1)
    for p in range(16):
        if p >= 8: A(pv_mfma(p - 8, 3, 0))
        for x in va[p]: A(x)
        if p < 8 and p % 4 in (1,): A("s_nop 0")
    A("s_nop 1")
    for dt in range(8): A(pv_mfma(dt, 4, 1))
    A.label("L_combine")
    XL = 122880
    A("s_waitcnt vmcnt(0)")
    A("s_barrier")
    A(f"v_lshlrev_b32 v8, 2, v1")
    A(f"s_mul_i32 s30, s{S_W}, 1280")
    A(f"s_add_u32 s30, s30, {XL}")
    A(f"v_add_u32 v9, s30, v8")
    for t in range(5): A(f"v_add_f32 v{V_L+2*t}, v{V_L+2*t}, v{V_L+2*t+1}")
    for t in range(5): A(f"ds_write_b32 v9, v{V_L+2*t} offset:{256*t}")
    TO = 60
    for d in range(4):
        A(f"s_cmp_eq_u32 s{S_W}, {d}")
        A(f"s_cbranch_scc1 L_own{d}")
        A(f"s_sub_u32 s30, s{S_W}, {d+1}")
        A(f"s_and_b32 s30, s30, 3")
        A(f"s_mul_i32 s30, s30, 10240")
        A(f"s_add_u32 s30, s30, {d*30720}")
        A(f"v_add_u32 v9, s30, v{V_L16}")
        for t in range(5):
            for j in range(2):
                A(f"ds_write_b128 v9, {ar(A_O + (t*8 + 2*d + j)*4, 4)} offset:{(t*2+j)*1024}")
        A(f"s_branch L_nxt{d}")
        A.label(f"L_own{d}")
        for t in range(5):
            for j in range(2):
                for r in range(4): A(f"v_accvgpr_read_b32 v{TO + (t*2+j)*4 + r}, a{A_O + (t*8 + 2*d + j)*4 + r}")
        A.label(f"L_nxt{d}")
    A("s_waitcnt lgkmcnt(0)")
    A("s_barrier")
    stamp(A, 5)
    TL = 100
    A(f"v_add_u32 v9, {XL}, v8")
    for w in range(4):
        for t in range(5): A(f"ds_read_b32 v{TL + w*5 + t}, v9 offset:{w*1280 + t*256}")
    TR = 120
    A(f"s_mul_i32 s30, s{S_W}, 30720")
    A(f"v_add_u32 v9, s30, v{V_L16}")
    for sl in range(3):
        for q in range(10): A(f"ds_read_b128 {vr(TR + (sl*10 + q)*4, 4)}, v9 offset:{(sl*10+q)*1024}")
    A("s_waitcnt lgkmcnt(0)")
    A("s_barrier")
    for t in range(5):
        A(f"v_add_f32 v{TL+t}, v{TL+t}, v{TL+5+t}")
        A(f"v_add_f32 v{TL+10+t}, v{TL+10+t}, v{TL+15+t}")
    for t in range(5): A(f"v_add_f32 v{TL+t}, v{TL+t}, v{TL+10+t}")
    for swap in ("v_permlane32_swap_b32", "v_permlane16_swap_b32"):
        for t in range(5): A(f"v_mov_b32 v{TL+8+t}, v{TL+t}")
        for t in range(5): A(f"{swap} v{TL+t}, v{TL+8+t}")
        for t in range(5): A(f"v_add_f32 v{TL+t}, v{TL+t}, v{TL+8+t}")
    if OPT['fallback']:
        A(f"v_add_f32 v{TL+9}, v{TL}, v{TL+1}")
        A(f"v_add_f32 v{TL+9}, v{TL+9}, v{TL+2}")
        A(f"v_add_f32 v{TL+9}, v{TL+9}, v{TL+3}")
        A(f"v_add_f32 v{TL+9}, v{TL+9}, v{TL+4}")
        A(f"s_mov_b32 s30, {hex(f32(2.0**40))}")
        A(f"v_cmp_ngt_f32 vcc, s30, v{TL+9}")
        A("s_nop 4")
        A("s_cmp_eq_u64 vcc, 0")
        A("s_cbranch_scc1 L_sum_ok")
        A(f"s_cmp_eq_u32 s{S_FB}, 0")
        A("s_cbranch_scc1 L_fallback")
        A.label("L_sum_ok")
    for x in wdma2(2): A(x)
    for t in range(5): A(f"v_rcp_f32 v{TL+t}, v{TL+t}")
    for sl in range(3):
        for q in range(40): A(f"v_add_f32 v{TO+q}, v{TO+q}, v{TR + sl*40 + q}")
    for t in range(5):
        for q in range(8): A(f"v_mul_f32 v{TO + t*8 + q}, v{TO + t*8 + q}, v{TL+t}")
    for t in range(5):
        q = TR + 4*t
        for i in range(4): A(f"v_cvt_pk_bf16_f32 v{q+i}, v{TO + t*8 + 2*i}, v{TO + t*8 + 2*i + 1}")
    stamp(A, 6)
    A(f"s_lshl_b32 s30, s{S_R}, 2")
    A(f"s_add_u32 s30, s30, s{S_W}")
    A(f"s_mul_i32 s30, s30, 5120")
    A(f"s_add_u32 s30, s30, s{S_XB}")
    for t in range(5):
        if t == 4: A("s_add_u32 s30, s30, 4096")
        A(f"buffer_store_dwordx4 {vr(TR+4*t,4)}, v{V_L16}, {sr(SRD_O,4)}, s30 offen offset:{(t*1024) & 4095} sc1")
    A(f"v_add_u32 v8, s{S_W1K}, v{V_L16}")
    for t in range(5): A(f"ds_write_b128 v8, {vr(TR+4*t,4)} offset:{xarea2(0, t)}")
    for x in wdma2(3) + wdma2(4): A(x)
    A("s_waitcnt vmcnt(8) lgkmcnt(0)")
    A("s_barrier")
    A(f"s_cmp_eq_u32 s{S_W}, 0")
    A("s_cbranch_scc0 L_noflag1")
    A(f"s_lshl_b32 s{S_T0}, s{S_R}, 2")
    A(f"s_add_u32 s{S_T0}, s{S_T0}, s{S_F1}")
    A("v_mov_b32 v2, 1")
    one_lane(A, [f"buffer_store_dword v2, off, {sr(SRD_FL,4)}, s{S_T0} sc1"])
    A.label("L_noflag1")
    stamp(A, 7)
    def wait_group(A):
        for i in range(8): A(f"v_xor_b32 v{VCHK+i}, 4, v{VCHK+i}")
        for i in range(1, 8): A(f"v_or_b32 v{VCHK}, v{VCHK}, v{VCHK+i}")
        A("s_nop 0")
        A(f"v_readfirstlane_b32 s{S_T0}, v{VCHK}")
        A("s_nop 3")
        A(f"s_cmp_eq_u32 s{S_T0}, 0")
        A("s_cbranch_scc1 L_done_init")
        A(f"s_lshl_b32 s{S_T2}, s{S_B}, 5")
        poll(A, "init", SRD_DBG, S_T2, 8, 4, VCHK)
        poll(A, "f1", SRD_FL, S_F1, 4, 1, VCHK)
        stamp(A, 8)
        for x in xdma2(1) + xdma2(2) + xdma2(3): A(x)
        A("s_waitcnt vmcnt(10)")
        A("s_barrier")
        stamp(A, 9)
    plan2 = {1: dict(pre=["s_barrier"], fill=wdma2(5)),
             3: dict(pre=["s_barrier"], fill=wdma2(6), late=wait_group),
             5: dict(pre=["s_barrier"], fill=wdma2(7)),
             7: dict(pre=["s_waitcnt vmcnt(9)", "s_barrier"]),
             11: dict(pre=["s_waitcnt vmcnt(4)", "s_barrier"]),
             13: dict(pre=["s_waitcnt vmcnt(0)", "s_barrier"])}
    gemm_core(A, ACC, FA, FB, xread2, wread2, plan2)
    stamp(A, 10)
    A(f"""
    s_lshl_b32 s30, s{S_B}, 2
    s_add_u32 s30, s30, s{S_R}
    s_lshl_b32 s30, s30, 2
    s_mul_i32 s{S_XB}, s30, 81920
    s_mul_i32 s30, s{S_W}, 81920
    s_add_u32 s30, s30, s{S_XB}
    s_lshl_b32 s31, s{S_G}, 10
    s_add_u32 s30, s30, s31
    """)
    for q in (0, 5, 1, 6, 2, 7, 3, 8, 4, 9):
        A(f"s_add_u32 s31, s30, {q*8192}")
        A(f"buffer_store_dwordx4 {vr(ACC+4*q,4)}, v{V_L16}, {sr(SRD_PP,4)}, s31 offen sc1")
    A("s_waitcnt vmcnt(0)")
    A("s_barrier")
    A(f"s_cmp_eq_u32 s{S_W}, 0")
    A("s_cbranch_scc0 L_noflag2")
    A(f"s_lshl_b32 s{S_T0}, s{S_G}, 2")
    A(f"s_add_u32 s{S_T0}, s{S_T0}, s{S_F2}")
    A("v_mov_b32 v2, 1")
    one_lane(A, [f"buffer_store_dword v2, off, {sr(SRD_FL,4)}, s{S_T0} sc1"])
    A.label("L_noflag2")
    stamp(A, 11)
    A(f"s_lshl_b32 s30, s{S_W}, 3")
    A(f"s_add_u32 s30, s30, s{S_G}")
    A("s_cmp_ge_u32 s30, 20")
    A("s_cbranch_scc1 L_fin")
    poll(A, "f2", SRD_FL, S_F2, 8, 1, VCHK)
    stamp(A, 12)
    A(f"s_mul_hi_u32 s31, s30, {(1 << 32)//5 + 1}")
    A(f"s_mul_i32 s{S_T0}, s31, 5")
    A(f"s_sub_u32 s{S_T1}, s30, s{S_T0}              ; t")
    A(f"s_mul_i32 s{S_T0}, s31, 81920")
    A(f"s_add_u32 s{S_T0}, s{S_T0}, s{S_XB}")
    A(f"s_lshl_b32 s{S_T2}, s{S_T1}, 13")
    A(f"s_add_u32 s{S_T0}, s{S_T0}, s{S_T2}")
    RB = 60
    for jt in range(2):
        for g in range(8):
            if g % 4 == 0: A(f"s_add_u32 s{S_T2}, s{S_T0}, {jt*5*8192 + g*1024}")
            A(f"buffer_load_dwordx4 {vr(RB + (jt*8+g)*4, 4)}, v{V_L16}, {sr(SRD_PP,4)}, s{S_T2} offen offset:{(g%4)*1024} sc1")
    A(f"""
    s_mul_i32 s{S_T0}, s{S_B}, 80
    s_lshl_b32 s{S_T1}, s{S_T1}, 4
    s_add_u32 s{S_T0}, s{S_T0}, s{S_T1}
    v_add_u32 v8, s{S_T0}, v3
    v_lshlrev_b32 v8, 10, v8
    s_lshl_b32 s{S_T0}, s{S_R}, 2
    s_add_u32 s{S_T0}, s{S_T0}, s31
    s_lshl_b32 s{S_T0}, s{S_T0}, 6
    v_lshl_add_u32 v8, v4, 4, v8
    v_add_u32 v8, s{S_T0}, v8
    """)
    for jt in range(2):
        A(f"s_waitcnt vmcnt({8 if jt == 0 else 0})")
        b = RB + jt*32
        for g in range(1, 8):
            for r in range(4): A(f"v_add_f32 v{b+r}, v{b+r}, v{b+4*g+r}")
    A(f"v_cvt_pk_bf16_f32 v{RB+64}, v{RB}, v{RB+1}")
    A(f"v_cvt_pk_bf16_f32 v{RB+65}, v{RB+2}, v{RB+3}")
    A(f"v_cvt_pk_bf16_f32 v{RB+66}, v{RB+32}, v{RB+33}")
    A(f"v_cvt_pk_bf16_f32 v{RB+67}, v{RB+34}, v{RB+35}")
    A(f"buffer_store_dwordx4 {vr(RB+64,4)}, v8, {sr(SRD_OUT,4)}, 0 offen")
    A.label("L_fin")
    A("s_waitcnt vmcnt(0)")
    stamp(A, 13)
    stamp_out(A)
    A.label("L_end")
    A("s_endpgm")
    if OPT['fallback']: gen_fallback(A)
    return A.text()

def gen_fallback(A):
    M, AL, T = V_NEG, V_NEG + 8, 148
    SF = 160
    A.label("L_fallback")
    A(f"s_mov_b32 s{S_FB}, 1")
    for i in range(160): A(f"v_accvgpr_write_b32 a{A_O+i}, 0")
    for i in range(10): A(f"v_mov_b32 v{V_L+i}, 0")
    for t in range(5): A(f"v_mov_b32 v{M+t}, 0xff7fffff")
    A(f"s_mov_b32 s{S_CNT}, 16")
    A(f"s_mov_b32 s{S_OFF}, s{S_W8}")
    A.label("L_fb_loop")
    A(f"s_add_u32 s{S_OFF2}, s{S_OFF}, 4096")
    for x in with_m0_gap(kv_dma('K', 0)) + with_m0_gap(kv_dma('V', 0)): A(x)
    A("s_waitcnt vmcnt(0)")
    for p in range(8): A(k_read(p, 0))
    for dt in range(8):
        for hf in range(2): A(v_read(dt, hf, 0))
    A("s_waitcnt lgkmcnt(0)")
    for t in range(5):
        for p in range(8):
            kt, s = p >> 2, p & 3
            d = SF + 8*t + 4*kt
            A(f"v_mfma_f32_16x16x32_bf16 {vr(d,4)}, {vr(V_KF+4*p,4)}, {ar(A_Q+(t*4+s)*4,4)}, {'0' if s == 0 else vr(d,4)}")
    A("s_nop 7")
    for t in range(5):
        d = SF + 8*t
        A(f"v_max3_f32 v{T+t}, v{d}, v{d+1}, v{d+2}")
        A(f"v_max3_f32 v{T+t}, v{T+t}, v{d+3}, v{d+4}")
        A(f"v_max3_f32 v{T+t}, v{T+t}, v{d+5}, v{d+6}")
        A(f"v_max3_f32 v{T+t}, v{T+t}, v{d+7}, v{M+t}")
    A("s_nop 1")
    for swap in ("v_permlane32_swap_b32", "v_permlane16_swap_b32"):
        for t in range(5): A(f"v_mov_b32 v{T+5+t}, v{T+t}")
        for t in range(5): A(f"{swap} v{T+t}, v{T+5+t}")
        for t in range(5): A(f"v_max_f32 v{T+t}, v{T+t}, v{T+5+t}")
    for t in range(5): A(f"v_sub_f32 v{AL+t}, v{M+t}, v{T+t}")
    for t in range(5): A(f"v_exp_f32 v{AL+t}, v{AL+t}")
    for t in range(5): A(f"v_mov_b32 v{M+t}, v{T+t}")
    for t in range(5):
        for i in range(8): A(f"v_sub_f32 v{SF+8*t+i}, v{SF+8*t+i}, v{M+t}")
    for t in range(5):
        for i in range(8): A(f"v_exp_f32 v{SF+8*t+i}, v{SF+8*t+i}")
    A("s_nop 0")
    for t in range(5):
        A(f"v_mul_f32 v{V_L+2*t}, v{V_L+2*t}, v{AL+t}")
        for i in range(8): A(f"v_add_f32 v{V_L+2*t}, v{V_L+2*t}, v{SF+8*t+i}")
    for t in range(5):
        for i in range(32):
            A(f"v_accvgpr_read_b32 v{T+10}, a{A_O+t*32+i}")
            A(f"v_mul_f32 v{T+10}, v{T+10}, v{AL+t}")
            A(f"v_accvgpr_write_b32 a{A_O+t*32+i}, v{T+10}")
    PF = 200
    for t in range(5):
        for i in range(4): A(f"v_cvt_pk_bf16_f32 v{PF+4*t+i}, v{SF+8*t+2*i}, v{SF+8*t+2*i+1}")
    A("s_nop 1")
    for t in range(5):
        for dt in range(8):
            o = A_O + (t*8 + dt)*4
            A(f"v_mfma_f32_16x16x32_bf16 {ar(o,4)}, {vr(V_VF+4*dt,4)}, {vr(PF+4*t,4)}, {ar(o,4)}")
    A("s_nop 7")
    A(f"s_add_u32 s{S_OFF}, s{S_OFF}, 0x8000")
    A(f"s_sub_u32 s{S_CNT}, s{S_CNT}, 1")
    A(f"s_cmp_lg_u32 s{S_CNT}, 0")
    A("s_cbranch_scc1 L_fb_loop")
    XL = 0
    A("s_barrier")
    A(f"v_lshlrev_b32 v8, 2, v1")
    A(f"s_mul_i32 s30, s{S_W}, 1280")
    A(f"s_add_u32 s30, s30, {XL}")
    A(f"v_add_u32 v9, s30, v8")
    for t in range(5): A(f"ds_write_b32 v9, v{M+t} offset:{256*t}")
    A("s_waitcnt lgkmcnt(0)")
    A("s_barrier")
    for w in range(4):
        for t in range(5): A(f"ds_read_b32 v{SF + w*5 + t}, v8 offset:{XL + w*1280 + t*256}")
    A("s_waitcnt lgkmcnt(0)")
    for t in range(5):
        A(f"v_max3_f32 v{T+t}, v{SF+t}, v{SF+5+t}, v{SF+10+t}")
        A(f"v_max_f32 v{T+t}, v{T+t}, v{SF+15+t}")
        A(f"v_sub_f32 v{AL+t}, v{M+t}, v{T+t}")
    for t in range(5): A(f"v_exp_f32 v{AL+t}, v{AL+t}")
    A("s_nop 0")
    for t in range(5):
        A(f"v_mul_f32 v{V_L+2*t}, v{V_L+2*t}, v{AL+t}")
        A(f"v_mov_b32 v{V_L+2*t+1}, 0")
        for i in range(32):
            A(f"v_accvgpr_read_b32 v{T+10}, a{A_O+t*32+i}")
            A(f"v_mul_f32 v{T+10}, v{T+10}, v{AL+t}")
            A(f"v_accvgpr_write_b32 a{A_O+t*32+i}, v{T+10}")
    A("s_branch L_combine")

def build():
    s = HEADER + "; @launch grid=(256,1,1) block=(256,1,1) lds=163840\n"
    s += '.amdgcn_target "amdgcn-amd-amdhsa--gfx950"\n.text\n' + kernel_start(NAME) + gen()
    s += '.section .rodata,"a"\n.p2align 6\n' + kernel_desc(NAME, 512, 256, 102)
    return s

if __name__ == "__main__":
    out = sys.argv[1]
    for kv in sys.argv[2:]:
        k_, v_ = kv.split("=")
        OPT[k_] = eval(v_)
    open(out, "w").write(build())
```

```python
import sys, struct, math
from lib import *

def f32(x): return struct.unpack("<I", struct.pack("<f", x))[0]
C_SCALE = math.log2(math.e) / math.sqrt(128.0)
NAME = "standalone__gqa_block_cached__near_ridge_kernel"

WS_O = 0
WS_P = 8 << 20
WS_F = 24 << 20
WS_ST = 64 << 20
OPT = dict(standin=True, fallback=True, stamps=False, nodma=False, nods=False, novalu=False, nowait=False, wopf=True)

V_KA, V_VA, V_KD, V_VD, V_L, V_L16, V_NEG, V_S, V_P, V_KF, V_VF = 10, 14, 22, 26, 28, 38, 40, 60, 76, 84, 116
A_O, A_Q = 0, 160
S_G, S_B, S_R, S_W, S_H, S_RW = 24, 25, 26, 27, 28, 29
S_T, S_R15, S_W8, S_END, S_OFF, S_OFF2, S_CNT, S_W1K, S_XOFF, S_WK, S_ROT, S_FB = 32, 33, 34, 35, 36, 37, 38, 39, 40, 41, 42, 43
S_T0, S_T1, S_T2, S_SPIN = 60, 61, 62, 63
SRD_X, SRD_K, SRD_V, SRD_W, SRD_O, SRD_WO, SRD_PP, SRD_FL, SRD_DBG, SRD_OUT = 4, 8, 12, 16, 20, 44, 48, 52, 56, 84
S_POFF, S_F1, S_F2, S_XB = 88, 89, 90, 91
K0, K1s, V0, V1 = 0, 8192, 16384, 24576
LE = 131072
SPIN_MAX = 20000

def stamp(A, i):
    if not OPT['stamps']: return
    A(f"s_memrealtime s[{64+2*(i%10)}:{65+2*(i%10)}]")
    A("s_waitcnt lgkmcnt(0)")
    A(f"v_writelane_b32 v39, s{64+2*(i%10)}, {i}")
def stamp_cyc(A, i):
    if not OPT['stamps']: return
    A(f"s_memtime s[{64+2*(i%10)}:{65+2*(i%10)}]")
    A("s_waitcnt lgkmcnt(0)")
    A(f"v_writelane_b32 v39, s{64+2*(i%10)}, {i}")
def stamp_out(A):
    if not OPT['stamps']: return
    A("s_load_dwordx2 s[92:93], s[0:1], 56")
    A("s_waitcnt lgkmcnt(0)")
    A(f"s_add_u32 s92, s92, {WS_ST}")
    A("s_addc_u32 s93, s93, 0")
    A("s_mov_b32 s94, 0x100000")
    A("s_mov_b32 s95, 0x00020000")
    A("s_lshl_b32 s96, s2, 2")
    A(f"s_add_u32 s96, s96, s{S_W}")
    A("s_lshl_b32 s96, s96, 8")
    A("v_lshlrev_b32 v2, 2, v1")
    A("buffer_store_dword v39, v2, s[92:95], s96 offen")
    A("s_waitcnt vmcnt(0)")

def gemm_core(A, acc, FA, FB, xread, wread, plan):
    def reads(ks):
        buf = ks & 1
        w = [wread(ks, jt, hf, FA[buf] + 4 * jt + 2 * hf) for jt in range(2) for hf in range(2)]
        x = [xread(ks, t, FB[buf] + 4 * t) for t in range(5)]
        return [w[0], w[1], x[0], w[2], w[3], x[1], x[2], x[3], x[4]]
    for r in reads(0): A(r)
    for ks in range(16):
        buf = ks & 1
        p = plan.get(ks, {})
        A("s_waitcnt lgkmcnt(0)")
        for x in p.get('pre', []): A(x)
        extra = list(p.get('fill', []))
        late = p.get('late')
        fill = reads(ks + 1) if (ks < 15 and late is None) else []
        m = 0
        for t in range(5):
            for jt in range(2):
                d = acc + (jt * 5 + t) * 4
                c = "0" if ks == 0 else vr(d, 4)
                A(f"v_mfma_f32_16x16x32_bf16 {vr(d,4)}, {vr(FA[buf]+4*jt,4)}, {vr(FB[buf]+4*t,4)}, {c}")
                if fill: A(fill.pop(0))
                k = (len(extra) + (9 - m)) // (10 - m) if extra else 0
                for _ in range(min(k, len(extra))): A(extra.pop(0))
                m += 1
        for e in extra: A(e)
        if late is not None:
            late(A) if callable(late) else [A(x) for x in late]
            if ks < 15:
                for r in reads(ks + 1): A(r)

def off_calc():
    return [f"s_add_u32 s{S_T0}, s{S_T}, s{S_R15}",
            f"s_and_b32 s{S_T0}, s{S_T0}, 0x18000",
            f"s_and_b32 s{S_T1}, s{S_T}, 0x60000",
            f"s_or_b32 s{S_T0}, s{S_T0}, s{S_T1}",
            f"s_or_b32 s{S_OFF}, s{S_T0}, s{S_W8}",
            f"s_cmp_ge_u32 s{S_T}, s{S_END}",
            f"s_cselect_b32 s{S_OFF}, 0x80000, s{S_OFF}",
            f"s_add_u32 s{S_OFF2}, s{S_OFF}, 4096",
            f"s_add_u32 s{S_T}, s{S_T}, 0x8000"]
def kv_dma(which, slot):
    srd = SRD_K if which == 'K' else SRD_V
    base = (K0, K1s)[slot] if which == 'K' else (V0, V1)[slot]
    l = []
    for half in range(2):
        l.append(f"s_add_u32 m0, s{S_RW}, {base + 4096 * half}")
        so = S_OFF if half == 0 else S_OFF2
        for i in range(4):
            vo = V_KD + i if which == 'K' else V_VD + (i & 1)
            l.append(f"buffer_load_dwordx4 v{vo}, {sr(srd,4)}, s{so} offen offset:{1024*i} lds")
    return l
def with_m0_gap(l):
    out = []
    for x in l:
        out.append(x)
        if x.startswith("s_add_u32 m0"): out.append("s_nop 0")
    return out
def k_read(p, slot):
    kt, s = p >> 2, p & 3
    return f"ds_read_b128 {vr(V_KF + 4*p, 4)}, v{V_KA + s} offset:{(K0, K1s)[slot] + 4096*kt}"
def v_read(dt, hf, slot):
    return f"ds_read_b64_tr_b16 {vr(V_VF + 4*dt + 2*hf, 2)}, v{V_VA + dt} offset:{(V0, V1)[slot] + 4096*hf}"
def qk_mfma(p, tq, sbuf):
    kt, s = p >> 2, p & 3
    d = V_S + 8 * sbuf + 4 * kt
    c = vr(V_NEG + 4 * tq, 4) if s == 0 else vr(d, 4)
    return f"v_mfma_f32_16x16x32_bf16 {vr(d,4)}, {vr(V_KF + 4*p, 4)}, {ar(A_Q + (tq*4 + s)*4, 4)}, {c}"
def pv_mfma(dt, tp, pbuf):
    o = A_O + (tp * 8 + dt) * 4
    return f"v_mfma_f32_16x16x32_bf16 {ar(o,4)}, {vr(V_VF + 4*dt, 4)}, {vr(V_P + 4*pbuf, 4)}, {ar(o,4)}"
def sm_valu(ts, buf):
    S = V_S + 8 * buf; P = V_P + 4 * buf; L = V_L + 2 * ts
    g = [[] for _ in range(16)]
    for q in range(4):
        e0, e1 = S + 2 * q, S + 2 * q + 1
        g[4*q + 0].append(f"v_exp_f32 v{e0}, v{e0}")
        g[4*q + 1].append(f"v_exp_f32 v{e1}, v{e1}")
        g[4*q + 2].append(f"v_add_f32 v{L}, v{L}, v{e0}")
        g[4*q + 2].append(f"v_add_f32 v{L+1}, v{L+1}, v{e1}")
        g[4*q + 3].append(f"v_cvt_pk_bf16_f32 v{P + q}, v{e0}, v{e1}")
    return g

def main_stage(A, k):
    tq, ts, tp = k % 5, (k + 4) % 5, (k + 3) % 5
    nv = [[] for _ in range(16)]
    par = 0 if k < 5 else 1
    km = k % 5
    if km == 0:
        oc = off_calc()
        for i, x in enumerate(oc): nv[min(i // 2, 4)].append(x)
        d = kv_dma('K', par)
        for i, x in enumerate(d): nv[5 + i].append(x)
        if k == 0 and OPT['wopf']:
            nv[15] += [f"s_cmp_eq_u32 s{S_CNT}, 2", "s_cbranch_scc0 L_nopf", f"s_lshl_b32 s{S_T0}, s{S_W}, 12", f"s_add_u32 m0, s{S_T0}, {LE}", "s_nop 0"]
            nv[15] += [f"buffer_load_dwordx4 v{V_L16}, {sr(SRD_WO,4)}, s{S_POFF} offen offset:{1024*i} lds" for i in range(4)]
            nv[15] += ["L_nopf:"]
    if km == 1:
        nv[7].append("s_waitcnt vmcnt(24)")
        for dt in range(8): nv[8 + dt].append(v_read(dt, 0, par))
    if km == 2:
        for dt in range(8): nv[dt].append(v_read(dt, 1, par))
        for dt in range(8): nv[7 + dt].append(f"s_waitcnt lgkmcnt({7 - dt})")
    if km == 3:
        d = kv_dma('V', par)
        for i, x in enumerate(d): nv[i].append(x)
        nv[15].append("s_waitcnt vmcnt(24)")
    if km == 4:
        for p in range(8): nv[p].append(k_read(p, 1 - par))
        nv[15].append("s_waitcnt lgkmcnt(0)")
    va = sm_valu(ts, (k + 1) & 1)
    for p in range(16):
        A(qk_mfma(p, tq, k & 1) if p < 8 else pv_mfma(p - 8, tp, k & 1))
        for x in nv[p]:
            if x.endswith(":"): A.raw(x); continue
            if OPT['nodma'] and x.startswith("buffer_load"): continue
            if OPT['nods'] and x.startswith("ds_read"): continue
            if OPT['nowait'] and x.startswith("s_waitcnt"): continue
            A(x)
        if OPT['novalu']: continue
        for x in va[p]: A(x)

def poll(A, tag, srd, soff, nwords, want, vtmp):
    A(f"s_mov_b32 s{S_SPIN}, {SPIN_MAX}")
    A.label(f"L_poll_{tag}")
    for i in range(nwords // 4):
        A(f"buffer_load_dwordx4 {vr(vtmp + 4*i, 4)}, off, {sr(srd,4)}, s{soff} offset:{16*i} sc1")
    A("s_waitcnt vmcnt(0)")
    for i in range(1, nwords): A(f"v_min_u32 v{vtmp}, v{vtmp}, v{vtmp+i}")
    A("s_nop 0")
    A(f"v_readfirstlane_b32 s{S_T0}, v{vtmp}")
    A("s_nop 3")
    A(f"s_cmp_ge_u32 s{S_T0}, {want}")
    A(f"s_cbranch_scc1 L_done_{tag}")
    A(f"s_sub_u32 s{S_SPIN}, s{S_SPIN}, 1")
    A(f"s_cmp_eq_u32 s{S_SPIN}, 0")
    A(f"s_cbranch_scc1 L_done_{tag}")
    A("s_sleep 1")
    A(f"s_branch L_poll_{tag}")
    A.label(f"L_done_{tag}")

def one_lane(A, instrs):
    A("s_mov_b64 exec, 1")
    for x in instrs: A(x)
    A("s_mov_b64 exec, -1")

def gen():
    A = Asm()
    A("s_cmp_ge_u32 s2, 256")
    A("s_cbranch_scc1 L_end")
    stamp(A, 0)
    A(f"s_load_dwordx2 s[{SRD_X}:{SRD_X+1}], s[0:1], 0")
    A(f"s_load_dwordx2 s[{SRD_W}:{SRD_W+1}], s[0:1], 24")
    A(f"s_load_dwordx2 s[{SRD_K}:{SRD_K+1}], s[0:1], 8")
    A(f"s_load_dwordx2 s[{SRD_V}:{SRD_V+1}], s[0:1], 16")
    A(f"s_load_dwordx2 s[{SRD_WO}:{SRD_WO+1}], s[0:1], 32")
    A(f"s_load_dwordx2 s[{SRD_OUT}:{SRD_OUT+1}], s[0:1], 40")
    A(f"s_load_dwordx2 s[{SRD_DBG}:{SRD_DBG+1}], s[0:1], 48")
    A(f"s_load_dwordx2 s[{SRD_O}:{SRD_O+1}], s[0:1], 56")
    A(f"""
    v_lshrrev_b32 v2, 6, v0
    v_and_b32 v1, 63, v0
    s_and_b32 s{S_G}, s2, 7
    s_lshr_b32 s30, s2, 3
    v_readfirstlane_b32 s{S_W}, v2
    s_lshr_b32 s{S_B}, s30, 2
    s_and_b32 s{S_R}, s30, 3
    s_lshl_b32 s{S_H}, s{S_G}, 2
    s_add_u32 s{S_H}, s{S_H}, s{S_R}
    v_and_b32 v3, 15, v1
    v_lshrrev_b32 v4, 4, v1
    v_bfe_u32 v5, v1, 2, 2
    v_and_b32 v6, 3, v1
    s_lshl_b32 s{S_W1K}, s{S_W}, 10
    s_add_u32 s{S_ROT}, s{S_B}, s{S_R}
    s_and_b32 s{S_ROT}, s{S_ROT}, 3
    """)
    ACC, FA, FB, VX, VAW, VXD, VWD = 148, (188, 196), (204, 224), 244, 252, 254, 255
    A(f"""
    s_lshl_b32 s30, s{S_W}, 2
    v_add_u32 v8, s30, v4                   ; 4w+gq
    v_xor_b32 v9, v3, v8
    v_lshlrev_b32 v9, 4, v9
    v_lshl_add_u32 v{VXD}, v8, 10, v9
    v_lshlrev_b32 v9, 2, v4
    v_xor_b32 v9, v3, v9
    v_lshlrev_b32 v9, 4, v9
    v_lshl_add_u32 v{VWD}, v8, 13, v9
    s_mul_i32 s31, s{S_B}, 81920
    s_waitcnt lgkmcnt(0)
    s_mov_b32 s{SRD_X+2}, {640*1024}
    s_mov_b32 s{SRD_X+3}, 0x00020000
    s_mov_b32 s{SRD_W+2}, {512*8192}
    s_mov_b32 s{SRD_W+3}, 0x00020000
    """)
    pool1 = [w*32768 + V0 + h*4096 for w in range(4) for h in range(2)] + [K1s, K1s + 4096]
    pool2 = [w*32768 + K1s + h*4096 for w in (1, 2, 3) for h in range(2)] + [w*32768 + V1 + h*4096 for w in (0, 1) for h in range(2)]
    xarea = lambda a, t: (pool1 if a < 2 else pool2)[(a & 1) * 5 + t]
    wblk = lambda u, e: [[2*32768 + V1, 3*32768 + V1], [LE, LE + 8192], [LE + 16384, LE + 24576]][u % 3][e]
    def xdma(a):
        l = [f"s_add_u32 s{S_T0}, s{S_ROT}, {a}", f"s_and_b32 s{S_T0}, s{S_T0}, 3", f"s_lshl_b32 s{S_T0}, s{S_T0}, 8", f"s_add_u32 s{S_XOFF}, s{S_T0}, s31"]
        for t in range(5):
            l += [f"s_add_u32 m0, s{S_W1K}, {xarea(a, t)}", f"s_add_u32 s{S_T0}, s{S_XOFF}, {t*16384}",
                  f"buffer_load_dwordx4 v{VXD}, {sr(SRD_X,4)}, s{S_T0} offen lds"]
        return l
    def wdma(u):
        l = [f"s_lshl_b32 s{S_T0}, s{S_ROT}, 1", f"s_add_u32 s{S_T0}, s{S_T0}, {u}", f"s_and_b32 s{S_T0}, s{S_T0}, 7", f"s_lshl_b32 s{S_T0}, s{S_T0}, 19",
             f"s_lshl_b32 s{S_T1}, s{S_H}, 8", f"s_add_u32 s{S_WK}, s{S_T0}, s{S_T1}"]
        for e in range(2):
            for hh in range(2):
                l += [f"s_add_u32 m0, s{S_W1K}, {wblk(u, e) + 4096*hh}", f"s_add_u32 s{S_T0}, s{S_WK}, {(32*e + 16*hh)*8192}",
                      f"buffer_load_dwordx4 v{VWD}, {sr(SRD_W,4)}, s{S_T0} offen lds"]
        return l
    def xread(ks, t, dst):
        p = xarea(ks >> 2, t)
        return f"ds_read_b128 {vr(dst,4)}, v{VX + 4*(p >> 16) + (ks & 3)} offset:{p & 0xffff}"
    def wread(ks, jt, hf, dst):
        p = wblk(ks >> 1, ks & 1)
        return f"ds_read_b64_tr_b16 {vr(dst,2)}, v{VAW + (p >> 16) - 1} offset:{(p & 0xffff) + 1024*hf + 8*jt}"
    for x in xdma(0) + wdma(0) + wdma(1) + xdma(1) + wdma(2): A(x)
    A(f"""
    s_lshl_b32 s{S_RW}, s{S_W}, 15
    s_lshl_b32 s{S_W8}, s{S_W}, 13
    s_lshl_b32 s{S_R15}, s{S_R}, 15
    s_and_b32 s30, s{S_B}, 3
    s_lshl_b32 s{S_T}, s30, 15
    s_add_u32 s{S_END}, s{S_T}, 0x80000
    s_mov_b32 s{S_FB}, 0
    s_mov_b32 s{SRD_K+2}, 0x80000
    s_mov_b32 s{SRD_K+3}, 0x00020000
    s_mov_b32 s{SRD_V+2}, 0x80000
    s_mov_b32 s{SRD_V+3}, 0x00020000
    s_lshl_b32 s30, s{S_B}, 3
    s_add_u32 s30, s30, s{S_G}               ; b*8+g
    s_lshl_b32 s{S_F1}, s30, 7
    s_lshl_b32 s30, s30, 19
    s_add_u32 s{SRD_K}, s{SRD_K}, s30
    s_addc_u32 s{SRD_K+1}, s{SRD_K+1}, 0
    s_add_u32 s{SRD_V}, s{SRD_V}, s30
    s_addc_u32 s{SRD_V+1}, s{SRD_V+1}, 0
    s_mov_b32 s{SRD_PP}, s{SRD_O}
    s_mov_b32 s{SRD_PP+1}, s{SRD_O+1}
    s_mov_b32 s{SRD_FL}, s{SRD_O}
    s_mov_b32 s{SRD_FL+1}, s{SRD_O+1}
    s_add_u32 s{SRD_PP}, s{SRD_PP}, {WS_P}
    s_addc_u32 s{SRD_PP+1}, s{SRD_PP+1}, 0
    s_mov_b32 s{SRD_PP+2}, {10 << 20}
    s_mov_b32 s{SRD_PP+3}, 0x00020000
    s_add_u32 s{SRD_FL}, s{SRD_FL}, {WS_F}
    s_addc_u32 s{SRD_FL+1}, s{SRD_FL+1}, 0
    s_mov_b32 s{SRD_FL+2}, 16384
    s_mov_b32 s{SRD_FL+3}, 0x00020000
    s_mov_b32 s{SRD_O+2}, {5 << 20}
    s_mov_b32 s{SRD_O+3}, 0x00020000
    s_mov_b32 s{SRD_WO+2}, {4096*1024}
    s_mov_b32 s{SRD_WO+3}, 0x00020000
    s_mov_b32 s{SRD_DBG+2}, 256
    s_mov_b32 s{SRD_DBG+3}, 0x00020000
    s_mov_b32 s{SRD_OUT+2}, {640*1024}
    s_mov_b32 s{SRD_OUT+3}, 0x00020000
    s_lshl_b32 s30, s{S_B}, 2
    s_add_u32 s30, s30, s{S_R}               ; b*4+r
    s_lshl_b32 s{S_F2}, s30, 7
    s_add_u32 s{S_F2}, s{S_F2}, 8192
    s_lshl_b32 s{S_POFF}, s{S_G}, 19
    s_lshl_b32 s30, s30, 14
    s_add_u32 s{S_POFF}, s{S_POFF}, s30
    s_lshl_b32 s30, s{S_W}, 12
    s_add_u32 s{S_POFF}, s{S_POFF}, s30
    v_lshlrev_b32 v{V_L16}, 4, v1
    """)
    A(f"s_cmp_eq_u32 s{S_W}, 0")
    A("s_cbranch_scc0 L_noclr")
    A(f"s_lshl_b32 s{S_T0}, s{S_R}, 2")
    A(f"s_add_u32 s{S_T0}, s{S_T0}, s{S_F1}")
    A(f"s_lshl_b32 s{S_T1}, s{S_G}, 2")
    A(f"s_add_u32 s{S_T1}, s{S_T1}, s{S_F2}")
    A("v_mov_b32 v2, 0")
    one_lane(A, [f"buffer_store_dword v2, off, {sr(SRD_FL,4)}, s{S_T0} sc1", f"buffer_store_dword v2, off, {sr(SRD_FL,4)}, s{S_T1} sc1"])
    A.label("L_noclr")
    A(f"""
    v_xor_b32 v7, v4, v3
    v_lshlrev_b32 v7, 4, v7
    v_lshl_add_u32 v7, v3, 8, v7            ; n*256 + (gq^n)*16
    """)
    for s in range(4):
        A(f"v_xor_b32 v{VX+s}, {64*s}, v7")
        A(f"v_add_u32 v{VX+4+s}, 0x10000, v{VX+s}")
        A(f"v_add_u32 v{V_KA+s}, s{S_RW}, v{VX+s}")
    A(f"""
    v_lshl_add_u32 v8, v4, 3, v5
    s_lshl_b32 s30, s{S_W}, 2
    v_add_u32 v9, s30, v6
    v_lshlrev_b32 v2, 2, v5
    v_xor_b32 v9, v9, v2
    v_lshlrev_b32 v9, 4, v9
    v_lshl_add_u32 v9, v8, 8, v9
    v_add_u32 v{VAW}, 0x10000, v9
    v_add_u32 v{VAW+1}, 0x20000, v9
    v_lshl_add_u32 v8, v4, 2, v5
    v_and_b32 v9, 7, v8
    v_lshlrev_b32 v9, 5, v9
    v_lshl_add_u32 v9, v8, 8, v9
    v_lshl_add_u32 v9, v6, 3, v9
    """)
    for dt in range(8):
        A(f"v_xor_b32 v{V_VA+dt}, {32*dt}, v9")
        A(f"v_add_u32 v{V_VA+dt}, s{S_RW}, v{V_VA+dt}")
    A(f"""
    v_xor_b32 v9, v3, v4
    v_lshlrev_b32 v9, 4, v9
    v_lshl_add_u32 v9, v4, 8, v9
    """)
    for i in range(4): A(f"v_xor_b32 v{V_KD+i}, {64*i}, v9")
    A(f"""
    v_lshlrev_b32 v9, 1, v4
    v_xor_b32 v9, v3, v9
    v_lshlrev_b32 v9, 4, v9
    v_lshl_add_u32 v{V_VD}, v4, 8, v9
    v_xor_b32 v{V_VD+1}, 128, v{V_VD}
    """)
    for i in range(160): A(f"v_accvgpr_write_b32 a{A_O+i}, 0")
    for i in range(10): A(f"v_mov_b32 v{V_L+i}, 0")
    for i in range(32): A(f"v_mov_b32 v{V_VF+i}, 0")
    for i in range(4): A(f"v_mov_b32 v{V_P+i}, 0")
    for i in range(8): A(f"v_mov_b32 v{V_S+8+i}, 0xff7fffff")
    A("s_waitcnt vmcnt(13)")
    A("s_barrier")
    stamp(A, 1)
    bar = lambda n: ([f"s_waitcnt vmcnt({n})"] if n is not None else []) + ["s_barrier"]
    arrive = [f"s_cmp_eq_u32 s{S_W}, 0", "s_cbranch_scc0 L_noarr", f"s_lshr_b32 s{S_T0}, s{S_F1}, 5", "v_mov_b32 v2, 1", "s_mov_b64 exec, 1",
              f"buffer_atomic_add v2, off, {sr(SRD_DBG,4)}, s{S_T0} sc1", "s_mov_b64 exec, -1", "L_noarr:"]
    plan = {1: dict(pre=bar(9), fill=wdma(3) + xdma(2)), 3: dict(pre=bar(9) + arrive, fill=wdma(4)), 5: dict(pre=bar(9), fill=wdma(5) + xdma(3)),
            7: dict(pre=bar(9), fill=wdma(6)), 9: dict(pre=bar(9), fill=wdma(7) + off_calc() + with_m0_gap(kv_dma('K', 0))),
            11: dict(pre=bar(12), fill=with_m0_gap(kv_dma('V', 0))), 13: dict(pre=bar(16)),
            15: dict(pre=bar(None), fill=off_calc() + with_m0_gap(kv_dma('K', 1)) + with_m0_gap(kv_dma('V', 1)))}
    gemm_core(A, ACC, FA, FB, xread, wread, plan)
    stamp(A, 2)
    A(f"s_mov_b32 s30, {hex(f32(C_SCALE))}")
    A(f"v_add_u32 v8, s{S_W1K}, v{V_L16}")
    A(f"v_add_u32 v8, {LE}, v8")
    A("s_nop 3")
    for t in range(5):
        for jt in range(2):
            d = ACC + (jt*5 + t)*4
            for r in range(4): A(f"v_mul_f32 v{d+r}, s30, v{d+r}")
        q = FB[0] + 4*t
        for jt in range(2):
            d = ACC + (jt*5 + t)*4
            A(f"v_cvt_pk_bf16_f32 v{q+2*jt}, v{d}, v{d+1}")
            A(f"v_cvt_pk_bf16_f32 v{q+2*jt+1}, v{d+2}, v{d+3}")
        A(f"ds_write_b128 v8, {vr(q,4)} offset:{t*4096}")
    A("s_waitcnt vmcnt(24) lgkmcnt(0)")
    A("s_barrier")
    A(f"v_add_u32 v8, {LE}, v{V_L16}")
    ST = 188
    if OPT['standin']:
        for s in range(4): A(f"ds_read_b128 {vr(ST+4*s,4)}, v{VX+s} offset:{K0}")
    for t in range(5):
        for s in range(4): A(f"ds_read_b128 {ar(A_Q+(t*4+s)*4,4)}, v8 offset:{(t*4+s)*1024}")
    for p in range(8): A(k_read(p, 0))
    VL2, VA2, VWD2, VCHK = 244, 245, 247, 248
    A(f"""
    v_lshl_add_u32 v8, v4, 2, v5
    s_lshl_b32 s30, s{S_W}, 2
    v_add_u32 v9, s30, v6
    v_lshlrev_b32 v2, 2, v5
    v_xor_b32 v9, v9, v2
    v_lshlrev_b32 v9, 4, v9
    v_lshl_add_u32 v9, v8, 8, v9
    v_add_u32 v8, s30, v4
    v_lshlrev_b32 v2, 2, v4
    v_xor_b32 v2, v3, v2
    v_lshlrev_b32 v2, 4, v2
    """)
    if OPT['standin']:
        A("s_waitcnt lgkmcnt(8)")
        for t in range(5):
            for s in range(4):
                d = V_NEG + 4*t
                A(f"v_mfma_f32_16x16x32_bf16 {vr(d,4)}, {vr(ST+4*s,4)}, {ar(A_Q+(t*4+s)*4,4)}, {'0' if s == 0 else vr(d,4)}")
    A(f"v_add_u32 v{VA2}, 0x10000, v9")
    A(f"v_add_u32 v{VA2+1}, 0x20000, v9")
    A(f"v_lshl_add_u32 v{VWD2}, v8, 10, v2")
    A(f"v_add_u32 v{VL2}, 0x10000, v{V_L16}")
    if OPT['standin']:
        T = 204
        A("s_nop 4")
        for t in range(5):
            d = V_NEG + 4*t
            A(f"v_max3_f32 v{T+t}, v{d}, v{d+1}, v{d+2}")
        for t in range(5): A(f"v_max_f32 v{T+t}, v{T+t}, v{V_NEG+4*t+3}")
        for swap in ("v_permlane32_swap_b32", "v_permlane16_swap_b32"):
            for t in range(5): A(f"v_mov_b32 v{T+8+t}, v{T+t}")
            for t in range(5): A(f"{swap} v{T+t}, v{T+8+t}")
            for t in range(5): A(f"v_max_f32 v{T+t}, v{T+t}, v{T+8+t}")
        for t in range(5):
            for r in range(4): A(f"v_xor_b32 v{V_NEG+4*t+r}, 0x80000000, v{T+t}")
    else:
        for i in range(20): A(f"v_mov_b32 v{V_NEG+i}, 0")
    A("s_waitcnt lgkmcnt(0)")
    A("s_barrier")
    A(f"s_mov_b32 s{S_CNT}, 8")
    stamp(A, 3)
    stamp_cyc(A, 20)
    A.raw(".p2align 6")
    A.label("L_loop")
    for k in range(10): main_stage(A, k)
    A(f"s_sub_u32 s{S_CNT}, s{S_CNT}, 1")
    A(f"s_cmp_lg_u32 s{S_CNT}, 0")
    A("s_cbranch_scc1 L_loop")
    stamp(A, 4)
    stamp_cyc(A, 21)
    xarea2 = lambda a, t: (a * 5 + t) * 4096
    wslot = [LE, LE + 16384, 81920, 98304, 114688]
    wblk2 = lambda u, e: wslot[u % 5] + 8192 * e
    def wdma2(u):
        l = [f"s_lshl_b32 s{S_T0}, s{S_R}, 1", f"s_add_u32 s{S_T0}, s{S_T0}, {u}", f"s_and_b32 s{S_T0}, s{S_T0}, 7", f"s_lshl_b32 s{S_T0}, s{S_T0}, 16",
             f"s_lshl_b32 s{S_T1}, s{S_G}, 19", f"s_add_u32 s{S_T0}, s{S_T0}, s{S_T1}", f"s_lshl_b32 s{S_T1}, s{S_R}, 8", f"s_add_u32 s{S_WK}, s{S_T0}, s{S_T1}"]
        for e in range(2):
            for hh in range(2):
                l += [f"s_add_u32 m0, s{S_W1K}, {wblk2(u, e) + 4096*hh}", f"s_add_u32 s{S_T0}, s{S_WK}, {(32*e + 16*hh)*1024}",
                      f"buffer_load_dwordx4 v{VWD2}, {sr(SRD_WO,4)}, s{S_T0} offen lds"]
        return l
    def xdma2(a):
        l = [f"s_add_u32 s{S_T0}, s{S_R}, {a}", f"s_and_b32 s{S_T0}, s{S_T0}, 3", f"s_lshl_b32 s{S_T0}, s{S_T0}, 2",
             f"s_add_u32 s{S_T0}, s{S_T0}, s{S_W}", f"s_mul_i32 s{S_T0}, s{S_T0}, 5120", f"s_add_u32 s{S_XOFF}, s{S_T0}, s{S_XB}"]
        for t in range(5):
            l += [f"s_add_u32 m0, s{S_W1K}, {xarea2(a, t)}", f"s_add_u32 s{S_T0}, s{S_XOFF}, {t*1024}",
                  f"buffer_load_dwordx4 v{V_L16}, {sr(SRD_O,4)}, s{S_T0} offen sc1 lds"]
        return l
    def xread2(ks, t, dst):
        p = xarea2(ks >> 2, t) + (ks & 3) * 1024
        return f"ds_read_b128 {vr(dst,4)}, v{V_L16 if p < 65536 else VL2} offset:{p & 0xffff}"
    def wread2(ks, jt, hf, dst):
        p = wblk2(ks >> 1, ks & 1)
        return f"ds_read_b64_tr_b16 {vr(dst,2)}, v{VA2 + (p >> 16) - 1} offset:{(p & 0xffff) + 4096*hf + 8*jt}"
    A(f"s_lshl_b32 s{S_T2}, s{S_B}, 5")
    A(f"buffer_load_dwordx4 {vr(VCHK,4)}, off, {sr(SRD_DBG,4)}, s{S_T2} sc1")
    A(f"buffer_load_dwordx4 {vr(VCHK+4,4)}, off, {sr(SRD_DBG,4)}, s{S_T2} offset:16 sc1")
    for x in wdma2(0) + wdma2(1): A(x)
    A(f"s_lshl_b32 s30, s{S_B}, 7")
    A(f"s_lshl_b32 s31, s{S_G}, 4")
    A(f"s_add_u32 s30, s30, s31")
    A(f"s_mul_i32 s{S_XB}, s30, 5120")
    va = sm_valu(4, 1)
    for p in range(16):
        if p >= 8: A(pv_mfma(p - 8, 3, 0))
        for x in va[p]: A(x)
        if p < 8 and p % 4 in (1,): A("s_nop 0")
    A("s_nop 1")
    for dt in range(8): A(pv_mfma(dt, 4, 1))
    A.label("L_combine")
    XL = 122880
    A("s_waitcnt vmcnt(0)")
    A("s_barrier")
    A(f"v_lshlrev_b32 v8, 2, v1")
    A(f"s_mul_i32 s30, s{S_W}, 1280")
    A(f"s_add_u32 s30, s30, {XL}")
    A(f"v_add_u32 v9, s30, v8")
    for t in range(5): A(f"v_add_f32 v{V_L+2*t}, v{V_L+2*t}, v{V_L+2*t+1}")
    for t in range(5): A(f"ds_write_b32 v9, v{V_L+2*t} offset:{256*t}")
    TO = 60
    for d in range(4):
        A(f"s_cmp_eq_u32 s{S_W}, {d}")
        A(f"s_cbranch_scc1 L_own{d}")
        A(f"s_sub_u32 s30, s{S_W}, {d+1}")
        A(f"s_and_b32 s30, s30, 3")
        A(f"s_mul_i32 s30, s30, 10240")
        A(f"s_add_u32 s30, s30, {d*30720}")
        A(f"v_add_u32 v9, s30, v{V_L16}")
        for t in range(5):
            for j in range(2):
                A(f"ds_write_b128 v9, {ar(A_O + (t*8 + 2*d + j)*4, 4)} offset:{(t*2+j)*1024}")
        A(f"s_branch L_nxt{d}")
        A.label(f"L_own{d}")
        for t in range(5):
            for j in range(2):
                for r in range(4): A(f"v_accvgpr_read_b32 v{TO + (t*2+j)*4 + r}, a{A_O + (t*8 + 2*d + j)*4 + r}")
        A.label(f"L_nxt{d}")
    A("s_waitcnt lgkmcnt(0)")
    A("s_barrier")
    stamp(A, 5)
    TL = 100
    A(f"v_add_u32 v9, {XL}, v8")
    for w in range(4):
        for t in range(5): A(f"ds_read_b32 v{TL + w*5 + t}, v9 offset:{w*1280 + t*256}")
    TR = 120
    A(f"s_mul_i32 s30, s{S_W}, 30720")
    A(f"v_add_u32 v9, s30, v{V_L16}")
    for sl in range(3):
        for q in range(10): A(f"ds_read_b128 {vr(TR + (sl*10 + q)*4, 4)}, v9 offset:{(sl*10+q)*1024}")
    A("s_waitcnt lgkmcnt(0)")
    A("s_barrier")
    for t in range(5):
        A(f"v_add_f32 v{TL+t}, v{TL+t}, v{TL+5+t}")
        A(f"v_add_f32 v{TL+10+t}, v{TL+10+t}, v{TL+15+t}")
    for t in range(5): A(f"v_add_f32 v{TL+t}, v{TL+t}, v{TL+10+t}")
    for swap in ("v_permlane32_swap_b32", "v_permlane16_swap_b32"):
        for t in range(5): A(f"v_mov_b32 v{TL+8+t}, v{TL+t}")
        for t in range(5): A(f"{swap} v{TL+t}, v{TL+8+t}")
        for t in range(5): A(f"v_add_f32 v{TL+t}, v{TL+t}, v{TL+8+t}")
    if OPT['fallback']:
        A(f"v_add_f32 v{TL+9}, v{TL}, v{TL+1}")
        A(f"v_add_f32 v{TL+9}, v{TL+9}, v{TL+2}")
        A(f"v_add_f32 v{TL+9}, v{TL+9}, v{TL+3}")
        A(f"v_add_f32 v{TL+9}, v{TL+9}, v{TL+4}")
        A(f"s_mov_b32 s30, {hex(f32(2.0**40))}")
        A(f"v_cmp_ngt_f32 vcc, s30, v{TL+9}")
        A("s_nop 4")
        A("s_cmp_eq_u64 vcc, 0")
        A("s_cbranch_scc1 L_sum_ok")
        A(f"s_cmp_eq_u32 s{S_FB}, 0")
        A("s_cbranch_scc1 L_fallback")
        A.label("L_sum_ok")
    for x in wdma2(2): A(x)
    for t in range(5): A(f"v_rcp_f32 v{TL+t}, v{TL+t}")
    for sl in range(3):
        for q in range(40): A(f"v_add_f32 v{TO+q}, v{TO+q}, v{TR + sl*40 + q}")
    for t in range(5):
        for q in range(8): A(f"v_mul_f32 v{TO + t*8 + q}, v{TO + t*8 + q}, v{TL+t}")
    for t in range(5):
        q = TR + 4*t
        for i in range(4): A(f"v_cvt_pk_bf16_f32 v{q+i}, v{TO + t*8 + 2*i}, v{TO + t*8 + 2*i + 1}")
    stamp(A, 6)
    A(f"s_lshl_b32 s30, s{S_R}, 2")
    A(f"s_add_u32 s30, s30, s{S_W}")
    A(f"s_mul_i32 s30, s30, 5120")
    A(f"s_add_u32 s30, s30, s{S_XB}")
    for t in range(5):
        if t == 4: A("s_add_u32 s30, s30, 4096")
        A(f"buffer_store_dwordx4 {vr(TR+4*t,4)}, v{V_L16}, {sr(SRD_O,4)}, s30 offen offset:{(t*1024) & 4095} sc1")
    A(f"v_add_u32 v8, s{S_W1K}, v{V_L16}")
    for t in range(5): A(f"ds_write_b128 v8, {vr(TR+4*t,4)} offset:{xarea2(0, t)}")
    for x in wdma2(3) + wdma2(4): A(x)
    A("s_waitcnt vmcnt(8) lgkmcnt(0)")
    A("s_barrier")
    A(f"s_cmp_eq_u32 s{S_W}, 0")
    A("s_cbranch_scc0 L_noflag1")
    A(f"s_lshl_b32 s{S_T0}, s{S_R}, 2")
    A(f"s_add_u32 s{S_T0}, s{S_T0}, s{S_F1}")
    A("v_mov_b32 v2, 1")
    one_lane(A, [f"buffer_store_dword v2, off, {sr(SRD_FL,4)}, s{S_T0} sc1"])
    A.label("L_noflag1")
    stamp(A, 7)
    def wait_group(A):
        for i in range(1, 8): A(f"v_min_u32 v{VCHK}, v{VCHK}, v{VCHK+i}")
        A("s_nop 0")
        A(f"v_readfirstlane_b32 s{S_T0}, v{VCHK}")
        A("s_nop 3")
        A(f"s_cmp_ge_u32 s{S_T0}, 4")
        A("s_cbranch_scc1 L_done_init")
        A(f"s_lshl_b32 s{S_T2}, s{S_B}, 5")
        poll(A, "init", SRD_DBG, S_T2, 8, 4, VCHK)
        poll(A, "f1", SRD_FL, S_F1, 4, 1, VCHK)
        stamp(A, 8)
        for x in xdma2(1) + xdma2(2) + xdma2(3): A(x)
        A("s_waitcnt vmcnt(10)")
        A("s_barrier")
        stamp(A, 9)
    plan2 = {1: dict(pre=["s_barrier"], fill=wdma2(5)),
             3: dict(pre=["s_barrier"], fill=wdma2(6), late=wait_group),
             5: dict(pre=["s_barrier"], fill=wdma2(7)),
             7: dict(pre=["s_waitcnt vmcnt(9)", "s_barrier"]),
             11: dict(pre=["s_waitcnt vmcnt(4)", "s_barrier"]),
             13: dict(pre=["s_waitcnt vmcnt(0)", "s_barrier"])}
    gemm_core(A, ACC, FA, FB, xread2, wread2, plan2)
    stamp(A, 10)
    A(f"""
    s_lshl_b32 s30, s{S_B}, 2
    s_add_u32 s30, s30, s{S_R}
    s_lshl_b32 s30, s30, 2
    s_mul_i32 s{S_XB}, s30, 81920
    s_mul_i32 s30, s{S_W}, 81920
    s_add_u32 s30, s30, s{S_XB}
    s_lshl_b32 s31, s{S_G}, 10
    s_add_u32 s30, s30, s31
    """)
    for q in (0, 5, 1, 6, 2, 7, 3, 8, 4, 9):
        A(f"s_add_u32 s31, s30, {q*8192}")
        A(f"buffer_store_dwordx4 {vr(ACC+4*q,4)}, v{V_L16}, {sr(SRD_PP,4)}, s31 offen sc1")
    A("s_waitcnt vmcnt(0)")
    A("s_barrier")
    A(f"s_cmp_eq_u32 s{S_W}, 0")
    A("s_cbranch_scc0 L_noflag2")
    A(f"s_lshl_b32 s{S_T0}, s{S_G}, 2")
    A(f"s_add_u32 s{S_T0}, s{S_T0}, s{S_F2}")
    A("v_mov_b32 v2, 1")
    one_lane(A, [f"buffer_store_dword v2, off, {sr(SRD_FL,4)}, s{S_T0} sc1"])
    A.label("L_noflag2")
    stamp(A, 11)
    A(f"s_lshl_b32 s30, s{S_W}, 3")
    A(f"s_add_u32 s30, s30, s{S_G}")
    A("s_cmp_ge_u32 s30, 20")
    A("s_cbranch_scc1 L_fin")
    poll(A, "f2", SRD_FL, S_F2, 8, 1, VCHK)
    stamp(A, 12)
    A(f"s_mul_hi_u32 s31, s30, {(1 << 32)//5 + 1}")
    A(f"s_mul_i32 s{S_T0}, s31, 5")
    A(f"s_sub_u32 s{S_T1}, s30, s{S_T0}              ; t")
    A(f"s_mul_i32 s{S_T0}, s31, 81920")
    A(f"s_add_u32 s{S_T0}, s{S_T0}, s{S_XB}")
    A(f"s_lshl_b32 s{S_T2}, s{S_T1}, 13")
    A(f"s_add_u32 s{S_T0}, s{S_T0}, s{S_T2}")
    RB = 60
    for jt in range(2):
        for g in range(8):
            if g % 4 == 0: A(f"s_add_u32 s{S_T2}, s{S_T0}, {jt*5*8192 + g*1024}")
            A(f"buffer_load_dwordx4 {vr(RB + (jt*8+g)*4, 4)}, v{V_L16}, {sr(SRD_PP,4)}, s{S_T2} offen offset:{(g%4)*1024} sc1")
    A(f"""
    s_mul_i32 s{S_T0}, s{S_B}, 80
    s_lshl_b32 s{S_T1}, s{S_T1}, 4
    s_add_u32 s{S_T0}, s{S_T0}, s{S_T1}
    v_add_u32 v8, s{S_T0}, v3
    v_lshlrev_b32 v8, 10, v8
    s_lshl_b32 s{S_T0}, s{S_R}, 2
    s_add_u32 s{S_T0}, s{S_T0}, s31
    s_lshl_b32 s{S_T0}, s{S_T0}, 6
    v_lshl_add_u32 v8, v4, 4, v8
    v_add_u32 v8, s{S_T0}, v8
    """)
    for jt in range(2):
        A(f"s_waitcnt vmcnt({8 if jt == 0 else 0})")
        b = RB + jt*32
        for g in range(1, 8):
            for r in range(4): A(f"v_add_f32 v{b+r}, v{b+r}, v{b+4*g+r}")
    A(f"v_cvt_pk_bf16_f32 v{RB+64}, v{RB}, v{RB+1}")
    A(f"v_cvt_pk_bf16_f32 v{RB+65}, v{RB+2}, v{RB+3}")
    A(f"v_cvt_pk_bf16_f32 v{RB+66}, v{RB+32}, v{RB+33}")
    A(f"v_cvt_pk_bf16_f32 v{RB+67}, v{RB+34}, v{RB+35}")
    A(f"buffer_store_dwordx4 {vr(RB+64,4)}, v8, {sr(SRD_OUT,4)}, 0 offen")
    A.label("L_fin")
    A("s_waitcnt vmcnt(0)")
    stamp(A, 13)
    stamp_out(A)
    if OPT.get('amp'):
        i0, i1, M = OPT['amp']
        A(f"s_add_u32 s30, s2, s{S_W}")
        A("s_cmp_eq_u32 s30, 0")
        A("s_cbranch_scc0 L_end")
        A(f"v_readlane_b32 s30, v39, {i0}")
        A(f"v_readlane_b32 s31, v39, {i1}")
        A("s_nop 3")
        A("s_sub_u32 s30, s31, s30")
        A("s_min_u32 s30, s30, 10000")
        A(f"s_mul_i32 s30, s30, {M}")
        A("s_memrealtime s[64:65]")
        A("s_waitcnt lgkmcnt(0)")
        A.label("L_amp")
        A("s_sleep 4")
        A("s_memrealtime s[66:67]")
        A("s_waitcnt lgkmcnt(0)")
        A("s_sub_u32 s31, s66, s64")
        A("s_cmp_lt_u32 s31, s30")
        A("s_cbranch_scc1 L_amp")
    A.label("L_end")
    A("s_endpgm")
    if OPT['fallback']: gen_fallback(A)
    return A.text()

def gen_fallback(A):
    M, AL, T = V_NEG, V_NEG + 8, 148
    SF = 160
    A.label("L_fallback")
    A(f"s_mov_b32 s{S_FB}, 1")
    for i in range(160): A(f"v_accvgpr_write_b32 a{A_O+i}, 0")
    for i in range(10): A(f"v_mov_b32 v{V_L+i}, 0")
    for t in range(5): A(f"v_mov_b32 v{M+t}, 0xff7fffff")
    A(f"s_mov_b32 s{S_CNT}, 16")
    A(f"s_mov_b32 s{S_OFF}, s{S_W8}")
    A.label("L_fb_loop")
    A(f"s_add_u32 s{S_OFF2}, s{S_OFF}, 4096")
    for x in with_m0_gap(kv_dma('K', 0)) + with_m0_gap(kv_dma('V', 0)): A(x)
    A("s_waitcnt vmcnt(0)")
    for p in range(8): A(k_read(p, 0))
    for dt in range(8):
        for hf in range(2): A(v_read(dt, hf, 0))
    A("s_waitcnt lgkmcnt(0)")
    for t in range(5):
        for p in range(8):
            kt, s = p >> 2, p & 3
            d = SF + 8*t + 4*kt
            A(f"v_mfma_f32_16x16x32_bf16 {vr(d,4)}, {vr(V_KF+4*p,4)}, {ar(A_Q+(t*4+s)*4,4)}, {'0' if s == 0 else vr(d,4)}")
    A("s_nop 7")
    for t in range(5):
        d = SF + 8*t
        A(f"v_max3_f32 v{T+t}, v{d}, v{d+1}, v{d+2}")
        A(f"v_max3_f32 v{T+t}, v{T+t}, v{d+3}, v{d+4}")
        A(f"v_max3_f32 v{T+t}, v{T+t}, v{d+5}, v{d+6}")
        A(f"v_max3_f32 v{T+t}, v{T+t}, v{d+7}, v{M+t}")
    A("s_nop 1")
    for swap in ("v_permlane32_swap_b32", "v_permlane16_swap_b32"):
        for t in range(5): A(f"v_mov_b32 v{T+5+t}, v{T+t}")
        for t in range(5): A(f"{swap} v{T+t}, v{T+5+t}")
        for t in range(5): A(f"v_max_f32 v{T+t}, v{T+t}, v{T+5+t}")
    for t in range(5): A(f"v_sub_f32 v{AL+t}, v{M+t}, v{T+t}")
    for t in range(5): A(f"v_exp_f32 v{AL+t}, v{AL+t}")
    for t in range(5): A(f"v_mov_b32 v{M+t}, v{T+t}")
    for t in range(5):
        for i in range(8): A(f"v_sub_f32 v{SF+8*t+i}, v{SF+8*t+i}, v{M+t}")
    for t in range(5):
        for i in range(8): A(f"v_exp_f32 v{SF+8*t+i}, v{SF+8*t+i}")
    A("s_nop 0")
    for t in range(5):
        A(f"v_mul_f32 v{V_L+2*t}, v{V_L+2*t}, v{AL+t}")
        for i in range(8): A(f"v_add_f32 v{V_L+2*t}, v{V_L+2*t}, v{SF+8*t+i}")
    for t in range(5):
        for i in range(32):
            A(f"v_accvgpr_read_b32 v{T+10}, a{A_O+t*32+i}")
            A(f"v_mul_f32 v{T+10}, v{T+10}, v{AL+t}")
            A(f"v_accvgpr_write_b32 a{A_O+t*32+i}, v{T+10}")
    PF = 200
    for t in range(5):
        for i in range(4): A(f"v_cvt_pk_bf16_f32 v{PF+4*t+i}, v{SF+8*t+2*i}, v{SF+8*t+2*i+1}")
    A("s_nop 1")
    for t in range(5):
        for dt in range(8):
            o = A_O + (t*8 + dt)*4
            A(f"v_mfma_f32_16x16x32_bf16 {ar(o,4)}, {vr(V_VF+4*dt,4)}, {vr(PF+4*t,4)}, {ar(o,4)}")
    A("s_nop 7")
    A(f"s_add_u32 s{S_OFF}, s{S_OFF}, 0x8000")
    A(f"s_sub_u32 s{S_CNT}, s{S_CNT}, 1")
    A(f"s_cmp_lg_u32 s{S_CNT}, 0")
    A("s_cbranch_scc1 L_fb_loop")
    XL = 0
    A("s_barrier")
    A(f"v_lshlrev_b32 v8, 2, v1")
    A(f"s_mul_i32 s30, s{S_W}, 1280")
    A(f"s_add_u32 s30, s30, {XL}")
    A(f"v_add_u32 v9, s30, v8")
    for t in range(5): A(f"ds_write_b32 v9, v{M+t} offset:{256*t}")
    A("s_waitcnt lgkmcnt(0)")
    A("s_barrier")
    for w in range(4):
        for t in range(5): A(f"ds_read_b32 v{SF + w*5 + t}, v8 offset:{XL + w*1280 + t*256}")
    A("s_waitcnt lgkmcnt(0)")
    for t in range(5):
        A(f"v_max3_f32 v{T+t}, v{SF+t}, v{SF+5+t}, v{SF+10+t}")
        A(f"v_max_f32 v{T+t}, v{T+t}, v{SF+15+t}")
        A(f"v_sub_f32 v{AL+t}, v{M+t}, v{T+t}")
    for t in range(5): A(f"v_exp_f32 v{AL+t}, v{AL+t}")
    A("s_nop 0")
    for t in range(5):
        A(f"v_mul_f32 v{V_L+2*t}, v{V_L+2*t}, v{AL+t}")
        A(f"v_mov_b32 v{V_L+2*t+1}, 0")
        for i in range(32):
            A(f"v_accvgpr_read_b32 v{T+10}, a{A_O+t*32+i}")
            A(f"v_mul_f32 v{T+10}, v{T+10}, v{AL+t}")
            A(f"v_accvgpr_write_b32 a{A_O+t*32+i}, v{T+10}")
    A("s_branch L_combine")

def build():
    s = HEADER + "; @launch grid=(256,1,1) block=(256,1,1) lds=163840\n"
    s += '.amdgcn_target "amdgcn-amd-amdhsa--gfx950"\n.text\n' + kernel_start(NAME) + gen()
    s += '.section .rodata,"a"\n.p2align 6\n' + kernel_desc(NAME, 512, 256, 102)
    return s

if __name__ == "__main__":
    out = sys.argv[1]
    for kv in sys.argv[2:]:
        k_, v_ = kv.split("=")
        OPT[k_] = eval(v_)
    open(out, "w").write(build())
```

```python
import sys, struct, math
from lib import *

def f32(x): return struct.unpack("<I", struct.pack("<f", x))[0]
C_SCALE = math.log2(math.e) / math.sqrt(128.0)
NAME = "standalone__gqa_block_cached__near_ridge_kernel"

WS_O = 0
WS_P = 8 << 20
WS_F = 24 << 20
WS_ST = 64 << 20
OPT = dict(standin=True, fallback=True, stamps=False, nodma=False, nods=False, novalu=False, nowait=False, wopf=True, order='X', kvpol='')

V_KA, V_VA, V_KD, V_VD, V_L, V_L16, V_NEG, V_S, V_P, V_KF, V_VF = 10, 14, 22, 26, 28, 38, 40, 60, 76, 84, 116
A_O, A_Q = 0, 160
S_G, S_B, S_R, S_W, S_H, S_RW = 24, 25, 26, 27, 28, 29
S_T, S_R15, S_W8, S_END, S_OFF, S_OFF2, S_CNT, S_W1K, S_XOFF, S_WK, S_ROT, S_FB = 32, 33, 34, 35, 36, 37, 38, 39, 40, 41, 42, 43
S_T0, S_T1, S_T2, S_SPIN = 60, 61, 62, 63
S_TAB = 2
SRD_X, SRD_K, SRD_V, SRD_W, SRD_O, SRD_WO, SRD_PP, SRD_FL, SRD_DBG, SRD_OUT = 4, 8, 12, 16, 20, 44, 48, 52, 56, 84
S_POFF, S_F1, S_F2, S_XB, S_WOB, S_BAD = 80, 81, 82, 83, 88, 90
K0, K1s, V0, V1 = 0, 8192, 16384, 24576
LE = 131072
SPIN_MAX = 20000

def stamp(A, i):
    if not OPT['stamps']: return
    A("s_memrealtime s[98:99]")
    A("s_waitcnt lgkmcnt(0)")
    A(f"v_writelane_b32 v39, s98, {i}")
def stamp_cyc(A, i):
    if not OPT['stamps']: return
    A("s_memtime s[98:99]")
    A("s_waitcnt lgkmcnt(0)")
    A(f"v_writelane_b32 v39, s98, {i}")
def stamp_out(A):
    if not OPT['stamps']: return
    A("s_load_dwordx2 s[92:93], s[0:1], 56")
    A("s_waitcnt lgkmcnt(0)")
    A(f"s_add_u32 s92, s92, {WS_ST}")
    A("s_addc_u32 s93, s93, 0")
    A("s_mov_b32 s94, 0x100000")
    A("s_mov_b32 s95, 0x00020000")
    A(f"s_lshl_b32 s96, s{S_R15}, 2")
    A(f"s_add_u32 s96, s96, s{S_W}")
    A("s_lshl_b32 s96, s96, 8")
    A("v_lshlrev_b32 v2, 2, v1")
    A("buffer_store_dword v39, v2, s[92:95], s96 offen")
    A("s_waitcnt vmcnt(0)")

def gemm_core(A, acc, FA, FB, xread, wread, plan):
    def reads(ks):
        buf = ks & 1
        w = [wread(ks, jt, hf, FA[buf] + 4 * jt + 2 * hf) for jt in range(2) for hf in range(2)]
        x = [xread(ks, t, FB[buf] + 4 * t) for t in range(5)]
        return [w[0], w[1], x[0], w[2], w[3], x[1], x[2], x[3], x[4]]
    for r in reads(0): A(r)
    for ks in range(16):
        buf = ks & 1
        p = plan.get(ks, {})
        fine = p.get('fine')
        if fine is not None: stamp_cyc(A, fine)
        A("s_waitcnt lgkmcnt(0)")
        for x in p.get('pre', []):
            A(x)
            if fine is not None and x.startswith("s_waitcnt vmcnt"): stamp_cyc(A, fine + 1)
            if fine is not None and x == "s_barrier": stamp_cyc(A, fine + 2)
        if p.get('stamp') is not None: stamp(A, p['stamp'])
        extra = list(p.get('fill', []))
        late = p.get('late')
        fill = reads(ks + 1) if (ks < 15 and late is None) else []
        m = 0
        groups = extra; extra = []
        for t in range(5):
            for jt in range(2):
                d = acc + (jt * 5 + t) * 4
                c = "0" if ks == 0 else vr(d, 4)
                A(f"v_mfma_f32_16x16x32_bf16 {vr(d,4)}, {vr(FA[buf]+4*jt,4)}, {vr(FB[buf]+4*t,4)}, {c}")
                n = 0
                while fill and n < 2: A(fill.pop(0)); n += 1
                if not fill and groups and m >= 3:
                    k = (len(groups) + (9 - m)) // (10 - m)
                    for _ in range(min(k, len(groups))):
                        for x in groups.pop(0): A(x)
                m += 1
        for g_ in groups:
            for x in g_: A(x)
        for e in extra: A(e)
        if fine is not None: stamp_cyc(A, fine + 3)
        if late is not None:
            late(A) if callable(late) else [A(x) for x in late]
            if ks < 15:
                for r in reads(ks + 1): A(r)

def segments(scheme, phi):
    if scheme == 'rot4': return None
    return {'X': [[1,4,4,4,3], [2,4,4,4,2], [3,4,4,4,1], [4,4,4,4]],
            'Y': [[2,4,4,4,2], [2,1,4,4,4,1], [2,1,1,4,4,4], [2,1,1,1,4,4,3]],
            'Z': [[1,4,4,4,3], [1,1,4,4,4,2], [1,1,1,4,4,4,1], [1,1,1,1,4,4,4]],
            'Y2': [[2,4,4,4,2], [2,2,4,4,4], [2,3,4,4,3], [2,4,4,4,2]],
            'L': [[1]*16]*4,
            'R2': [[2]*8, [1] + [2]*7 + [1], [2]*8, [1] + [2]*7 + [1]],
            'R4': [[4]*4]*4}[scheme][phi]
def tile_order(scheme, phi, r):
    seg = segments(scheme, phi)
    if seg is None:
        return [((i + phi) & 12) | ((i + phi + r) & 3) for i in range(16)]
    out = []; s0 = 0
    for n in seg:
        out += [s0 + ((u + r) % n) for u in range(n)]; s0 += n
    assert sorted(out) == list(range(16)), (scheme, phi, r, out)
    return out
def table_setup(A):
    A(f"s_and_b32 s{S_T0}, s{S_B}, 3")
    A(f"s_lshl_b32 s{S_T0}, s{S_T0}, 2")
    A(f"s_add_u32 s{S_T0}, s{S_T0}, s{S_R}")
    for idx in range(16):
        o = tile_order(OPT['order'], idx >> 2, idx & 3)
        v = sum(t << (4 * i) for i, t in enumerate(o))
        if idx == 0:
            A(f"s_mov_b32 s{S_TAB}, {hex(v & 0xffffffff)}"); A(f"s_mov_b32 s{S_TAB+1}, {hex(v >> 32)}")
        else:
            A(f"s_cmp_eq_u32 s{S_T0}, {idx}")
            A(f"s_cselect_b32 s{S_TAB}, {hex(v & 0xffffffff)}, s{S_TAB}")
            A(f"s_cselect_b32 s{S_TAB+1}, {hex(v >> 32)}, s{S_TAB+1}")
    A(f"s_mov_b32 s{S_T}, 0")
def off_calc():
    return [f"s_and_b32 s{S_T0}, s{S_TAB}, 15",
            f"s_lshl_b32 s{S_T0}, s{S_T0}, 15",
            f"s_or_b32 s{S_OFF}, s{S_T0}, s{S_W8}",
            f"s_lshr_b64 s[{S_TAB}:{S_TAB+1}], s[{S_TAB}:{S_TAB+1}], 4",
            f"s_cmp_ge_u32 s{S_T}, 16",
            f"s_cselect_b32 s{S_OFF}, 0x80000, s{S_OFF}",
            f"s_add_u32 s{S_OFF2}, s{S_OFF}, 4096",
            f"s_add_u32 s{S_T}, s{S_T}, 1"]
def kv_dma(which, slot):
    srd = SRD_K if which == 'K' else SRD_V
    base = (K0, K1s)[slot] if which == 'K' else (V0, V1)[slot]
    l = []
    for half in range(2):
        l.append(f"s_add_u32 m0, s{S_RW}, {base + 4096 * half}")
        so = S_OFF if half == 0 else S_OFF2
        for i in range(4):
            vo = V_KD + i if which == 'K' else V_VD + (i & 1)
            l.append(f"buffer_load_dwordx4 v{vo}, {sr(srd,4)}, s{so} offen offset:{1024*i} {OPT['kvpol']} lds".replace("  ", " "))
    return l
def with_m0_gap(l):
    out = []
    for x in l:
        out.append(x)
        if x.startswith("s_add_u32 m0"): out.append("s_nop 0")
    return out
def kv_groups(which, slot):
    d = kv_dma(which, slot)
    return [[d[0], "s_nop 0", d[1]], [d[2]], [d[3]], [d[4]], [d[5], "s_nop 0", d[6]], [d[7]], [d[8]], [d[9]]]
def spread(A, main, groups, start=0):
    n = len(main); g = list(groups); k = len(g)
    pos = [start + (n - start) * (i + 1) // (k + 1) for i in range(k)]
    for i, x in enumerate(main):
        while pos and pos[0] <= i and not x.startswith(("s_addc", "s_cselect", "s_cbranch")):
            pos.pop(0)
            for y in g.pop(0): A(y)
        A(x)
    for gg in g:
        for y in gg: A(y)
def k_read(p, slot):
    kt, s = p >> 2, p & 3
    return f"ds_read_b128 {vr(V_KF + 4*p, 4)}, v{V_KA + s} offset:{(K0, K1s)[slot] + 4096*kt}"
def v_read(dt, hf, slot):
    return f"ds_read_b64_tr_b16 {vr(V_VF + 4*dt + 2*hf, 2)}, v{V_VA + dt} offset:{(V0, V1)[slot] + 4096*hf}"
def qk_mfma(p, tq, sbuf):
    kt, s = p >> 2, p & 3
    d = V_S + 8 * sbuf + 4 * kt
    c = vr(V_NEG + 4 * tq, 4) if s == 0 else vr(d, 4)
    return f"v_mfma_f32_16x16x32_bf16 {vr(d,4)}, {vr(V_KF + 4*p, 4)}, {ar(A_Q + (tq*4 + s)*4, 4)}, {c}"
def pv_mfma(dt, tp, pbuf):
    o = A_O + (tp * 8 + dt) * 4
    return f"v_mfma_f32_16x16x32_bf16 {ar(o,4)}, {vr(V_VF + 4*dt, 4)}, {vr(V_P + 4*pbuf, 4)}, {ar(o,4)}"
V_LM, V_ONE = 148, 168
def l_mfma(tp, pbuf):
    d = V_LM + 4 * tp
    return f"v_mfma_f32_16x16x32_bf16 {vr(d,4)}, {vr(V_ONE,4)}, {vr(V_P + 4*pbuf, 4)}, {vr(d,4)}"
def sm_valu(ts, buf):
    S = V_S + 8 * buf; P = V_P + 4 * buf
    g = [[] for _ in range(17)]
    for q in range(4):
        e0, e1 = S + 2 * q, S + 2 * q + 1
        g[4*q + 0].append(f"v_exp_f32 v{e0}, v{e0}")
        g[4*q + 1].append(f"v_exp_f32 v{e1}, v{e1}")
        g[4*q + 2].append(f"v_cvt_pk_bf16_f32 v{P + q}, v{e0}, v{e1}")
    return g

def stage_plan(km, par):
    it = []
    kd, vd = kv_dma('K', par), kv_dma('V', par)
    kl = kd[1:5] + kd[6:10]; vl = vd[1:5] + vd[6:10]
    if km == 0:
        for i, x in enumerate(off_calc()): it.append((i // 2, None, x))
        it.append((5, None, "s_waitcnt lgkmcnt(0)"))
        it.append((6, None, kd[0]))
        it += [(7, 'K', kl[0]), (11, 'K', kl[1]), (15, 'K', kl[2])]
    if km == 1:
        it += [(3, 'K', kl[3]), (4, None, kd[5]), (7, 'K', kl[4])]
        it.append((9, 'waitV', None))
        rd = [(10, 0, 0), (11, 0, 1), (11, 1, 0), (14, 1, 1), (15, 2, 0), (15, 2, 1), (16, 3, 0), (16, 3, 1)]
        for g_, dt, hf in rd: it.append((g_, None, v_read(dt, hf, par)))
        it.append((12, 'K', kl[5]))
    if km == 2:
        rd = [(2, 4, 0), (2, 4, 1), (3, 5, 0), (3, 5, 1), (6, 6, 0), (6, 6, 1), (7, 7, 0), (7, 7, 1)]
        for g_, dt, hf in rd: it.append((g_, None, v_read(dt, hf, par)))
        it += [(7, None, "s_waitcnt lgkmcnt(8)"), (11, 'K', kl[6]), (11, None, "s_waitcnt lgkmcnt(2)"), (14, None, "s_waitcnt lgkmcnt(0)"), (16, 'K', kl[7])]
    if km == 3:
        it += [(0, None, vd[0]), (3, 'V', vl[0]), (7, 'V', vl[1]), (11, 'V', vl[2]), (15, 'V', vl[3]), (16, 'waitK', None)]
    if km == 4:
        rd = [(2, 0), (3, 1), (3, 2), (6, 3), (7, 4), (7, 5), (10, 6), (11, 7)]
        for g_, p in rd: it.append((g_, None, k_read(p, 1 - par)))
        it += [(0, None, vd[5]), (4, 'V', vl[4]), (8, 'V', vl[5]), (12, 'V', vl[6]), (15, 'V', vl[7]), (16, None, "s_waitcnt lgkmcnt(2)")]
    return it
def vm_counts():
    seq = []
    waits = {}
    for j in range(3):
        for k in range(10):
            par = 0 if k < 5 else 1
            n = 2 * j + 2 + par
            for g_, tag, x in sorted(stage_plan(k % 5, par), key=lambda e: e[0]):
                if tag in ('K', 'V'): seq.append((tag, n))
                if tag == 'waitV' and j == 2:
                    need = ('V', 2 * j + par)
                    waits[('V', par)] = len(seq) - 1 - max(i for i, u in enumerate(seq) if u == need)
                if tag == 'waitK' and j == 2:
                    need = ('K', 2 * j + 1 + par)
                    waits[('K', par)] = len(seq) - 1 - max(i for i, u in enumerate(seq) if u == need)
    return waits

def main_stage(A, k):
    tq, ts, tp = k % 5, (k + 4) % 5, (k + 3) % 5
    nv = [[] for _ in range(17)]
    par = 0 if k < 5 else 1
    km = k % 5
    vm = vm_counts()
    for g_, tag, x in stage_plan(km, par):
        if tag == 'waitV': x = f"s_waitcnt vmcnt({vm[('V', par)]})"
        if tag == 'waitK': x = f"s_waitcnt vmcnt({vm[('K', par)]})"
        nv[g_].append(x)
    if k == 0 and OPT['wopf']:
        nv[16] += [f"s_cmp_eq_u32 s{S_CNT}, 2", "s_cbranch_scc0 L_nopf", f"s_lshl_b32 s{S_T0}, s{S_W}, 12", f"s_add_u32 m0, s{S_T0}, {LE}", "s_nop 0"]
        nv[16] += [f"buffer_load_dwordx4 v{V_L16}, {sr(SRD_WO,4)}, s{S_POFF} offen offset:{1024*i} lds" for i in range(4)]
        nv[16] += [f"s_add_u32 m0, s{S_RW}, {K0}", "L_nopf:"]
    va = sm_valu(ts, (k + 1) & 1)
    for p in range(17):
        A(qk_mfma(p, tq, k & 1) if p < 8 else (pv_mfma(p - 8, tp, k & 1) if p < 16 else l_mfma(tp, k & 1)))
        for x in nv[p]:
            if x.endswith(":"): A.raw(x); continue
            if OPT['nodma'] and x.startswith("buffer_load"): continue
            if OPT['nods'] and x.startswith("ds_read"): continue
            if OPT['nowait'] and x.startswith("s_waitcnt"): continue
            A(x)
        if OPT['novalu']: continue
        for x in va[p]: A(x)

def poll(A, tag, srd, soff, nwords, want, vtmp):
    A(f"s_mov_b32 s{S_SPIN}, {SPIN_MAX}")
    A.label(f"L_poll_{tag}")
    for i in range(nwords // 4):
        A(f"buffer_load_dwordx4 {vr(vtmp + 4*i, 4)}, off, {sr(srd,4)}, s{soff} offset:{16*i} sc1")
    A("s_waitcnt vmcnt(0)")
    for i in range(1, nwords): A(f"v_min_u32 v{vtmp}, v{vtmp}, v{vtmp+i}")
    A("s_nop 0")
    A(f"v_readfirstlane_b32 s{S_T0}, v{vtmp}")
    A("s_nop 3")
    A(f"s_cmp_ge_u32 s{S_T0}, {want}")
    A(f"s_cbranch_scc1 L_done_{tag}")
    A(f"s_sub_u32 s{S_SPIN}, s{S_SPIN}, 1")
    A(f"s_cmp_eq_u32 s{S_SPIN}, 0")
    A(f"s_cbranch_scc1 L_done_{tag}")
    A("s_sleep 1")
    A(f"s_branch L_poll_{tag}")
    A.label(f"L_done_{tag}")

def one_lane(A, instrs):
    A("s_mov_b64 exec, 1")
    for x in instrs: A(x)
    A("s_mov_b64 exec, -1")

def gen():
    A = Asm()
    A("s_cmp_ge_u32 s2, 256")
    A("s_cbranch_scc1 L_end")
    stamp(A, 0)
    A("s_load_dwordx16 s[64:79], s[0:1], 0")
    A(f"""
    v_lshrrev_b32 v2, 6, v0
    v_and_b32 v1, 63, v0
    s_and_b32 s{S_G}, s2, 7
    s_lshr_b32 s30, s2, 3
    v_readfirstlane_b32 s{S_W}, v2
    s_lshr_b32 s{S_B}, s30, 2
    s_and_b32 s{S_R}, s30, 3
    s_lshl_b32 s{S_H}, s{S_G}, 2
    s_add_u32 s{S_H}, s{S_H}, s{S_R}
    v_and_b32 v3, 15, v1
    v_lshrrev_b32 v4, 4, v1
    v_bfe_u32 v5, v1, 2, 2
    v_and_b32 v6, 3, v1
    s_lshl_b32 s{S_W1K}, s{S_W}, 10
    s_add_u32 s{S_ROT}, s{S_B}, s{S_R}
    s_and_b32 s{S_ROT}, s{S_ROT}, 3
    """)
    ACC, FA, FB, VX, VAW = 148, (188, 196), (204, 224), 244, 252
    VXD, VWD = 84, 92
    A(f"""
    s_lshl_b32 s30, s{S_W}, 2
    v_add_u32 v8, s30, v4                   ; 4w+gq
    v_xor_b32 v9, v3, v8
    v_lshlrev_b32 v9, 4, v9
    v_lshl_add_u32 v{VXD}, v8, 10, v9
    v_lshlrev_b32 v9, 2, v4
    v_xor_b32 v9, v3, v9
    v_lshlrev_b32 v9, 4, v9
    v_lshl_add_u32 v{VWD}, v8, 13, v9
    s_mul_i32 s31, s{S_B}, 81920
    """)
    for t in range(1, 5): A(f"v_add_u32 v{VXD+t}, {t*16384}, v{VXD}")
    for i in range(1, 4): A(f"v_add_u32 v{VWD+i}, {i*16*8192}, v{VWD}")
    WT = [100, 101, 97, 96, 95, 94, 93, 92]
    XT = [88, 89, 90, 91]
    A(f"s_lshl_b32 s{S_T1}, s{S_H}, 8")
    A(f"s_lshl_b32 s{S_T2}, s{S_ROT}, 1")
    for u in range(8):
        A(f"s_add_u32 s{S_T0}, s{S_T2}, {u}")
        A(f"s_and_b32 s{S_T0}, s{S_T0}, 7")
        A(f"s_lshl_b32 s{S_T0}, s{S_T0}, 19")
        A(f"s_add_u32 s{WT[u]}, s{S_T0}, s{S_T1}")
    for a_ in range(4):
        A(f"s_add_u32 s{S_T0}, s{S_ROT}, {a_}")
        A(f"s_and_b32 s{S_T0}, s{S_T0}, 3")
        A(f"s_lshl_b32 s{S_T0}, s{S_T0}, 8")
        A(f"s_add_u32 s{XT[a_]}, s{S_T0}, s31")
    A("s_waitcnt lgkmcnt(0)")
    if OPT.get('qstamps'): stamp(A, 14)
    A(f"""
    s_mov_b32 s{SRD_X}, s64
    s_mov_b32 s{SRD_X+1}, s65
    s_mov_b32 s{SRD_X+2}, {640*1024}
    s_mov_b32 s{SRD_X+3}, 0x00020000
    s_mov_b32 s{SRD_W}, s70
    s_mov_b32 s{SRD_W+1}, s71
    s_mov_b32 s{SRD_W+2}, {512*8192}
    s_mov_b32 s{SRD_W+3}, 0x00020000
    """)
    pool1 = [w*32768 + V0 + h*4096 for w in range(4) for h in range(2)] + [K1s, K1s + 4096]
    pool2 = [w*32768 + K1s + h*4096 for w in (1, 2, 3) for h in range(2)] + [w*32768 + V1 + h*4096 for w in (0, 1) for h in range(2)]
    xarea = lambda a, t: (pool1 if a < 2 else pool2)[(a & 1) * 5 + t]
    wblk = lambda u, e: [[2*32768 + V1, 3*32768 + V1], [LE, LE + 8192], [LE + 16384, LE + 24576], [K0, 32768 + K0], [2*32768 + K0, 3*32768 + K0]][u % 5][e]
    def xdma(a):
        return [[f"s_add_u32 m0, s{S_W1K}, {xarea(a, t)}", "s_nop 0", f"buffer_load_dwordx4 v{VXD+t}, {sr(SRD_X,4)}, s{XT[a]} offen lds"] for t in range(5)]
    def wdma(u):
        return [[f"s_add_u32 m0, s{S_W1K}, {wblk(u, e) + 4096*hh}", "s_nop 0", f"buffer_load_dwordx4 v{VWD+2*e+hh}, {sr(SRD_W,4)}, s{WT[u]} offen lds"]
                for e in range(2) for hh in range(2)]
    def xread(ks, t, dst):
        p = xarea(ks >> 2, t)
        return f"ds_read_b128 {vr(dst,4)}, v{VX + 4*(p >> 16) + (ks & 3)} offset:{p & 0xffff}"
    def wread(ks, jt, hf, dst):
        p = wblk(ks >> 1, ks & 1)
        return f"ds_read_b64_tr_b16 {vr(dst,2)}, v{VAW + (p >> 16)} offset:{(p & 0xffff) + 1024*hf + 8*jt}"
    for g_ in wdma(0) + xdma(0):
        for x in g_: A(x)
    if OPT.get('qstamps'): stamp(A, 15)
    B = Asm()
    B(f"""
    s_lshl_b32 s{S_RW}, s{S_W}, 15
    s_lshl_b32 s{S_W8}, s{S_W}, 13
    s_mov_b32 s{S_FB}, 0
    s_lshl_b32 s30, s{S_B}, 3
    s_add_u32 s30, s30, s{S_G}               ; b*8+g
    s_lshl_b32 s{S_F1}, s30, 7
    s_lshl_b32 s30, s30, 19
    s_add_u32 s{SRD_K}, s66, s30
    s_addc_u32 s{SRD_K+1}, s67, 0
    s_mov_b32 s{SRD_K+2}, 0x80000
    s_mov_b32 s{SRD_K+3}, 0x00020000
    s_add_u32 s{SRD_V}, s68, s30
    s_addc_u32 s{SRD_V+1}, s69, 0
    s_mov_b32 s{SRD_V+2}, 0x80000
    s_mov_b32 s{SRD_V+3}, 0x00020000
    s_add_u32 s{SRD_O}, s78, {WS_O}
    s_addc_u32 s{SRD_O+1}, s79, 0
    s_mov_b32 s{SRD_O+2}, {5 << 20}
    s_mov_b32 s{SRD_O+3}, 0x00020000
    s_add_u32 s{SRD_PP}, s78, {WS_P}
    s_addc_u32 s{SRD_PP+1}, s79, 0
    s_mov_b32 s{SRD_PP+2}, {5 << 20}
    s_mov_b32 s{SRD_PP+3}, 0x00020000
    s_add_u32 s{SRD_FL}, s78, {WS_F}
    s_addc_u32 s{SRD_FL+1}, s79, 0
    s_mov_b32 s{SRD_FL+2}, 16384
    s_mov_b32 s{SRD_FL+3}, 0x00020000
    s_mov_b32 s{SRD_WO}, s72
    s_mov_b32 s{SRD_WO+1}, s73
    s_mov_b32 s{SRD_WO+2}, {4096*1024}
    s_mov_b32 s{SRD_WO+3}, 0x00020000
    s_mov_b32 s{SRD_DBG}, s76
    s_mov_b32 s{SRD_DBG+1}, s77
    s_mov_b32 s{SRD_DBG+2}, 256
    s_mov_b32 s{SRD_DBG+3}, 0x00020000
    s_mov_b32 s{SRD_OUT}, s74
    s_mov_b32 s{SRD_OUT+1}, s75
    s_mov_b32 s{SRD_OUT+2}, {640*1024}
    s_mov_b32 s{SRD_OUT+3}, 0x00020000
    s_lshl_b32 s30, s{S_B}, 2
    s_add_u32 s30, s30, s{S_R}               ; b*4+r
    s_lshl_b32 s{S_F2}, s30, 7
    s_add_u32 s{S_F2}, s{S_F2}, 8192
    s_lshl_b32 s{S_POFF}, s{S_G}, 19
    s_lshl_b32 s30, s30, 14
    s_add_u32 s{S_POFF}, s{S_POFF}, s30
    s_lshl_b32 s30, s{S_W}, 12
    s_add_u32 s{S_POFF}, s{S_POFF}, s30
    v_lshlrev_b32 v{V_L16}, 4, v1
    v_xor_b32 v7, v4, v3
    v_lshlrev_b32 v7, 4, v7
    v_lshl_add_u32 v7, v3, 8, v7            ; n*256 + (gq^n)*16
    """)
    B(f"s_mov_b32 s{S_R15}, s2")
    table_setup(B)
    for s_ in range(4):
        B(f"v_xor_b32 v{VX+s_}, {64*s_}, v7")
        B(f"v_add_u32 v{VX+4+s_}, 0x10000, v{VX+s_}")
        B(f"v_add_u32 v{V_KA+s_}, s{S_RW}, v{VX+s_}")
    B(f"""
    v_lshl_add_u32 v8, v4, 3, v5
    s_lshl_b32 s30, s{S_W}, 2
    v_add_u32 v9, s30, v6
    v_lshlrev_b32 v2, 2, v5
    v_xor_b32 v9, v9, v2
    v_lshlrev_b32 v9, 4, v9
    v_lshl_add_u32 v9, v8, 8, v9
    v_mov_b32 v{VAW}, v9
    v_add_u32 v{VAW+1}, 0x10000, v9
    v_add_u32 v{VAW+2}, 0x20000, v9
    v_lshl_add_u32 v8, v4, 2, v5
    v_and_b32 v9, 7, v8
    v_lshlrev_b32 v9, 5, v9
    v_lshl_add_u32 v9, v8, 8, v9
    v_lshl_add_u32 v9, v6, 3, v9
    """)
    for dt in range(8):
        B(f"v_xor_b32 v{V_VA+dt}, {32*dt}, v9")
        B(f"v_add_u32 v{V_VA+dt}, s{S_RW}, v{V_VA+dt}")
    B(f"""
    v_xor_b32 v9, v3, v4
    v_lshlrev_b32 v9, 4, v9
    v_lshl_add_u32 v9, v4, 8, v9
    """)
    for i in range(4): B(f"v_xor_b32 v{V_KD+i}, {64*i}, v9")
    B(f"""
    v_lshlrev_b32 v9, 1, v4
    v_xor_b32 v9, v3, v9
    v_lshlrev_b32 v9, 4, v9
    v_lshl_add_u32 v{V_VD}, v4, 8, v9
    v_xor_b32 v{V_VD+1}, 128, v{V_VD}
    """)
    for i in range(160): B(f"v_accvgpr_write_b32 a{A_O+i}, 0")
    for i in range(32): B(f"v_mov_b32 v{V_VF+i}, 0")
    for i in range(4): B(f"v_mov_b32 v{V_P+i}, 0")
    for i in range(8): B(f"v_mov_b32 v{V_S+8+i}, 0xff7fffff")
    spread(A, [x.strip() for x in B.l], wdma(1))
    A(f"s_cmp_eq_u32 s{S_W}, 0")
    A("s_cbranch_scc0 L_noclr")
    A(f"s_lshl_b32 s{S_T0}, s{S_R}, 2")
    A(f"s_add_u32 s{S_T0}, s{S_T0}, s{S_F1}")
    A(f"s_lshl_b32 s{S_T1}, s{S_G}, 2")
    A(f"s_add_u32 s{S_T1}, s{S_T1}, s{S_F2}")
    A("v_mov_b32 v2, 0")
    one_lane(A, [f"buffer_store_dword v2, off, {sr(SRD_FL,4)}, s{S_T0} sc1", f"buffer_store_dword v2, off, {sr(SRD_FL,4)}, s{S_T1} sc1"])
    A.label("L_noclr")
    if OPT.get('qstamps'): stamp(A, 16)
    seq = ['W0'] * 4 + ['xA'] * 5 + ['W1'] * 4
    def vm_for(need):
        last = max(i for i, t in enumerate(seq) if t in need)
        return len(seq) - 1 - last
    A(f"s_waitcnt vmcnt({vm_for(['W0', 'xA'])})")
    if OPT.get('qstamps'): stamp(A, 17)
    A("s_barrier")
    stamp(A, 1)
    arrive = [f"s_cmp_eq_u32 s{S_W}, 0", "s_cbranch_scc0 L_noarr", f"s_lshr_b32 s{S_T0}, s{S_F1}, 5", "v_mov_b32 v2, 1", "s_mov_b64 exec, 1",
              f"buffer_atomic_add v2, off, {sr(SRD_DBG,4)}, s{S_T0} sc1", "s_mov_b64 exec, -1", "L_noarr:"]
    kg0, vg0 = kv_groups('K', 0), kv_groups('V', 0)
    kg0[0] = off_calc() + kg0[0]
    sched = {0: [('xB', xdma(1))], 1: [('W2', wdma(2))], 2: [('W3', wdma(3))], 3: [('W4', wdma(4))], 4: [('xC', xdma(2))], 5: [('W5', wdma(5))],
             6: [('W6', wdma(6))], 7: [('xD', xdma(3))], 8: [('W7', wdma(7))], 9: [('K0', kg0[:4])], 10: [('K0', kg0[4:])],
             11: [('V0', vg0[:3])], 12: [('V0', vg0[3:6])], 13: [('V0', vg0[6:])]}
    needs = {1: ['W1'], 3: ['xB', 'W2'], 5: ['W3'], 7: ['xC', 'W4'], 9: ['W5'], 11: ['xD', 'W6'], 13: ['W7'], 15: None}
    plan = {}
    for ks in range(16):
        p = {}
        if ks in needs:
            p['pre'] = ([f"s_waitcnt vmcnt({vm_for(needs[ks])})"] if needs[ks] else []) + ["s_barrier"]
            if ks == 3: p['pre'] += arrive
        fill = []
        for tag, gs in sched.get(ks, []):
            fill += gs; seq += [tag] * len(gs)
        p['fill'] = fill
        plan[ks] = p
    if OPT.get('qstamps'):
        for i, ks in enumerate((1, 3, 5, 7, 9, 11, 13, 15)): plan[ks]['stamp'] = 22 + i
    if OPT.get('fine'):
        for i, ks in enumerate(OPT['fine']): plan.setdefault(ks, {})['fine'] = 32 + 4 * i
    gemm_core(A, ACC, FA, FB, xread, wread, plan)
    stamp(A, 2)
    A(f"s_mov_b32 s30, {hex(f32(C_SCALE))}")
    A(f"v_add_u32 v8, s{S_W1K}, v{V_L16}")
    A(f"v_add_u32 v8, {LE}, v8")
    for x in off_calc(): A(x)
    B = Asm()
    for t in range(5):
        for jt in range(2):
            d = ACC + (jt*5 + t)*4
            for r in range(4): B(f"v_mul_f32 v{d+r}, s30, v{d+r}")
        q = FB[0] + 4*t
        for jt in range(2):
            d = ACC + (jt*5 + t)*4
            B(f"v_cvt_pk_bf16_f32 v{q+2*jt}, v{d}, v{d+1}")
            B(f"v_cvt_pk_bf16_f32 v{q+2*jt+1}, v{d+2}, v{d+3}")
        B(f"ds_write_b128 v8, {vr(q,4)} offset:{t*4096}")
    spread(A, [x.strip() for x in B.l], kv_groups('K', 1))
    A("s_waitcnt vmcnt(16) lgkmcnt(0)")
    A("s_barrier")
    stamp(A, 30)
    A(f"v_add_u32 v8, {LE}, v{V_L16}")
    ST = 188
    if OPT['standin']:
        for s in range(4): A(f"ds_read_b128 {vr(ST+4*s,4)}, v{VX+s} offset:{K0}")
    for t in range(5):
        for s in range(4): A(f"ds_read_b128 {ar(A_Q+(t*4+s)*4,4)}, v8 offset:{(t*4+s)*1024}")
    for p in range(8): A(k_read(p, 0))
    VL2, VA2, VWD2, VCHK = 244, 245, 247, 248
    A(f"""
    v_lshl_add_u32 v8, v4, 2, v5
    s_lshl_b32 s30, s{S_W}, 2
    v_add_u32 v9, s30, v6
    v_lshlrev_b32 v2, 2, v5
    v_xor_b32 v9, v9, v2
    v_lshlrev_b32 v9, 4, v9
    v_lshl_add_u32 v9, v8, 8, v9
    v_add_u32 v8, s30, v4
    v_lshlrev_b32 v2, 2, v4
    v_xor_b32 v2, v3, v2
    v_lshlrev_b32 v2, 4, v2
    """)
    for i in range(20): A(f"v_mov_b32 v{V_LM+i}, 0")
    for i in range(4): A(f"v_mov_b32 v{V_ONE+i}, 0x3f803f80")
    if OPT['standin']:
        A("s_waitcnt lgkmcnt(8)")
        for t in range(5):
            for s in range(4):
                d = V_NEG + 4*t
                A(f"v_mfma_f32_16x16x32_bf16 {vr(d,4)}, {vr(ST+4*s,4)}, {ar(A_Q+(t*4+s)*4,4)}, {'0' if s == 0 else vr(d,4)}")
    for g_ in kv_groups('V', 1):
        for x in g_: A(x)
    A(f"v_add_u32 v{VA2}, 0x10000, v9")
    A(f"v_add_u32 v{VA2+1}, 0x20000, v9")
    A(f"v_lshl_add_u32 v{VWD2}, v8, 10, v2")
    A(f"v_add_u32 v{VL2}, 0x10000, v{V_L16}")
    if OPT['standin']:
        T = 204
        A("s_nop 4")
        for t in range(5):
            d = V_NEG + 4*t
            A(f"v_max3_f32 v{T+t}, v{d}, v{d+1}, v{d+2}")
        for t in range(5): A(f"v_max_f32 v{T+t}, v{T+t}, v{V_NEG+4*t+3}")
        for swap in ("v_permlane32_swap_b32", "v_permlane16_swap_b32"):
            for t in range(5): A(f"v_mov_b32 v{T+8+t}, v{T+t}")
            for t in range(5): A(f"{swap} v{T+t}, v{T+8+t}")
            for t in range(5): A(f"v_max_f32 v{T+t}, v{T+t}, v{T+8+t}")
        for t in range(5):
            for r in range(4): A(f"v_xor_b32 v{V_NEG+4*t+r}, 0x80000000, v{T+t}")
    else:
        for i in range(20): A(f"v_mov_b32 v{V_NEG+i}, 0")
    A("s_waitcnt lgkmcnt(0)")
    A("s_barrier")
    A(f"s_mov_b32 s{S_CNT}, 8")
    stamp(A, 3)
    stamp_cyc(A, 20)
    A.raw(".p2align 6")
    A.label("L_loop")
    for k in range(10): main_stage(A, k)
    A(f"s_sub_u32 s{S_CNT}, s{S_CNT}, 1")
    A(f"s_cmp_lg_u32 s{S_CNT}, 0")
    A("s_cbranch_scc1 L_loop")
    stamp(A, 4)
    stamp_cyc(A, 21)
    xarea2 = lambda a, t: (a * 5 + t) * 4096
    wslot = [LE, LE + 16384, 81920, 98304, 114688]
    wblk2 = lambda u, e: wslot[u % 5] + 8192 * e
    def wdma2(u):
        pre = [f"s_lshl_b32 s{S_T0}, s{S_R}, 1", f"s_add_u32 s{S_T0}, s{S_T0}, {u}", f"s_and_b32 s{S_T0}, s{S_T0}, 7", f"s_lshl_b32 s{S_T0}, s{S_T0}, 16",
               f"s_add_u32 s{S_WK}, s{S_T0}, s{S_WOB}"]
        l = []
        for e in range(2):
            for hh in range(2):
                l.append([f"s_add_u32 m0, s{S_W1K}, {wblk2(u, e) + 4096*hh}", f"s_add_u32 s{S_T0}, s{S_WK}, {(32*e + 16*hh)*1024}",
                          f"buffer_load_dwordx4 v{VWD2}, {sr(SRD_WO,4)}, s{S_T0} offen lds"])
        l[0] = pre + l[0]
        return l
    def xdma2(a):
        pre = [f"s_add_u32 s{S_T0}, s{S_R}, {a}", f"s_and_b32 s{S_T0}, s{S_T0}, 3", f"s_lshl_b32 s{S_T0}, s{S_T0}, 2",
               f"s_add_u32 s{S_T0}, s{S_T0}, s{S_W}", f"s_mul_i32 s{S_T0}, s{S_T0}, 5120", f"s_add_u32 s{S_XOFF}, s{S_T0}, s{S_XB}"]
        l = []
        for t in range(5):
            l.append([f"s_add_u32 m0, s{S_W1K}, {xarea2(a, t)}", f"s_add_u32 s{S_T0}, s{S_XOFF}, {t*1024}",
                      f"buffer_load_dwordx4 v{V_L16}, {sr(SRD_O,4)}, s{S_T0} offen sc1 lds"])
        l[0] = pre + l[0]
        return l
    flat = lambda gs: [x for g_ in gs for x in g_]
    def xread2(ks, t, dst):
        p = xarea2(ks >> 2, t) + (ks & 3) * 1024
        return f"ds_read_b128 {vr(dst,4)}, v{V_L16 if p < 65536 else VL2} offset:{p & 0xffff}"
    def wread2(ks, jt, hf, dst):
        p = wblk2(ks >> 1, ks & 1)
        return f"ds_read_b64_tr_b16 {vr(dst,2)}, v{VA2 + (p >> 16) - 1} offset:{(p & 0xffff) + 4096*hf + 8*jt}"
    A(f"s_lshl_b32 s{S_T2}, s{S_B}, 5")
    A(f"buffer_load_dwordx4 {vr(VCHK,4)}, off, {sr(SRD_DBG,4)}, s{S_T2} sc1")
    A(f"buffer_load_dwordx4 {vr(VCHK+4,4)}, off, {sr(SRD_DBG,4)}, s{S_T2} offset:16 sc1")
    A(f"s_lshl_b32 s{S_WOB}, s{S_G}, 19")
    A(f"s_lshl_b32 s{S_T1}, s{S_R}, 8")
    A(f"s_add_u32 s{S_WOB}, s{S_WOB}, s{S_T1}")
    for x in flat(wdma2(0) + wdma2(1)): A(x)
    A(f"s_lshl_b32 s30, s{S_B}, 7")
    A(f"s_lshl_b32 s31, s{S_G}, 4")
    A(f"s_add_u32 s30, s30, s31")
    A(f"s_mul_i32 s{S_XB}, s30, 5120")
    va = sm_valu(4, 1)
    for p in range(17):
        if p >= 8: A(pv_mfma(p - 8, 3, 0) if p < 16 else l_mfma(3, 0))
        for x in va[p]: A(x)
        if p < 8 and p % 4 in (1,): A("s_nop 0")
    A("s_nop 1")
    for dt in range(8): A(pv_mfma(dt, 4, 1))
    A(l_mfma(4, 1))
    A.label("L_combine")
    XL = 122880
    A("s_waitcnt vmcnt(10)")
    A("s_barrier")
    A(f"v_lshlrev_b32 v8, 2, v1")
    A(f"s_mul_i32 s30, s{S_W}, 1280")
    A(f"s_add_u32 s30, s30, {XL}")
    A(f"v_add_u32 v9, s30, v8")
    A("s_nop 1")
    for t in range(5): A(f"ds_write_b32 v9, v{V_LM+4*t} offset:{256*t}")
    TO = 60
    for d in range(4):
        A(f"s_cmp_eq_u32 s{S_W}, {d}")
        A(f"s_cbranch_scc1 L_own{d}")
        A(f"s_sub_u32 s30, s{S_W}, {d+1}")
        A(f"s_and_b32 s30, s30, 3")
        A(f"s_mul_i32 s30, s30, 10240")
        A(f"s_add_u32 s30, s30, {d*30720}")
        A(f"v_add_u32 v9, s30, v{V_L16}")
        for t in range(5):
            for j in range(2):
                A(f"ds_write_b128 v9, {ar(A_O + (t*8 + 2*d + j)*4, 4)} offset:{(t*2+j)*1024}")
        A(f"s_branch L_nxt{d}")
        A.label(f"L_own{d}")
        for t in range(5):
            for j in range(2):
                for r in range(4): A(f"v_accvgpr_read_b32 v{TO + (t*2+j)*4 + r}, a{A_O + (t*8 + 2*d + j)*4 + r}")
        A.label(f"L_nxt{d}")
    A("s_waitcnt lgkmcnt(0)")
    A("s_barrier")
    stamp(A, 5)
    TL, RC, TR = 100, 120, 130
    A(f"v_add_u32 v9, {XL}, v8")
    for w in range(4):
        for t in range(5): A(f"ds_read_b32 v{TL + w*5 + t}, v9 offset:{w*1280 + t*256}")
    A(f"s_mul_i32 s30, s{S_W}, 30720")
    A(f"v_add_u32 v9, s30, v{V_L16}")
    rq = lambda q, sl: TR + ((q % 5)*3 + sl)*4
    def rd(q):
        for sl in range(3): A(f"ds_read_b128 {vr(rq(q, sl), 4)}, v9 offset:{(sl*10+q)*1024}")
    for q in range(3): rd(q)
    A("s_waitcnt lgkmcnt(9)")
    for t in range(5):
        A(f"v_add_f32 v{TL+t}, v{TL+t}, v{TL+5+t}")
        A(f"v_add_f32 v{TL+10+t}, v{TL+10+t}, v{TL+15+t}")
    for t in range(5): A(f"v_add_f32 v{TL+t}, v{TL+t}, v{TL+10+t}")
    if OPT['fallback']:
        A(f"v_add_f32 v{TL+9}, v{TL}, v{TL+1}")
        A(f"v_add_f32 v{TL+9}, v{TL+9}, v{TL+2}")
        A(f"v_add_f32 v{TL+9}, v{TL+9}, v{TL+3}")
        A(f"v_add_f32 v{TL+9}, v{TL+9}, v{TL+4}")
        A(f"s_mov_b32 s30, {hex(f32(2.0**40))}")
        A(f"v_cmp_ngt_f32 s[{S_BAD}:{S_BAD+1}], s30, v{TL+9}")
    for t in range(5): A(f"v_rcp_f32 v{RC+2*t}, v{TL+t}")
    OF = 100
    for q in range(10):
        if q + 3 < 10: rd(q + 3)
        A(f"s_waitcnt lgkmcnt({min(9, 3*(9-q))})")
        if q == 9: A("s_barrier")
        o = TO + 4*q
        for sl in range(3):
            for h in range(2):
                A(f"v_pk_add_f32 {vr(o+2*h,2)}, {vr(o+2*h,2)}, {vr(rq(q, sl)+2*h,2)}")
        t = q >> 1
        for h in range(2): A(f"v_pk_mul_f32 {vr(o+2*h,2)}, {vr(o+2*h,2)}, {vr(RC+2*t,2)} op_sel_hi:[1,0]")
    if OPT['fallback']:
        A(f"s_cmp_eq_u64 s[{S_BAD}:{S_BAD+1}], 0")
        A("s_cbranch_scc1 L_sum_ok")
        A(f"s_cmp_eq_u32 s{S_FB}, 0")
        A("s_cbranch_scc1 L_fallback")
        A.label("L_sum_ok")
    for t in range(5):
        for i in range(4): A(f"v_cvt_pk_bf16_f32 v{OF+4*t+i}, v{TO + t*8 + 2*i}, v{TO + t*8 + 2*i + 1}")
    stamp(A, 6)
    A(f"s_lshl_b32 s30, s{S_R}, 2")
    A(f"s_add_u32 s30, s30, s{S_W}")
    A(f"s_mul_i32 s30, s30, 5120")
    A(f"s_add_u32 s30, s30, s{S_XB}")
    for t in range(5):
        if t == 4: A("s_add_u32 s30, s30, 4096")
        A(f"buffer_store_dwordx4 {vr(OF+4*t,4)}, v{V_L16}, {sr(SRD_O,4)}, s30 offen offset:{(t*1024) & 4095} sc1")
    A(f"v_add_u32 v8, s{S_W1K}, v{V_L16}")
    for t in range(5): A(f"ds_write_b128 v8, {vr(OF+4*t,4)} offset:{xarea2(0, t)}")
    for x in flat(wdma2(2) + wdma2(3) + wdma2(4)): A(x)
    A("s_waitcnt vmcnt(12) lgkmcnt(0)")
    A("s_barrier")
    A(f"s_cmp_eq_u32 s{S_W}, 0")
    A("s_cbranch_scc0 L_noflag1")
    A(f"s_lshl_b32 s{S_T0}, s{S_R}, 2")
    A(f"s_add_u32 s{S_T0}, s{S_T0}, s{S_F1}")
    A("v_mov_b32 v2, 1")
    one_lane(A, [f"buffer_store_dword v2, off, {sr(SRD_FL,4)}, s{S_T0} sc1"])
    A.label("L_noflag1")
    stamp(A, 7)
    def wait_group(A):
        for i in range(1, 8): A(f"v_min_u32 v{VCHK}, v{VCHK}, v{VCHK+i}")
        A("s_nop 0")
        A(f"v_readfirstlane_b32 s{S_T0}, v{VCHK}")
        A("s_nop 3")
        A(f"s_cmp_ge_u32 s{S_T0}, 4")
        A("s_cbranch_scc1 L_done_init")
        A(f"s_lshl_b32 s{S_T2}, s{S_B}, 5")
        poll(A, "init", SRD_DBG, S_T2, 8, 4, VCHK)
        poll(A, "f1", SRD_FL, S_F1, 4, 1, VCHK)
        stamp(A, 8)
        for x in flat(xdma2(1) + xdma2(2) + xdma2(3)): A(x)
        A("s_waitcnt vmcnt(10)")
        A("s_barrier")
        stamp(A, 9)
    plan2 = {1: dict(pre=["s_barrier"], fill=wdma2(5)),
             3: dict(pre=["s_barrier"], fill=wdma2(6), late=wait_group),
             5: dict(pre=["s_barrier"], fill=wdma2(7)),
             7: dict(pre=["s_waitcnt vmcnt(9)", "s_barrier"]),
             11: dict(pre=["s_waitcnt vmcnt(4)", "s_barrier"]),
             13: dict(pre=["s_waitcnt vmcnt(0)", "s_barrier"])}
    gemm_core(A, ACC, FA, FB, xread2, wread2, plan2)
    stamp(A, 10)
    A(f"""
    s_lshl_b32 s30, s{S_B}, 2
    s_add_u32 s30, s30, s{S_R}
    s_lshl_b32 s30, s30, 2
    s_mul_i32 s{S_XB}, s30, 40960
    s_mul_i32 s30, s{S_W}, 40960
    s_add_u32 s30, s30, s{S_XB}
    s_lshl_b32 s31, s{S_G}, 10
    s_add_u32 s30, s30, s31
    """)
    PB = 60
    for t in range(5):
        d0, d1 = ACC + 4*t, ACC + 4*(5 + t)
        A(f"v_cvt_pk_bf16_f32 v{PB+4*t}, v{d0}, v{d0+1}")
        A(f"v_cvt_pk_bf16_f32 v{PB+4*t+1}, v{d0+2}, v{d0+3}")
        A(f"v_cvt_pk_bf16_f32 v{PB+4*t+2}, v{d1}, v{d1+1}")
        A(f"v_cvt_pk_bf16_f32 v{PB+4*t+3}, v{d1+2}, v{d1+3}")
        A(f"s_add_u32 s31, s30, {t*8192}")
        A(f"buffer_store_dwordx4 {vr(PB+4*t,4)}, v{V_L16}, {sr(SRD_PP,4)}, s31 offen sc1")
    A("s_waitcnt vmcnt(0)")
    A("s_barrier")
    A(f"s_cmp_eq_u32 s{S_W}, 0")
    A("s_cbranch_scc0 L_noflag2")
    A(f"s_lshl_b32 s{S_T0}, s{S_G}, 2")
    A(f"s_add_u32 s{S_T0}, s{S_T0}, s{S_F2}")
    A("v_mov_b32 v2, 1")
    one_lane(A, [f"buffer_store_dword v2, off, {sr(SRD_FL,4)}, s{S_T0} sc1"])
    A.label("L_noflag2")
    stamp(A, 11)
    A(f"s_lshl_b32 s30, s{S_W}, 3")
    A(f"s_add_u32 s30, s30, s{S_G}")
    A("s_cmp_ge_u32 s30, 20")
    A("s_cbranch_scc1 L_fin")
    poll(A, "f2", SRD_FL, S_F2, 8, 1, VCHK)
    stamp(A, 12)
    A(f"s_mul_hi_u32 s31, s30, {(1 << 32)//5 + 1}")
    A(f"s_mul_i32 s{S_T0}, s31, 5")
    A(f"s_sub_u32 s{S_T1}, s30, s{S_T0}              ; t")
    A(f"s_mul_i32 s{S_T0}, s31, 40960")
    A(f"s_add_u32 s{S_T0}, s{S_T0}, s{S_XB}")
    A(f"s_lshl_b32 s{S_T2}, s{S_T1}, 13")
    A(f"s_add_u32 s{S_T0}, s{S_T0}, s{S_T2}")
    RB = 60
    for g in range(8):
        if g == 4: A(f"s_add_u32 s{S_T0}, s{S_T0}, 4096")
        A(f"buffer_load_dwordx4 {vr(RB + 4*g, 4)}, v{V_L16}, {sr(SRD_PP,4)}, s{S_T0} offen offset:{(g%4)*1024} sc1")
    A(f"""
    s_mul_i32 s{S_T0}, s{S_B}, 80
    s_lshl_b32 s{S_T1}, s{S_T1}, 4
    s_add_u32 s{S_T0}, s{S_T0}, s{S_T1}
    v_add_u32 v8, s{S_T0}, v3
    v_lshlrev_b32 v8, 10, v8
    s_lshl_b32 s{S_T0}, s{S_R}, 2
    s_add_u32 s{S_T0}, s{S_T0}, s31
    s_lshl_b32 s{S_T0}, s{S_T0}, 6
    v_lshl_add_u32 v8, v4, 4, v8
    v_add_u32 v8, s{S_T0}, v8
    """)
    SUM, UN = 100, 110
    for g in range(8):
        A(f"s_waitcnt vmcnt({7-g})")
        dst = SUM if g == 0 else UN
        for i in range(4):
            A(f"v_lshlrev_b32 v{dst+2*i}, 16, v{RB+4*g+i}")
            A(f"v_and_b32 v{dst+2*i+1}, 0xffff0000, v{RB+4*g+i}")
        if g:
            for i in range(4): A(f"v_pk_add_f32 {vr(SUM+2*i,2)}, {vr(SUM+2*i,2)}, {vr(UN+2*i,2)}")
    for i in range(4): A(f"v_cvt_pk_bf16_f32 v{RB+64+i}, v{SUM+2*i}, v{SUM+2*i+1}")
    A(f"buffer_store_dwordx4 {vr(RB+64,4)}, v8, {sr(SRD_OUT,4)}, 0 offen")
    A.label("L_fin")
    A("s_waitcnt vmcnt(0)")
    stamp(A, 13)
    stamp_out(A)
    if OPT.get('amp'):
        i0, i1, M = OPT['amp']
        A(f"s_add_u32 s30, s{S_R15}, s{S_W}")
        A("s_cmp_eq_u32 s30, 0")
        A("s_cbranch_scc0 L_end")
        A(f"v_readlane_b32 s30, v39, {i0}")
        A(f"v_readlane_b32 s31, v39, {i1}")
        A("s_nop 3")
        A("s_sub_u32 s30, s31, s30")
        A("s_min_u32 s30, s30, 10000")
        A(f"s_mul_i32 s30, s30, {M}")
        A("s_memrealtime s[64:65]")
        A("s_waitcnt lgkmcnt(0)")
        A.label("L_amp")
        A("s_sleep 4")
        A("s_memrealtime s[66:67]")
        A("s_waitcnt lgkmcnt(0)")
        A("s_sub_u32 s31, s66, s64")
        A("s_cmp_lt_u32 s31, s30")
        A("s_cbranch_scc1 L_amp")
    A.label("L_end")
    A("s_endpgm")
    if OPT['fallback']: gen_fallback(A)
    return A.text()

def gen_fallback(A):
    M, AL, T = V_NEG, V_NEG + 8, 148
    SF = 160
    A.label("L_fallback")
    A(f"s_mov_b32 s{S_FB}, 1")
    for i in range(160): A(f"v_accvgpr_write_b32 a{A_O+i}, 0")
    for i in range(10): A(f"v_mov_b32 v{V_L+i}, 0")
    for t in range(5): A(f"v_mov_b32 v{M+t}, 0xff7fffff")
    A(f"s_mov_b32 s{S_CNT}, 16")
    A(f"s_mov_b32 s{S_OFF}, s{S_W8}")
    A.label("L_fb_loop")
    A(f"s_add_u32 s{S_OFF2}, s{S_OFF}, 4096")
    for x in with_m0_gap(kv_dma('K', 0)) + with_m0_gap(kv_dma('V', 0)): A(x)
    A("s_waitcnt vmcnt(0)")
    for p in range(8): A(k_read(p, 0))
    for dt in range(8):
        for hf in range(2): A(v_read(dt, hf, 0))
    A("s_waitcnt lgkmcnt(0)")
    for t in range(5):
        for p in range(8):
            kt, s = p >> 2, p & 3
            d = SF + 8*t + 4*kt
            A(f"v_mfma_f32_16x16x32_bf16 {vr(d,4)}, {vr(V_KF+4*p,4)}, {ar(A_Q+(t*4+s)*4,4)}, {'0' if s == 0 else vr(d,4)}")
    A("s_nop 7")
    for t in range(5):
        d = SF + 8*t
        A(f"v_max3_f32 v{T+t}, v{d}, v{d+1}, v{d+2}")
        A(f"v_max3_f32 v{T+t}, v{T+t}, v{d+3}, v{d+4}")
        A(f"v_max3_f32 v{T+t}, v{T+t}, v{d+5}, v{d+6}")
        A(f"v_max3_f32 v{T+t}, v{T+t}, v{d+7}, v{M+t}")
    A("s_nop 1")
    for swap in ("v_permlane32_swap_b32", "v_permlane16_swap_b32"):
        for t in range(5): A(f"v_mov_b32 v{T+5+t}, v{T+t}")
        for t in range(5): A(f"{swap} v{T+t}, v{T+5+t}")
        for t in range(5): A(f"v_max_f32 v{T+t}, v{T+t}, v{T+5+t}")
    for t in range(5): A(f"v_sub_f32 v{AL+t}, v{M+t}, v{T+t}")
    for t in range(5): A(f"v_exp_f32 v{AL+t}, v{AL+t}")
    for t in range(5): A(f"v_mov_b32 v{M+t}, v{T+t}")
    for t in range(5):
        for i in range(8): A(f"v_sub_f32 v{SF+8*t+i}, v{SF+8*t+i}, v{M+t}")
    for t in range(5):
        for i in range(8): A(f"v_exp_f32 v{SF+8*t+i}, v{SF+8*t+i}")
    A("s_nop 0")
    for t in range(5):
        A(f"v_mul_f32 v{V_L+2*t}, v{V_L+2*t}, v{AL+t}")
        for i in range(8): A(f"v_add_f32 v{V_L+2*t}, v{V_L+2*t}, v{SF+8*t+i}")
    for t in range(5):
        for i in range(32):
            A(f"v_accvgpr_read_b32 v{T+10}, a{A_O+t*32+i}")
            A(f"v_mul_f32 v{T+10}, v{T+10}, v{AL+t}")
            A(f"v_accvgpr_write_b32 a{A_O+t*32+i}, v{T+10}")
    PF = 200
    for t in range(5):
        for i in range(4): A(f"v_cvt_pk_bf16_f32 v{PF+4*t+i}, v{SF+8*t+2*i}, v{SF+8*t+2*i+1}")
    A("s_nop 1")
    for t in range(5):
        for dt in range(8):
            o = A_O + (t*8 + dt)*4
            A(f"v_mfma_f32_16x16x32_bf16 {ar(o,4)}, {vr(V_VF+4*dt,4)}, {vr(PF+4*t,4)}, {ar(o,4)}")
    A("s_nop 7")
    A(f"s_add_u32 s{S_OFF}, s{S_OFF}, 0x8000")
    A(f"s_sub_u32 s{S_CNT}, s{S_CNT}, 1")
    A(f"s_cmp_lg_u32 s{S_CNT}, 0")
    A("s_cbranch_scc1 L_fb_loop")
    XL = 0
    A("s_barrier")
    A(f"v_lshlrev_b32 v8, 2, v1")
    A(f"s_mul_i32 s30, s{S_W}, 1280")
    A(f"s_add_u32 s30, s30, {XL}")
    A(f"v_add_u32 v9, s30, v8")
    for t in range(5): A(f"ds_write_b32 v9, v{M+t} offset:{256*t}")
    A("s_waitcnt lgkmcnt(0)")
    A("s_barrier")
    for w in range(4):
        for t in range(5): A(f"ds_read_b32 v{SF + w*5 + t}, v8 offset:{XL + w*1280 + t*256}")
    A("s_waitcnt lgkmcnt(0)")
    for t in range(5):
        A(f"v_max3_f32 v{T+t}, v{SF+t}, v{SF+5+t}, v{SF+10+t}")
        A(f"v_max_f32 v{T+t}, v{T+t}, v{SF+15+t}")
        A(f"v_sub_f32 v{AL+t}, v{M+t}, v{T+t}")
    for t in range(5): A(f"v_exp_f32 v{AL+t}, v{AL+t}")
    A("s_nop 0")
    for t in range(5): A(f"v_mul_f32 v{V_L+2*t}, v{V_L+2*t}, v{AL+t}")
    for swap in ("v_permlane32_swap_b32", "v_permlane16_swap_b32"):
        for t in range(5): A(f"v_mov_b32 v{V_L+2*t+1}, v{V_L+2*t}")
        for t in range(5): A(f"{swap} v{V_L+2*t}, v{V_L+2*t+1}")
        for t in range(5): A(f"v_add_f32 v{V_L+2*t}, v{V_L+2*t}, v{V_L+2*t+1}")
    for t in range(5):
        for i in range(32):
            A(f"v_accvgpr_read_b32 v{T+10}, a{A_O+t*32+i}")
            A(f"v_mul_f32 v{T+10}, v{T+10}, v{AL+t}")
            A(f"v_accvgpr_write_b32 a{A_O+t*32+i}, v{T+10}")
    for t in range(5): A(f"v_mov_b32 v{V_LM+4*t}, v{V_L+2*t}")
    A("s_waitcnt vmcnt(0)")
    A("s_branch L_combine")

def build():
    s = HEADER + "; @launch grid=(256,1,1) block=(256,1,1) lds=163840\n"
    s += '.amdgcn_target "amdgcn-amd-amdhsa--gfx950"\n.text\n' + kernel_start(NAME) + gen()
    s += '.section .rodata,"a"\n.p2align 6\n' + kernel_desc(NAME, 512, 256, 102)
    return s

if __name__ == "__main__":
    out = sys.argv[1]
    for kv in sys.argv[2:]:
        k_, v_ = kv.split("=")
        OPT[k_] = eval(v_)
    open(out, "w").write(build())
```

```python
import sys, struct, math
from lib import *

def f32(x): return struct.unpack("<I", struct.pack("<f", x))[0]
C_SCALE = math.log2(math.e) / math.sqrt(128.0)
NAME = "standalone__gqa_block_cached__near_ridge_kernel"

WS_O = 0
WS_P = 8 << 20
WS_F = 24 << 20
WS_ST = 64 << 20
OPT = dict(standin=True, fallback=True, stamps=False, nodma=False, nods=False, novalu=False, nowait=False, wopf=True, order='X', kvpol='', codepf=True, qvar=4)

V_KA, V_VA, V_KD, V_VD, V_L, V_L16, V_NEG, V_S, V_P, V_KF, V_VF = 10, 14, 22, 26, 28, 38, 40, 60, 76, 84, 116
A_O, A_Q = 0, 160
S_G, S_B, S_R, S_W, S_H, S_RW = 24, 25, 26, 27, 28, 29
S_T, S_R15, S_W8, S_END, S_OFF, S_OFF2, S_CNT, S_W1K, S_XOFF, S_WK, S_ROT, S_FB = 32, 33, 34, 35, 36, 37, 38, 39, 40, 41, 42, 43
S_T0, S_T1, S_T2, S_SPIN = 60, 61, 62, 63
S_TAB = 2
SRD_X, SRD_K, SRD_V, SRD_W, SRD_O, SRD_WO, SRD_PP, SRD_FL, SRD_DBG, SRD_OUT = 4, 8, 12, 16, 20, 44, 48, 52, 56, 84
S_POFF, S_F1, S_F2, S_XB, S_WOB, S_BAD = 80, 81, 82, 83, 88, 90
K0, K1s, V0, V1 = 0, 8192, 16384, 24576
LE = 131072
SPIN_MAX = 20000

def stamp(A, i):
    if not OPT['stamps']: return
    A("s_memrealtime s[98:99]")
    A("s_waitcnt lgkmcnt(0)")
    A(f"v_writelane_b32 v39, s98, {i}")
def stamp_cyc(A, i):
    if not OPT['stamps']: return
    A("s_memtime s[98:99]")
    A("s_waitcnt lgkmcnt(0)")
    A(f"v_writelane_b32 v39, s98, {i}")
def stamp_out(A):
    if not OPT['stamps']: return
    A("s_load_dwordx2 s[92:93], s[0:1], 56")
    A("s_waitcnt lgkmcnt(0)")
    A(f"s_add_u32 s92, s92, {WS_ST}")
    A("s_addc_u32 s93, s93, 0")
    A("s_mov_b32 s94, 0x100000")
    A("s_mov_b32 s95, 0x00020000")
    A(f"s_lshl_b32 s96, s{S_R15}, 2")
    A(f"s_add_u32 s96, s96, s{S_W}")
    A("s_lshl_b32 s96, s96, 8")
    A("v_lshlrev_b32 v2, 2, v1")
    A("buffer_store_dword v39, v2, s[92:95], s96 offen")
    A("s_waitcnt vmcnt(0)")

def gemm_core(A, acc, FA, FB, xread, wread, plan):
    def reads(ks):
        buf = ks & 1
        w = [wread(ks, jt, hf, FA[buf] + 4 * jt + 2 * hf) for jt in range(2) for hf in range(2)]
        x = [xread(ks, t, FB[buf] + 4 * t) for t in range(5)]
        return [w[0], w[1], x[0], w[2], w[3], x[1], x[2], x[3], x[4]]
    for r in reads(0): A(r)
    for ks in range(16):
        buf = ks & 1
        p = plan.get(ks, {})
        fine = p.get('fine')
        if fine is not None: stamp_cyc(A, fine)
        A("s_waitcnt lgkmcnt(0)")
        for x in p.get('pre', []):
            A(x)
            if fine is not None and x.startswith("s_waitcnt vmcnt"): stamp_cyc(A, fine + 1)
            if fine is not None and x == "s_barrier": stamp_cyc(A, fine + 2)
        if p.get('stamp') is not None: stamp(A, p['stamp'])
        extra = list(p.get('fill', []))
        late = p.get('late')
        fill = reads(ks + 1) if (ks < 15 and late is None) else []
        m = 0
        groups = extra; extra = []
        for t in range(5):
            for jt in range(2):
                d = acc + (jt * 5 + t) * 4
                c = "0" if ks == 0 else vr(d, 4)
                A(f"v_mfma_f32_16x16x32_bf16 {vr(d,4)}, {vr(FA[buf]+4*jt,4)}, {vr(FB[buf]+4*t,4)}, {c}")
                n = 0
                while fill and n < 2: A(fill.pop(0)); n += 1
                bg = p.get('burst_gap')
                if bg is not None:
                    if m == bg:
                        for g_ in groups:
                            for x in g_: A(x)
                        groups = []
                elif not fill and groups and m >= 3:
                    k = (len(groups) + (9 - m)) // (10 - m)
                    for _ in range(min(k, len(groups))):
                        for x in groups.pop(0): A(x)
                m += 1
        for g_ in groups:
            for x in g_: A(x)
        for e in extra: A(e)
        if fine is not None: stamp_cyc(A, fine + 3)
        if late is not None:
            late(A) if callable(late) else [A(x) for x in late]
            if ks < 15:
                for r in reads(ks + 1): A(r)

def segments(scheme, phi):
    if scheme == 'rot4': return None
    return {'X': [[1,4,4,4,3], [2,4,4,4,2], [3,4,4,4,1], [4,4,4,4]],
            'Y': [[2,4,4,4,2], [2,1,4,4,4,1], [2,1,1,4,4,4], [2,1,1,1,4,4,3]],
            'Z': [[1,4,4,4,3], [1,1,4,4,4,2], [1,1,1,4,4,4,1], [1,1,1,1,4,4,4]],
            'Y2': [[2,4,4,4,2], [2,2,4,4,4], [2,3,4,4,3], [2,4,4,4,2]],
            'L': [[1]*16]*4,
            'R2': [[2]*8, [1] + [2]*7 + [1], [2]*8, [1] + [2]*7 + [1]],
            'R4': [[4]*4]*4}[scheme][phi]
def tile_order(scheme, phi, r):
    seg = segments(scheme, phi)
    if seg is None:
        return [((i + phi) & 12) | ((i + phi + r) & 3) for i in range(16)]
    out = []; s0 = 0
    for n in seg:
        out += [s0 + ((u + r) % n) for u in range(n)]; s0 += n
    assert sorted(out) == list(range(16)), (scheme, phi, r, out)
    return out
def table_setup(A):
    A(f"s_and_b32 s{S_T0}, s{S_B}, 3")
    A(f"s_lshl_b32 s{S_T0}, s{S_T0}, 2")
    A(f"s_add_u32 s{S_T0}, s{S_T0}, s{S_R}")
    for idx in range(16):
        o = tile_order(OPT['order'], idx >> 2, idx & 3)
        v = sum(t << (4 * i) for i, t in enumerate(o))
        if idx == 0:
            A(f"s_mov_b32 s{S_TAB}, {hex(v & 0xffffffff)}"); A(f"s_mov_b32 s{S_TAB+1}, {hex(v >> 32)}")
        else:
            A(f"s_cmp_eq_u32 s{S_T0}, {idx}")
            A(f"s_cselect_b32 s{S_TAB}, {hex(v & 0xffffffff)}, s{S_TAB}")
            A(f"s_cselect_b32 s{S_TAB+1}, {hex(v >> 32)}, s{S_TAB+1}")
    A(f"s_mov_b32 s{S_T}, 0")
def off_calc():
    return [f"s_and_b32 s{S_T0}, s{S_TAB}, 15",
            f"s_lshl_b32 s{S_T0}, s{S_T0}, 15",
            f"s_or_b32 s{S_OFF}, s{S_T0}, s{S_W8}",
            f"s_lshr_b64 s[{S_TAB}:{S_TAB+1}], s[{S_TAB}:{S_TAB+1}], 4",
            f"s_cmp_ge_u32 s{S_T}, 16",
            f"s_cselect_b32 s{S_OFF}, 0x80000, s{S_OFF}",
            f"s_add_u32 s{S_OFF2}, s{S_OFF}, 4096",
            f"s_add_u32 s{S_T}, s{S_T}, 1"]
def kv_dma(which, slot):
    srd = SRD_K if which == 'K' else SRD_V
    base = (K0, K1s)[slot] if which == 'K' else (V0, V1)[slot]
    l = []
    for half in range(2):
        l.append(f"s_add_u32 m0, s{S_RW}, {base + 4096 * half}")
        so = S_OFF if half == 0 else S_OFF2
        for i in range(4):
            vo = V_KD + i if which == 'K' else V_VD + (i & 1)
            l.append(f"buffer_load_dwordx4 v{vo}, {sr(srd,4)}, s{so} offen offset:{1024*i} {OPT['kvpol']} lds".replace("  ", " "))
    return l
def with_m0_gap(l):
    out = []
    for x in l:
        out.append(x)
        if x.startswith("s_add_u32 m0"): out.append("s_nop 0")
    return out
def kv_groups(which, slot):
    d = kv_dma(which, slot)
    return [[d[0], "s_nop 0", d[1]], [d[2]], [d[3]], [d[4]], [d[5], "s_nop 0", d[6]], [d[7]], [d[8]], [d[9]]]
def spread(A, main, groups, start=0):
    n = len(main); g = list(groups); k = len(g)
    pos = [start + (n - start) * (i + 1) // (k + 1) for i in range(k)]
    for i, x in enumerate(main):
        while pos and pos[0] <= i and not x.startswith(("s_addc", "s_cselect", "s_cbranch")):
            pos.pop(0)
            for y in g.pop(0): A(y)
        A(x)
    for gg in g:
        for y in gg: A(y)
def k_read(p, slot):
    kt, s = p >> 2, p & 3
    return f"ds_read_b128 {vr(V_KF + 4*p, 4)}, v{V_KA + s} offset:{(K0, K1s)[slot] + 4096*kt}"
def v_read(dt, hf, slot):
    return f"ds_read_b64_tr_b16 {vr(V_VF + 4*dt + 2*hf, 2)}, v{V_VA + dt} offset:{(V0, V1)[slot] + 4096*hf}"
def qk_mfma(p, tq, sbuf):
    kt, s = p >> 2, p & 3
    d = V_S + 8 * sbuf + 4 * kt
    c = vr(V_NEG + 4 * tq, 4) if s == 0 else vr(d, 4)
    return f"v_mfma_f32_16x16x32_bf16 {vr(d,4)}, {vr(V_KF + 4*p, 4)}, {ar(A_Q + (tq*4 + s)*4, 4)}, {c}"
def pv_mfma(dt, tp, pbuf):
    o = A_O + (tp * 8 + dt) * 4
    return f"v_mfma_f32_16x16x32_bf16 {ar(o,4)}, {vr(V_VF + 4*dt, 4)}, {vr(V_P + 4*pbuf, 4)}, {ar(o,4)}"
V_LM, V_ONE = 148, 168
def l_mfma(tp, pbuf):
    d = V_LM + 4 * tp
    return f"v_mfma_f32_16x16x32_bf16 {vr(d,4)}, {vr(V_ONE,4)}, {vr(V_P + 4*pbuf, 4)}, {vr(d,4)}"
def sm_valu(ts, buf):
    S = V_S + 8 * buf; P = V_P + 4 * buf
    g = [[] for _ in range(17)]
    for q in range(4):
        e0, e1 = S + 2 * q, S + 2 * q + 1
        g[4*q + 0].append(f"v_exp_f32 v{e0}, v{e0}")
        g[4*q + 1].append(f"v_exp_f32 v{e1}, v{e1}")
        g[4*q + 2].append(f"v_cvt_pk_bf16_f32 v{P + q}, v{e0}, v{e1}")
    return g

def stage_plan(km, par):
    it = []
    kd, vd = kv_dma('K', par), kv_dma('V', par)
    kl = kd[1:5] + kd[6:10]; vl = vd[1:5] + vd[6:10]
    if km == 0:
        for i, x in enumerate(off_calc()): it.append((i // 2, None, x))
        it.append((5, None, "s_waitcnt lgkmcnt(0)"))
        it.append((6, None, kd[0]))
        it += [(7, 'K', kl[0]), (11, 'K', kl[1]), (15, 'K', kl[2])]
    if km == 1:
        it += [(3, 'K', kl[3]), (4, None, kd[5]), (7, 'K', kl[4])]
        it.append((9, 'waitV', None))
        rd = [(10, 0, 0), (11, 0, 1), (11, 1, 0), (14, 1, 1), (15, 2, 0), (15, 2, 1), (16, 3, 0), (16, 3, 1)]
        for g_, dt, hf in rd: it.append((g_, None, v_read(dt, hf, par)))
        it.append((12, 'K', kl[5]))
    if km == 2:
        rd = [(2, 4, 0), (2, 4, 1), (3, 5, 0), (3, 5, 1), (6, 6, 0), (6, 6, 1), (7, 7, 0), (7, 7, 1)]
        for g_, dt, hf in rd: it.append((g_, None, v_read(dt, hf, par)))
        it += [(7, None, "s_waitcnt lgkmcnt(8)"), (11, 'K', kl[6]), (11, None, "s_waitcnt lgkmcnt(2)"), (14, None, "s_waitcnt lgkmcnt(0)"), (16, 'K', kl[7])]
    if km == 3:
        it += [(0, None, vd[0]), (3, 'V', vl[0]), (7, 'V', vl[1]), (11, 'V', vl[2]), (15, 'V', vl[3]), (16, 'waitK', None)]
    if km == 4:
        rd = [(2, 0), (3, 1), (3, 2), (6, 3), (7, 4), (7, 5), (10, 6), (11, 7)]
        for g_, p in rd: it.append((g_, None, k_read(p, 1 - par)))
        it += [(0, None, vd[5]), (4, 'V', vl[4]), (8, 'V', vl[5]), (12, 'V', vl[6]), (15, 'V', vl[7]), (16, None, "s_waitcnt lgkmcnt(2)")]
    return it
def vm_counts():
    seq = []
    waits = {}
    for j in range(3):
        for k in range(10):
            par = 0 if k < 5 else 1
            n = 2 * j + 2 + par
            for g_, tag, x in sorted(stage_plan(k % 5, par), key=lambda e: e[0]):
                if tag in ('K', 'V'): seq.append((tag, n))
                if tag == 'waitV' and j == 2:
                    need = ('V', 2 * j + par)
                    waits[('V', par)] = len(seq) - 1 - max(i for i, u in enumerate(seq) if u == need)
                if tag == 'waitK' and j == 2:
                    need = ('K', 2 * j + 1 + par)
                    waits[('K', par)] = len(seq) - 1 - max(i for i, u in enumerate(seq) if u == need)
    return waits

def main_stage(A, k):
    tq, ts, tp = k % 5, (k + 4) % 5, (k + 3) % 5
    nv = [[] for _ in range(17)]
    par = 0 if k < 5 else 1
    km = k % 5
    vm = vm_counts()
    for g_, tag, x in stage_plan(km, par):
        if tag == 'waitV': x = f"s_waitcnt vmcnt({vm[('V', par)]})"
        if tag == 'waitK': x = f"s_waitcnt vmcnt({vm[('K', par)]})"
        nv[g_].append(x)
    if k == 0 and OPT['wopf']:
        nv[16] += [f"s_cmp_eq_u32 s{S_CNT}, 2", "s_cbranch_scc0 L_nopf", f"s_lshl_b32 s{S_T0}, s{S_W}, 12", f"s_add_u32 m0, s{S_T0}, {LE}", "s_nop 0"]
        nv[16] += [f"buffer_load_dwordx4 v{V_L16}, {sr(SRD_WO,4)}, s{S_POFF} offen offset:{1024*i} lds" for i in range(4)]
        nv[16] += [f"s_add_u32 m0, s{S_RW}, {K0}", "L_nopf:"]
    va = sm_valu(ts, (k + 1) & 1)
    for p in range(17):
        A(qk_mfma(p, tq, k & 1) if p < 8 else (pv_mfma(p - 8, tp, k & 1) if p < 16 else l_mfma(tp, k & 1)))
        for x in nv[p]:
            if x.endswith(":"): A.raw(x); continue
            if OPT['nodma'] and x.startswith("buffer_load"): continue
            if OPT['nods'] and x.startswith("ds_read"): continue
            if OPT['nowait'] and x.startswith("s_waitcnt"): continue
            A(x)
        if OPT['novalu']: continue
        for x in va[p]: A(x)

def poll(A, tag, srd, soff, nwords, want, vtmp):
    A(f"s_mov_b32 s{S_SPIN}, {SPIN_MAX}")
    A.label(f"L_poll_{tag}")
    for i in range(nwords // 4):
        A(f"buffer_load_dwordx4 {vr(vtmp + 4*i, 4)}, off, {sr(srd,4)}, s{soff} offset:{16*i} sc1")
    A("s_waitcnt vmcnt(0)")
    for i in range(1, nwords): A(f"v_min_u32 v{vtmp}, v{vtmp}, v{vtmp+i}")
    A("s_nop 0")
    A(f"v_readfirstlane_b32 s{S_T0}, v{vtmp}")
    A("s_nop 3")
    A(f"s_cmp_ge_u32 s{S_T0}, {want}")
    A(f"s_cbranch_scc1 L_done_{tag}")
    A(f"s_sub_u32 s{S_SPIN}, s{S_SPIN}, 1")
    A(f"s_cmp_eq_u32 s{S_SPIN}, 0")
    A(f"s_cbranch_scc1 L_done_{tag}")
    A("s_sleep 1")
    A(f"s_branch L_poll_{tag}")
    A.label(f"L_done_{tag}")

def one_lane(A, instrs):
    A("s_mov_b64 exec, 1")
    for x in instrs: A(x)
    A("s_mov_b64 exec, -1")

def gen():
    A = Asm()
    A("s_cmp_ge_u32 s2, 256")
    A("s_cbranch_scc1 L_end")
    stamp(A, 0)
    stamp_cyc(A, 55)
    A("s_load_dwordx16 s[64:79], s[0:1], 0")
    if OPT['codepf']:
        A("s_getpc_b64 s[30:31]")
        A.label("L_pc")
        A("s_lshr_b32 s60, s2, 3")
        A("v_lshrrev_b32 v2, 6, v0")
        A("v_and_b32 v1, 63, v0")
        A("v_lshl_add_u32 v2, s60, 2, v2")
        A("v_lshl_add_u32 v2, v2, 2, v1")
        A("v_lshlrev_b32 v2, 7, v2")
        A("v_mov_b32 v5, s31")
        A("v_add_co_u32 v4, vcc, s30, v2")
        A("s_nop 1")
        A("v_addc_co_u32 v5, vcc, 0, v5, vcc")
        A("v_cmp_gt_u32 vcc, 4, v1")
        A("s_mov_b32 s60, L_text_main_end-L_pc")
        A("v_cmp_gt_u32 s[62:63], s60, v2")
        A("s_nop 1")
        A("s_and_b64 vcc, vcc, s[62:63]")
        A("s_and_saveexec_b64 s[62:63], vcc")
        A("s_cbranch_execz L_nocpf")
        A("global_load_dword v243, v[4:5], off")
        A.label("L_nocpf")
        A("s_mov_b64 exec, s[62:63]")
    A(f"""
    v_lshrrev_b32 v2, 6, v0
    v_and_b32 v1, 63, v0
    s_and_b32 s{S_G}, s2, 7
    s_lshr_b32 s30, s2, 3
    v_readfirstlane_b32 s{S_W}, v2
    s_lshr_b32 s{S_B}, s30, 2
    s_and_b32 s{S_R}, s30, 3
    s_lshl_b32 s{S_H}, s{S_G}, 2
    s_add_u32 s{S_H}, s{S_H}, s{S_R}
    v_and_b32 v3, 15, v1
    v_lshrrev_b32 v4, 4, v1
    v_bfe_u32 v5, v1, 2, 2
    v_and_b32 v6, 3, v1
    s_lshl_b32 s{S_W1K}, s{S_W}, 10
    s_add_u32 s{S_ROT}, s{S_B}, s{S_R}
    s_and_b32 s{S_ROT}, s{S_ROT}, 3
    """)
    ACC, FA, FB, VX, VAW = 148, (188, 196), (204, 224), 244, 252
    VXD, VWD = 84, 92
    A(f"""
    s_lshl_b32 s30, s{S_W}, 2
    v_add_u32 v8, s30, v4                   ; 4w+gq
    v_xor_b32 v9, v3, v8
    v_lshlrev_b32 v9, 4, v9
    v_lshl_add_u32 v{VXD}, v8, 10, v9
    v_lshlrev_b32 v9, 2, v4
    v_xor_b32 v9, v3, v9
    v_lshlrev_b32 v9, 4, v9
    v_lshl_add_u32 v{VWD}, v8, 13, v9
    s_mul_i32 s31, s{S_B}, 81920
    """)
    for t in range(1, 5): A(f"v_add_u32 v{VXD+t}, {t*16384}, v{VXD}")
    for i in range(1, 4): A(f"v_add_u32 v{VWD+i}, {i*16*8192}, v{VWD}")
    WT = [100, 101, 97, 96, 95, 94, 93, 92]
    XT = [88, 89, 90, 91]
    A(f"s_lshl_b32 s{S_T1}, s{S_H}, 8")
    A(f"s_lshl_b32 s{S_T2}, s{S_ROT}, 1")
    for u in range(8):
        A(f"s_add_u32 s{S_T0}, s{S_T2}, {u}")
        A(f"s_and_b32 s{S_T0}, s{S_T0}, 7")
        A(f"s_lshl_b32 s{S_T0}, s{S_T0}, 19")
        A(f"s_add_u32 s{WT[u]}, s{S_T0}, s{S_T1}")
    for a_ in range(4):
        A(f"s_add_u32 s{S_T0}, s{S_ROT}, {a_}")
        A(f"s_and_b32 s{S_T0}, s{S_T0}, 3")
        A(f"s_lshl_b32 s{S_T0}, s{S_T0}, 8")
        A(f"s_add_u32 s{XT[a_]}, s{S_T0}, s31")
    A("s_waitcnt lgkmcnt(0)")
    if OPT.get('qstamps'): stamp(A, 14)
    A(f"""
    s_mov_b32 s{SRD_X}, s64
    s_mov_b32 s{SRD_X+1}, s65
    s_mov_b32 s{SRD_X+2}, {640*1024}
    s_mov_b32 s{SRD_X+3}, 0x00020000
    s_mov_b32 s{SRD_W}, s70
    s_mov_b32 s{SRD_W+1}, s71
    s_mov_b32 s{SRD_W+2}, {512*8192}
    s_mov_b32 s{SRD_W+3}, 0x00020000
    """)
    pool1 = [w*32768 + V0 + h*4096 for w in range(4) for h in range(2)] + [K1s, K1s + 4096]
    pool2 = [w*32768 + K1s + h*4096 for w in (1, 2, 3) for h in range(2)] + [w*32768 + V1 + h*4096 for w in (0, 1) for h in range(2)]
    xarea = lambda a, t: (pool1 if a < 2 else pool2)[(a & 1) * 5 + t]
    wblk = lambda u, e: [[2*32768 + V1, 3*32768 + V1], [LE, LE + 8192], [LE + 16384, LE + 24576], [K0, 32768 + K0], [2*32768 + K0, 3*32768 + K0]][u % 5][e]
    def xdma(a):
        return [[f"s_add_u32 m0, s{S_W1K}, {xarea(a, t)}", "s_nop 0", f"buffer_load_dwordx4 v{VXD+t}, {sr(SRD_X,4)}, s{XT[a]} offen lds"] for t in range(5)]
    def wdma(u):
        return [[f"s_add_u32 m0, s{S_W1K}, {wblk(u, e) + 4096*hh}", "s_nop 0", f"buffer_load_dwordx4 v{VWD+2*e+hh}, {sr(SRD_W,4)}, s{WT[u]} offen lds"]
                for e in range(2) for hh in range(2)]
    def xread(ks, t, dst):
        p = xarea(ks >> 2, t)
        return f"ds_read_b128 {vr(dst,4)}, v{VX + 4*(p >> 16) + (ks & 3)} offset:{p & 0xffff}"
    def wread(ks, jt, hf, dst):
        p = wblk(ks >> 1, ks & 1)
        return f"ds_read_b64_tr_b16 {vr(dst,2)}, v{VAW + (p >> 16)} offset:{(p & 0xffff) + 1024*hf + 8*jt}"
    for g_ in wdma(0) + xdma(0):
        for x in g_: A(x)
    if OPT.get('qstamps'): stamp(A, 15)
    B = Asm()
    B(f"""
    s_lshl_b32 s{S_RW}, s{S_W}, 15
    s_lshl_b32 s{S_W8}, s{S_W}, 13
    s_mov_b32 s{S_FB}, 0
    s_lshl_b32 s30, s{S_B}, 3
    s_add_u32 s30, s30, s{S_G}               ; b*8+g
    s_lshl_b32 s{S_F1}, s30, 7
    s_lshl_b32 s30, s30, 19
    s_add_u32 s{SRD_K}, s66, s30
    s_addc_u32 s{SRD_K+1}, s67, 0
    s_mov_b32 s{SRD_K+2}, 0x80000
    s_mov_b32 s{SRD_K+3}, 0x00020000
    s_add_u32 s{SRD_V}, s68, s30
    s_addc_u32 s{SRD_V+1}, s69, 0
    s_mov_b32 s{SRD_V+2}, 0x80000
    s_mov_b32 s{SRD_V+3}, 0x00020000
    s_add_u32 s{SRD_O}, s78, {WS_O}
    s_addc_u32 s{SRD_O+1}, s79, 0
    s_mov_b32 s{SRD_O+2}, {5 << 20}
    s_mov_b32 s{SRD_O+3}, 0x00020000
    s_add_u32 s{SRD_PP}, s78, {WS_P}
    s_addc_u32 s{SRD_PP+1}, s79, 0
    s_mov_b32 s{SRD_PP+2}, {5 << 20}
    s_mov_b32 s{SRD_PP+3}, 0x00020000
    s_add_u32 s{SRD_FL}, s78, {WS_F}
    s_addc_u32 s{SRD_FL+1}, s79, 0
    s_mov_b32 s{SRD_FL+2}, 16384
    s_mov_b32 s{SRD_FL+3}, 0x00020000
    s_mov_b32 s{SRD_WO}, s72
    s_mov_b32 s{SRD_WO+1}, s73
    s_mov_b32 s{SRD_WO+2}, {4096*1024}
    s_mov_b32 s{SRD_WO+3}, 0x00020000
    s_mov_b32 s{SRD_DBG}, s76
    s_mov_b32 s{SRD_DBG+1}, s77
    s_mov_b32 s{SRD_DBG+2}, 256
    s_mov_b32 s{SRD_DBG+3}, 0x00020000
    s_mov_b32 s{SRD_OUT}, s74
    s_mov_b32 s{SRD_OUT+1}, s75
    s_mov_b32 s{SRD_OUT+2}, {640*1024}
    s_mov_b32 s{SRD_OUT+3}, 0x00020000
    s_lshl_b32 s30, s{S_B}, 2
    s_add_u32 s30, s30, s{S_R}               ; b*4+r
    s_lshl_b32 s{S_F2}, s30, 7
    s_add_u32 s{S_F2}, s{S_F2}, 8192
    s_lshl_b32 s{S_POFF}, s{S_G}, 19
    s_lshl_b32 s30, s30, 14
    s_add_u32 s{S_POFF}, s{S_POFF}, s30
    s_lshl_b32 s30, s{S_W}, 12
    s_add_u32 s{S_POFF}, s{S_POFF}, s30
    v_lshlrev_b32 v{V_L16}, 4, v1
    v_xor_b32 v7, v4, v3
    v_lshlrev_b32 v7, 4, v7
    v_lshl_add_u32 v7, v3, 8, v7            ; n*256 + (gq^n)*16
    """)
    B(f"s_mov_b32 s{S_R15}, s2")
    table_setup(B)
    for s_ in range(4):
        B(f"v_xor_b32 v{VX+s_}, {64*s_}, v7")
        B(f"v_add_u32 v{VX+4+s_}, 0x10000, v{VX+s_}")
        B(f"v_add_u32 v{V_KA+s_}, s{S_RW}, v{VX+s_}")
    B(f"""
    v_lshl_add_u32 v8, v4, 3, v5
    s_lshl_b32 s30, s{S_W}, 2
    v_add_u32 v9, s30, v6
    v_lshlrev_b32 v2, 2, v5
    v_xor_b32 v9, v9, v2
    v_lshlrev_b32 v9, 4, v9
    v_lshl_add_u32 v9, v8, 8, v9
    v_mov_b32 v{VAW}, v9
    v_add_u32 v{VAW+1}, 0x10000, v9
    v_add_u32 v{VAW+2}, 0x20000, v9
    v_lshl_add_u32 v8, v4, 2, v5
    v_and_b32 v9, 7, v8
    v_lshlrev_b32 v9, 5, v9
    v_lshl_add_u32 v9, v8, 8, v9
    v_lshl_add_u32 v9, v6, 3, v9
    """)
    for dt in range(8):
        B(f"v_xor_b32 v{V_VA+dt}, {32*dt}, v9")
        B(f"v_add_u32 v{V_VA+dt}, s{S_RW}, v{V_VA+dt}")
    B(f"""
    v_xor_b32 v9, v3, v4
    v_lshlrev_b32 v9, 4, v9
    v_lshl_add_u32 v9, v4, 8, v9
    """)
    for i in range(4): B(f"v_xor_b32 v{V_KD+i}, {64*i}, v9")
    B(f"""
    v_lshlrev_b32 v9, 1, v4
    v_xor_b32 v9, v3, v9
    v_lshlrev_b32 v9, 4, v9
    v_lshl_add_u32 v{V_VD}, v4, 8, v9
    v_xor_b32 v{V_VD+1}, 128, v{V_VD}
    """)
    for i in range(160): B(f"v_accvgpr_write_b32 a{A_O+i}, 0")
    for i in range(32): B(f"v_mov_b32 v{V_VF+i}, 0")
    for i in range(4): B(f"v_mov_b32 v{V_P+i}, 0")
    for i in range(8): B(f"v_mov_b32 v{V_S+8+i}, 0xff7fffff")
    spread(A, [x.strip() for x in B.l], wdma(1))
    A(f"s_cmp_eq_u32 s{S_W}, 0")
    A("s_cbranch_scc0 L_noclr")
    A(f"s_lshl_b32 s{S_T0}, s{S_R}, 2")
    A(f"s_add_u32 s{S_T0}, s{S_T0}, s{S_F1}")
    A(f"s_lshl_b32 s{S_T1}, s{S_G}, 2")
    A(f"s_add_u32 s{S_T1}, s{S_T1}, s{S_F2}")
    A("v_mov_b32 v2, 0")
    one_lane(A, [f"buffer_store_dword v2, off, {sr(SRD_FL,4)}, s{S_T0} sc1", f"buffer_store_dword v2, off, {sr(SRD_FL,4)}, s{S_T1} sc1"])
    A.label("L_noclr")
    if OPT.get('qstamps'): stamp(A, 16)
    seq0 = ['W0'] * 4 + ['xA'] * 5 + ['W1'] * 4
    A(f"s_waitcnt vmcnt(4)")
    if OPT.get('qstamps'): stamp(A, 17)
    A("s_barrier")
    stamp(A, 1)
    stamp_cyc(A, 56)
    NV = 4 if OPT['qvar'] == 4 else (2 if OPT['qvar'] == 2 else 1)
    if NV == 4:
        for wv in range(1, 4):
            A(f"s_cmp_eq_u32 s{S_W}, {wv}")
            A(f"s_cbranch_scc1 L_qp{wv}")
    if NV == 2:
        A(f"s_cmp_ge_u32 s{S_W}, 2")
        A(f"s_cbranch_scc1 L_qp2")
    for wv in ((0, 1, 2, 3) if NV == 4 else ((0, 2) if NV == 2 else (0,))):
        if wv: A.label(f"L_qp{wv}")
        seq = list(seq0)
        def vm_for(need):
            last = max(i for i, t in enumerate(seq) if t in need)
            return len(seq) - 1 - last
        arrive = [f"s_lshr_b32 s{S_T0}, s{S_F1}, 5", "v_mov_b32 v2, 1", "s_mov_b64 exec, 1",
                  f"buffer_atomic_add v2, off, {sr(SRD_DBG,4)}, s{S_T0} sc1", "s_mov_b64 exec, -1"] if wv == 0 else []
        if NV < 4 and wv == 0: arrive = [f"s_cmp_eq_u32 s{S_W}, 0", "s_cbranch_scc0 L_noarr"] + arrive + ["L_noarr:"]
        kg0, vg0, kg1 = kv_groups('K', 0), kv_groups('V', 0), kv_groups('K', 1)
        kg0[0] = off_calc() + kg0[0]
        kg1[0] = off_calc() + kg1[0]
        ival = {0: [('xB', xdma(1)), ('W2', wdma(2))], 1: [('W3', wdma(3)), ('W4', wdma(4))], 2: [('xC', xdma(2)), ('W5', wdma(5))],
                3: [('W6', wdma(6)), ('xD', xdma(3))], 4: [('W7', wdma(7))], 5: [('K0', kg0)], 6: [('V0', vg0)], 7: []}
        needs = {1: ['W1'], 3: ['xB', 'W2'], 5: ['W3'], 7: ['xC', 'W4'], 9: ['W5'], 11: ['xD', 'W6'], 13: ['W7'], 15: None}
        plan = {}
        for ks in range(16):
            p = {}
            if ks in needs:
                p['pre'] = ([f"s_waitcnt vmcnt({vm_for(needs[ks])})"] if needs[ks] else []) + ["s_barrier"]
                if ks == 3: p['pre'] += arrive
            u = (ks + 1) >> 1
            first = (ks & 1) == 1 or ks == 0
            mine = (ks == 0) or (first and wv < 2) or (not first and wv >= 2)
            fill = []
            if NV == 1:
                allg = [(tag, g_) for tag, gs in ival.get(u, []) for g_ in gs]
                h = len(allg) if ks == 0 else (len(allg) + 1) // 2
                part = allg[:h] if first else allg[h:]
                if ks < 15:
                    for tag, g_ in part: fill.append(g_); seq.append(tag)
            elif ks < 15 and mine:
                for tag, gs in ival.get(u, []):
                    fill += gs; seq += [tag] * len(gs)
                if NV == 4: p['burst_gap'] = (4, 5, 7, 9)[wv] if ks == 0 else (4, 9)[wv & 1]
            if ks == 15 and wv < 2:
                fill = kg1; seq += ['K1'] * 8
                if NV == 4: p['burst_gap'] = (0, 9)[wv]
            p['fill'] = fill
            plan[ks] = p
        if OPT.get('qstamps'):
            for i, ks in enumerate((1, 3, 5, 7, 9, 11, 13, 15)): plan[ks]['stamp'] = 22 + i
        if OPT.get('fine'):
            for i, ks in enumerate(OPT['fine']): plan.setdefault(ks, {})['fine'] = 32 + 4 * i
        gemm_core(A, ACC, FA, FB, xread, wread, plan)
        stamp(A, 2)
        stamp_cyc(A, 57)
        A(f"s_mov_b32 s30, {hex(f32(C_SCALE))}")
        A(f"v_add_u32 v8, s{S_W1K}, v{V_L16}")
        A(f"v_add_u32 v8, {LE}, v8")
        A("s_nop 4")
        for t in range(5):
            for jt in range(2):
                d = ACC + (jt*5 + t)*4
                for h in range(2): A(f"v_pk_mul_f32 {vr(d+2*h,2)}, {vr(d+2*h,2)}, s[30:31] op_sel_hi:[1,0]")
            q = FB[0] + 4*t
            for jt in range(2):
                d = ACC + (jt*5 + t)*4
                A(f"v_cvt_pk_bf16_f32 v{q+2*jt}, v{d}, v{d+1}")
                A(f"v_cvt_pk_bf16_f32 v{q+2*jt+1}, v{d+2}, v{d+3}")
            A(f"ds_write_b128 v8, {vr(q,4)} offset:{t*4096}")
            if wv >= 2 and t == (1, 3)[wv - 2]:
                for g_ in kg1:
                    for x in g_: A(x)
        if wv < (3 if NV == 4 else (2 if NV == 2 else 0)): A("s_branch L_qdone")
    A.label("L_qdone")
    if OPT.get('qstamps'): stamp(A, 18)
    A("s_waitcnt vmcnt(16) lgkmcnt(0)")
    if OPT.get('qstamps'): stamp(A, 19)
    A("s_barrier")
    stamp(A, 30)
    A(f"v_add_u32 v8, {LE}, v{V_L16}")
    ST = 188
    if OPT['standin']:
        for s in range(4): A(f"ds_read_b128 {vr(ST+4*s,4)}, v{VX+s} offset:{K0}")
    for t in range(5):
        for s in range(4): A(f"ds_read_b128 {ar(A_Q+(t*4+s)*4,4)}, v8 offset:{(t*4+s)*1024}")
    for p in range(8): A(k_read(p, 0))
    for g_ in kv_groups('V', 1):
        for x in g_: A(x)
    if OPT.get('qstamps'): stamp(A, 32)
    VL2, VA2, VWD2, VCHK = 244, 245, 247, 248
    A(f"""
    v_lshl_add_u32 v8, v4, 2, v5
    s_lshl_b32 s30, s{S_W}, 2
    v_add_u32 v9, s30, v6
    v_lshlrev_b32 v2, 2, v5
    v_xor_b32 v9, v9, v2
    v_lshlrev_b32 v9, 4, v9
    v_lshl_add_u32 v9, v8, 8, v9
    v_add_u32 v8, s30, v4
    v_lshlrev_b32 v2, 2, v4
    v_xor_b32 v2, v3, v2
    v_lshlrev_b32 v2, 4, v2
    """)
    for i in range(20): A(f"v_mov_b32 v{V_LM+i}, 0")
    for i in range(4): A(f"v_mov_b32 v{V_ONE+i}, 0x3f803f80")
    if OPT['standin']:
        A("s_waitcnt lgkmcnt(8)")
        for t in range(5):
            for s in range(4):
                d = V_NEG + 4*t
                A(f"v_mfma_f32_16x16x32_bf16 {vr(d,4)}, {vr(ST+4*s,4)}, {ar(A_Q+(t*4+s)*4,4)}, {'0' if s == 0 else vr(d,4)}")
    if OPT.get('qstamps'): stamp(A, 31)
    A(f"v_add_u32 v{VA2}, 0x10000, v9")
    A(f"v_add_u32 v{VA2+1}, 0x20000, v9")
    A(f"v_lshl_add_u32 v{VWD2}, v8, 10, v2")
    A(f"v_add_u32 v{VL2}, 0x10000, v{V_L16}")
    if OPT['standin']:
        T = 204
        A("s_nop 4")
        for t in range(5):
            d = V_NEG + 4*t
            A(f"v_max3_f32 v{T+t}, v{d}, v{d+1}, v{d+2}")
        for t in range(5): A(f"v_max_f32 v{T+t}, v{T+t}, v{V_NEG+4*t+3}")
        for swap in ("v_permlane32_swap_b32", "v_permlane16_swap_b32"):
            for t in range(5): A(f"v_mov_b32 v{T+8+t}, v{T+t}")
            for t in range(5): A(f"{swap} v{T+t}, v{T+8+t}")
            for t in range(5): A(f"v_max_f32 v{T+t}, v{T+t}, v{T+8+t}")
        for t in range(5):
            for r in range(4): A(f"v_xor_b32 v{V_NEG+4*t+r}, 0x80000000, v{T+t}")
    else:
        for i in range(20): A(f"v_mov_b32 v{V_NEG+i}, 0")
    A("s_waitcnt lgkmcnt(0)")
    A("s_barrier")
    A(f"s_mov_b32 s{S_CNT}, 8")
    stamp(A, 3)
    stamp_cyc(A, 20)
    A.raw(".p2align 6")
    A.label("L_loop")
    for k in range(10): main_stage(A, k)
    A(f"s_sub_u32 s{S_CNT}, s{S_CNT}, 1")
    A(f"s_cmp_lg_u32 s{S_CNT}, 0")
    A("s_cbranch_scc1 L_loop")
    stamp(A, 4)
    stamp_cyc(A, 21)
    xarea2 = lambda a, t: (a * 5 + t) * 4096
    wslot = [LE, LE + 16384, 81920, 98304, 114688]
    wblk2 = lambda u, e: wslot[u % 5] + 8192 * e
    def wdma2(u):
        pre = [f"s_lshl_b32 s{S_T0}, s{S_R}, 1", f"s_add_u32 s{S_T0}, s{S_T0}, {u}", f"s_and_b32 s{S_T0}, s{S_T0}, 7", f"s_lshl_b32 s{S_T0}, s{S_T0}, 16",
               f"s_add_u32 s{S_WK}, s{S_T0}, s{S_WOB}"]
        l = []
        for e in range(2):
            for hh in range(2):
                l.append([f"s_add_u32 m0, s{S_W1K}, {wblk2(u, e) + 4096*hh}", f"s_add_u32 s{S_T0}, s{S_WK}, {(32*e + 16*hh)*1024}",
                          f"buffer_load_dwordx4 v{VWD2}, {sr(SRD_WO,4)}, s{S_T0} offen lds"])
        l[0] = pre + l[0]
        return l
    def xdma2(a):
        pre = [f"s_add_u32 s{S_T0}, s{S_R}, {a}", f"s_and_b32 s{S_T0}, s{S_T0}, 3", f"s_lshl_b32 s{S_T0}, s{S_T0}, 2",
               f"s_add_u32 s{S_T0}, s{S_T0}, s{S_W}", f"s_mul_i32 s{S_T0}, s{S_T0}, 5120", f"s_add_u32 s{S_XOFF}, s{S_T0}, s{S_XB}"]
        l = []
        for t in range(5):
            l.append([f"s_add_u32 m0, s{S_W1K}, {xarea2(a, t)}", f"s_add_u32 s{S_T0}, s{S_XOFF}, {t*1024}",
                      f"buffer_load_dwordx4 v{V_L16}, {sr(SRD_O,4)}, s{S_T0} offen sc1 lds"])
        l[0] = pre + l[0]
        return l
    flat = lambda gs: [x for g_ in gs for x in g_]
    def xread2(ks, t, dst):
        p = xarea2(ks >> 2, t) + (ks & 3) * 1024
        return f"ds_read_b128 {vr(dst,4)}, v{V_L16 if p < 65536 else VL2} offset:{p & 0xffff}"
    def wread2(ks, jt, hf, dst):
        p = wblk2(ks >> 1, ks & 1)
        return f"ds_read_b64_tr_b16 {vr(dst,2)}, v{VA2 + (p >> 16) - 1} offset:{(p & 0xffff) + 4096*hf + 8*jt}"
    A(f"s_lshl_b32 s{S_T2}, s{S_B}, 5")
    A(f"buffer_load_dwordx4 {vr(VCHK,4)}, off, {sr(SRD_DBG,4)}, s{S_T2} sc1")
    A(f"buffer_load_dwordx4 {vr(VCHK+4,4)}, off, {sr(SRD_DBG,4)}, s{S_T2} offset:16 sc1")
    A(f"s_lshl_b32 s{S_WOB}, s{S_G}, 19")
    A(f"s_lshl_b32 s{S_T1}, s{S_R}, 8")
    A(f"s_add_u32 s{S_WOB}, s{S_WOB}, s{S_T1}")
    for x in flat(wdma2(0) + wdma2(1)): A(x)
    A(f"s_lshl_b32 s30, s{S_B}, 7")
    A(f"s_lshl_b32 s31, s{S_G}, 4")
    A(f"s_add_u32 s30, s30, s31")
    A(f"s_mul_i32 s{S_XB}, s30, 5120")
    va = sm_valu(4, 1)
    for p in range(17):
        if p >= 8: A(pv_mfma(p - 8, 3, 0) if p < 16 else l_mfma(3, 0))
        for x in va[p]: A(x)
        if p < 8 and p % 4 in (1,): A("s_nop 0")
    A("s_nop 1")
    for dt in range(8): A(pv_mfma(dt, 4, 1))
    A(l_mfma(4, 1))
    A.label("L_combine")
    XL = 122880
    A("s_waitcnt vmcnt(10)")
    A("s_barrier")
    A(f"v_lshlrev_b32 v8, 2, v1")
    A(f"s_mul_i32 s30, s{S_W}, 1280")
    A(f"s_add_u32 s30, s30, {XL}")
    A(f"v_add_u32 v9, s30, v8")
    A("s_nop 1")
    for t in range(5): A(f"ds_write_b32 v9, v{V_LM+4*t} offset:{256*t}")
    TO = 60
    for d in range(4):
        A(f"s_cmp_eq_u32 s{S_W}, {d}")
        A(f"s_cbranch_scc1 L_own{d}")
        A(f"s_sub_u32 s30, s{S_W}, {d+1}")
        A(f"s_and_b32 s30, s30, 3")
        A(f"s_mul_i32 s30, s30, 10240")
        A(f"s_add_u32 s30, s30, {d*30720}")
        A(f"v_add_u32 v9, s30, v{V_L16}")
        for t in range(5):
            for j in range(2):
                A(f"ds_write_b128 v9, {ar(A_O + (t*8 + 2*d + j)*4, 4)} offset:{(t*2+j)*1024}")
        A(f"s_branch L_nxt{d}")
        A.label(f"L_own{d}")
        for t in range(5):
            for j in range(2):
                for r in range(4): A(f"v_accvgpr_read_b32 v{TO + (t*2+j)*4 + r}, a{A_O + (t*8 + 2*d + j)*4 + r}")
        A.label(f"L_nxt{d}")
    A("s_waitcnt lgkmcnt(0)")
    A("s_barrier")
    stamp(A, 5)
    stamp_cyc(A, 58)
    TL, RC, TR = 100, 120, 130
    A(f"v_add_u32 v9, {XL}, v8")
    for w in range(4):
        for t in range(5): A(f"ds_read_b32 v{TL + w*5 + t}, v9 offset:{w*1280 + t*256}")
    A(f"s_mul_i32 s30, s{S_W}, 30720")
    A(f"v_add_u32 v9, s30, v{V_L16}")
    rq = lambda q, sl: TR + ((q % 5)*3 + sl)*4
    def rd(q):
        for sl in range(3): A(f"ds_read_b128 {vr(rq(q, sl), 4)}, v9 offset:{(sl*10+q)*1024}")
    for q in range(3): rd(q)
    A("s_waitcnt lgkmcnt(9)")
    for t in range(5):
        A(f"v_add_f32 v{TL+t}, v{TL+t}, v{TL+5+t}")
        A(f"v_add_f32 v{TL+10+t}, v{TL+10+t}, v{TL+15+t}")
    for t in range(5): A(f"v_add_f32 v{TL+t}, v{TL+t}, v{TL+10+t}")
    if OPT['fallback']:
        A(f"v_add_f32 v{TL+9}, v{TL}, v{TL+1}")
        A(f"v_add_f32 v{TL+9}, v{TL+9}, v{TL+2}")
        A(f"v_add_f32 v{TL+9}, v{TL+9}, v{TL+3}")
        A(f"v_add_f32 v{TL+9}, v{TL+9}, v{TL+4}")
        A(f"s_mov_b32 s30, {hex(f32(2.0**40))}")
        A(f"v_cmp_ngt_f32 s[{S_BAD}:{S_BAD+1}], s30, v{TL+9}")
    for t in range(5): A(f"v_rcp_f32 v{RC+2*t}, v{TL+t}")
    OF = 100
    for q in range(10):
        if q + 3 < 10: rd(q + 3)
        A(f"s_waitcnt lgkmcnt({min(9, 3*(9-q))})")
        if q == 9: A("s_barrier")
        o = TO + 4*q
        for sl in range(3):
            for h in range(2):
                A(f"v_pk_add_f32 {vr(o+2*h,2)}, {vr(o+2*h,2)}, {vr(rq(q, sl)+2*h,2)}")
        t = q >> 1
        for h in range(2): A(f"v_pk_mul_f32 {vr(o+2*h,2)}, {vr(o+2*h,2)}, {vr(RC+2*t,2)} op_sel_hi:[1,0]")
    if OPT['fallback']:
        A(f"s_cmp_eq_u64 s[{S_BAD}:{S_BAD+1}], 0")
        A("s_cbranch_scc1 L_sum_ok")
        A(f"s_cmp_eq_u32 s{S_FB}, 0")
        A("s_cbranch_scc1 L_fallback")
        A.label("L_sum_ok")
    for t in range(5):
        for i in range(4): A(f"v_cvt_pk_bf16_f32 v{OF+4*t+i}, v{TO + t*8 + 2*i}, v{TO + t*8 + 2*i + 1}")
    stamp(A, 6)
    A(f"s_lshl_b32 s30, s{S_R}, 2")
    A(f"s_add_u32 s30, s30, s{S_W}")
    A(f"s_mul_i32 s30, s30, 5120")
    A(f"s_add_u32 s30, s30, s{S_XB}")
    for t in range(5):
        if t == 4: A("s_add_u32 s30, s30, 4096")
        A(f"buffer_store_dwordx4 {vr(OF+4*t,4)}, v{V_L16}, {sr(SRD_O,4)}, s30 offen offset:{(t*1024) & 4095} sc1")
    A(f"v_add_u32 v8, s{S_W1K}, v{V_L16}")
    for t in range(5): A(f"ds_write_b128 v8, {vr(OF+4*t,4)} offset:{xarea2(0, t)}")
    for x in flat(wdma2(2) + wdma2(3) + wdma2(4)): A(x)
    A("s_waitcnt vmcnt(12) lgkmcnt(0)")
    A("s_barrier")
    A(f"s_cmp_eq_u32 s{S_W}, 0")
    A("s_cbranch_scc0 L_noflag1")
    A(f"s_lshl_b32 s{S_T0}, s{S_R}, 2")
    A(f"s_add_u32 s{S_T0}, s{S_T0}, s{S_F1}")
    A("v_mov_b32 v2, 1")
    one_lane(A, [f"buffer_store_dword v2, off, {sr(SRD_FL,4)}, s{S_T0} sc1"])
    A.label("L_noflag1")
    stamp(A, 7)
    def wait_group(A):
        for i in range(1, 8): A(f"v_min_u32 v{VCHK}, v{VCHK}, v{VCHK+i}")
        A("s_nop 0")
        A(f"v_readfirstlane_b32 s{S_T0}, v{VCHK}")
        A("s_nop 3")
        A(f"s_cmp_ge_u32 s{S_T0}, 4")
        A("s_cbranch_scc1 L_done_init")
        A(f"s_lshl_b32 s{S_T2}, s{S_B}, 5")
        poll(A, "init", SRD_DBG, S_T2, 8, 4, VCHK)
        poll(A, "f1", SRD_FL, S_F1, 4, 1, VCHK)
        stamp(A, 8)
        for x in flat(xdma2(1) + xdma2(2) + xdma2(3)): A(x)
        A("s_waitcnt vmcnt(10)")
        A("s_barrier")
        stamp(A, 9)
    plan2 = {1: dict(pre=["s_barrier"], fill=wdma2(5)),
             3: dict(pre=["s_barrier"], fill=wdma2(6), late=wait_group),
             5: dict(pre=["s_barrier"], fill=wdma2(7)),
             7: dict(pre=["s_waitcnt vmcnt(9)", "s_barrier"]),
             11: dict(pre=["s_waitcnt vmcnt(4)", "s_barrier"]),
             13: dict(pre=["s_waitcnt vmcnt(0)", "s_barrier"])}
    gemm_core(A, ACC, FA, FB, xread2, wread2, plan2)
    stamp(A, 10)
    stamp_cyc(A, 59)
    A(f"""
    s_lshl_b32 s30, s{S_B}, 2
    s_add_u32 s30, s30, s{S_R}
    s_lshl_b32 s30, s30, 2
    s_mul_i32 s{S_XB}, s30, 40960
    s_mul_i32 s30, s{S_W}, 40960
    s_add_u32 s30, s30, s{S_XB}
    s_lshl_b32 s31, s{S_G}, 10
    s_add_u32 s30, s30, s31
    """)
    PB = 60
    for t in range(5):
        d0, d1 = ACC + 4*t, ACC + 4*(5 + t)
        A(f"v_cvt_pk_bf16_f32 v{PB+4*t}, v{d0}, v{d0+1}")
        A(f"v_cvt_pk_bf16_f32 v{PB+4*t+1}, v{d0+2}, v{d0+3}")
        A(f"v_cvt_pk_bf16_f32 v{PB+4*t+2}, v{d1}, v{d1+1}")
        A(f"v_cvt_pk_bf16_f32 v{PB+4*t+3}, v{d1+2}, v{d1+3}")
        A(f"s_add_u32 s31, s30, {t*8192}")
        A(f"buffer_store_dwordx4 {vr(PB+4*t,4)}, v{V_L16}, {sr(SRD_PP,4)}, s31 offen sc1")
    A("s_waitcnt vmcnt(0)")
    A("s_barrier")
    A(f"s_cmp_eq_u32 s{S_W}, 0")
    A("s_cbranch_scc0 L_noflag2")
    A(f"s_lshl_b32 s{S_T0}, s{S_G}, 2")
    A(f"s_add_u32 s{S_T0}, s{S_T0}, s{S_F2}")
    A("v_mov_b32 v2, 1")
    one_lane(A, [f"buffer_store_dword v2, off, {sr(SRD_FL,4)}, s{S_T0} sc1"])
    A.label("L_noflag2")
    stamp(A, 11)
    A(f"s_lshl_b32 s30, s{S_W}, 3")
    A(f"s_add_u32 s30, s30, s{S_G}")
    A("s_cmp_ge_u32 s30, 20")
    A("s_cbranch_scc1 L_fin")
    poll(A, "f2", SRD_FL, S_F2, 8, 1, VCHK)
    stamp(A, 12)
    A(f"s_mul_hi_u32 s31, s30, {(1 << 32)//5 + 1}")
    A(f"s_mul_i32 s{S_T0}, s31, 5")
    A(f"s_sub_u32 s{S_T1}, s30, s{S_T0}              ; t")
    A(f"s_mul_i32 s{S_T0}, s31, 40960")
    A(f"s_add_u32 s{S_T0}, s{S_T0}, s{S_XB}")
    A(f"s_lshl_b32 s{S_T2}, s{S_T1}, 13")
    A(f"s_add_u32 s{S_T0}, s{S_T0}, s{S_T2}")
    RB = 60
    for g in range(8):
        if g == 4: A(f"s_add_u32 s{S_T0}, s{S_T0}, 4096")
        A(f"buffer_load_dwordx4 {vr(RB + 4*g, 4)}, v{V_L16}, {sr(SRD_PP,4)}, s{S_T0} offen offset:{(g%4)*1024} sc1")
    A(f"""
    s_mul_i32 s{S_T0}, s{S_B}, 80
    s_lshl_b32 s{S_T1}, s{S_T1}, 4
    s_add_u32 s{S_T0}, s{S_T0}, s{S_T1}
    v_add_u32 v8, s{S_T0}, v3
    v_lshlrev_b32 v8, 10, v8
    s_lshl_b32 s{S_T0}, s{S_R}, 2
    s_add_u32 s{S_T0}, s{S_T0}, s31
    s_lshl_b32 s{S_T0}, s{S_T0}, 6
    v_lshl_add_u32 v8, v4, 4, v8
    v_add_u32 v8, s{S_T0}, v8
    """)
    SUM, UN = 100, 110
    for g in range(8):
        A(f"s_waitcnt vmcnt({7-g})")
        dst = SUM if g == 0 else UN
        for i in range(4):
            A(f"v_lshlrev_b32 v{dst+2*i}, 16, v{RB+4*g+i}")
            A(f"v_and_b32 v{dst+2*i+1}, 0xffff0000, v{RB+4*g+i}")
        if g:
            for i in range(4): A(f"v_pk_add_f32 {vr(SUM+2*i,2)}, {vr(SUM+2*i,2)}, {vr(UN+2*i,2)}")
    for i in range(4): A(f"v_cvt_pk_bf16_f32 v{RB+64+i}, v{SUM+2*i}, v{SUM+2*i+1}")
    A(f"buffer_store_dwordx4 {vr(RB+64,4)}, v8, {sr(SRD_OUT,4)}, 0 offen")
    A.label("L_fin")
    A("s_waitcnt vmcnt(0)")
    stamp(A, 13)
    stamp_cyc(A, 60)
    stamp_out(A)
    if OPT.get('amp'):
        i0, i1, M = OPT['amp']
        A(f"s_add_u32 s30, s{S_R15}, s{S_W}")
        A("s_cmp_eq_u32 s30, 0")
        A("s_cbranch_scc0 L_end")
        A(f"v_readlane_b32 s30, v39, {i0}")
        A(f"v_readlane_b32 s31, v39, {i1}")
        A("s_nop 3")
        A("s_sub_u32 s30, s31, s30")
        A("s_min_u32 s30, s30, 10000")
        A(f"s_mul_i32 s30, s30, {M}")
        A("s_memrealtime s[64:65]")
        A("s_waitcnt lgkmcnt(0)")
        A.label("L_amp")
        A("s_sleep 4")
        A("s_memrealtime s[66:67]")
        A("s_waitcnt lgkmcnt(0)")
        A("s_sub_u32 s31, s66, s64")
        A("s_cmp_lt_u32 s31, s30")
        A("s_cbranch_scc1 L_amp")
    A.label("L_end")
    A("s_endpgm")
    A.label("L_text_main_end")
    if OPT['fallback']: gen_fallback(A)
    A.label("L_text_end")
    A("s_endpgm")
    return A.text()

def gen_fallback(A):
    M, AL, T = V_NEG, V_NEG + 8, 148
    SF = 160
    A.label("L_fallback")
    A(f"s_mov_b32 s{S_FB}, 1")
    for i in range(160): A(f"v_accvgpr_write_b32 a{A_O+i}, 0")
    for i in range(10): A(f"v_mov_b32 v{V_L+i}, 0")
    for t in range(5): A(f"v_mov_b32 v{M+t}, 0xff7fffff")
    A(f"s_mov_b32 s{S_CNT}, 16")
    A(f"s_mov_b32 s{S_OFF}, s{S_W8}")
    A.label("L_fb_loop")
    A(f"s_add_u32 s{S_OFF2}, s{S_OFF}, 4096")
    for x in with_m0_gap(kv_dma('K', 0)) + with_m0_gap(kv_dma('V', 0)): A(x)
    A("s_waitcnt vmcnt(0)")
    for p in range(8): A(k_read(p, 0))
    for dt in range(8):
        for hf in range(2): A(v_read(dt, hf, 0))
    A("s_waitcnt lgkmcnt(0)")
    for t in range(5):
        for p in range(8):
            kt, s = p >> 2, p & 3
            d = SF + 8*t + 4*kt
            A(f"v_mfma_f32_16x16x32_bf16 {vr(d,4)}, {vr(V_KF+4*p,4)}, {ar(A_Q+(t*4+s)*4,4)}, {'0' if s == 0 else vr(d,4)}")
    A("s_nop 7")
    for t in range(5):
        d = SF + 8*t
        A(f"v_max3_f32 v{T+t}, v{d}, v{d+1}, v{d+2}")
        A(f"v_max3_f32 v{T+t}, v{T+t}, v{d+3}, v{d+4}")
        A(f"v_max3_f32 v{T+t}, v{T+t}, v{d+5}, v{d+6}")
        A(f"v_max3_f32 v{T+t}, v{T+t}, v{d+7}, v{M+t}")
    A("s_nop 1")
    for swap in ("v_permlane32_swap_b32", "v_permlane16_swap_b32"):
        for t in range(5): A(f"v_mov_b32 v{T+5+t}, v{T+t}")
        for t in range(5): A(f"{swap} v{T+t}, v{T+5+t}")
        for t in range(5): A(f"v_max_f32 v{T+t}, v{T+t}, v{T+5+t}")
    for t in range(5): A(f"v_sub_f32 v{AL+t}, v{M+t}, v{T+t}")
    for t in range(5): A(f"v_exp_f32 v{AL+t}, v{AL+t}")
    for t in range(5): A(f"v_mov_b32 v{M+t}, v{T+t}")
    for t in range(5):
        for i in range(8): A(f"v_sub_f32 v{SF+8*t+i}, v{SF+8*t+i}, v{M+t}")
    for t in range(5):
        for i in range(8): A(f"v_exp_f32 v{SF+8*t+i}, v{SF+8*t+i}")
    A("s_nop 0")
    for t in range(5):
        A(f"v_mul_f32 v{V_L+2*t}, v{V_L+2*t}, v{AL+t}")
        for i in range(8): A(f"v_add_f32 v{V_L+2*t}, v{V_L+2*t}, v{SF+8*t+i}")
    for t in range(5):
        for i in range(32):
            A(f"v_accvgpr_read_b32 v{T+10}, a{A_O+t*32+i}")
            A(f"v_mul_f32 v{T+10}, v{T+10}, v{AL+t}")
            A(f"v_accvgpr_write_b32 a{A_O+t*32+i}, v{T+10}")
    PF = 200
    for t in range(5):
        for i in range(4): A(f"v_cvt_pk_bf16_f32 v{PF+4*t+i}, v{SF+8*t+2*i}, v{SF+8*t+2*i+1}")
    A("s_nop 1")
    for t in range(5):
        for dt in range(8):
            o = A_O + (t*8 + dt)*4
            A(f"v_mfma_f32_16x16x32_bf16 {ar(o,4)}, {vr(V_VF+4*dt,4)}, {vr(PF+4*t,4)}, {ar(o,4)}")
    A("s_nop 7")
    A(f"s_add_u32 s{S_OFF}, s{S_OFF}, 0x8000")
    A(f"s_sub_u32 s{S_CNT}, s{S_CNT}, 1")
    A(f"s_cmp_lg_u32 s{S_CNT}, 0")
    A("s_cbranch_scc1 L_fb_loop")
    XL = 0
    A("s_barrier")
    A(f"v_lshlrev_b32 v8, 2, v1")
    A(f"s_mul_i32 s30, s{S_W}, 1280")
    A(f"s_add_u32 s30, s30, {XL}")
    A(f"v_add_u32 v9, s30, v8")
    for t in range(5): A(f"ds_write_b32 v9, v{M+t} offset:{256*t}")
    A("s_waitcnt lgkmcnt(0)")
    A("s_barrier")
    for w in range(4):
        for t in range(5): A(f"ds_read_b32 v{SF + w*5 + t}, v8 offset:{XL + w*1280 + t*256}")
    A("s_waitcnt lgkmcnt(0)")
    for t in range(5):
        A(f"v_max3_f32 v{T+t}, v{SF+t}, v{SF+5+t}, v{SF+10+t}")
        A(f"v_max_f32 v{T+t}, v{T+t}, v{SF+15+t}")
        A(f"v_sub_f32 v{AL+t}, v{M+t}, v{T+t}")
    for t in range(5): A(f"v_exp_f32 v{AL+t}, v{AL+t}")
    A("s_nop 0")
    for t in range(5): A(f"v_mul_f32 v{V_L+2*t}, v{V_L+2*t}, v{AL+t}")
    for swap in ("v_permlane32_swap_b32", "v_permlane16_swap_b32"):
        for t in range(5): A(f"v_mov_b32 v{V_L+2*t+1}, v{V_L+2*t}")
        for t in range(5): A(f"{swap} v{V_L+2*t}, v{V_L+2*t+1}")
        for t in range(5): A(f"v_add_f32 v{V_L+2*t}, v{V_L+2*t}, v{V_L+2*t+1}")
    for t in range(5):
        for i in range(32):
            A(f"v_accvgpr_read_b32 v{T+10}, a{A_O+t*32+i}")
            A(f"v_mul_f32 v{T+10}, v{T+10}, v{AL+t}")
            A(f"v_accvgpr_write_b32 a{A_O+t*32+i}, v{T+10}")
    for t in range(5): A(f"v_mov_b32 v{V_LM+4*t}, v{V_L+2*t}")
    A("s_waitcnt vmcnt(0)")
    A("s_branch L_combine")

def build():
    s = HEADER + "; @launch grid=(256,1,1) block=(256,1,1) lds=163840\n"
    s += '.amdgcn_target "amdgcn-amd-amdhsa--gfx950"\n.text\n' + kernel_start(NAME) + gen()
    s += '.section .rodata,"a"\n.p2align 6\n' + kernel_desc(NAME, 512, 256, 102)
    return s

if __name__ == "__main__":
    out = sys.argv[1]
    for kv in sys.argv[2:]:
        k_, v_ = kv.split("=")
        OPT[k_] = eval(v_)
    open(out, "w").write(build())
```

```python
import sys, struct, math
from lib import *

def f32(x): return struct.unpack("<I", struct.pack("<f", x))[0]
C_SCALE = math.log2(math.e) / math.sqrt(128.0)
NAME = "standalone__gqa_block_cached__near_ridge_kernel"

WS_O = 0
WS_P = 8 << 20
WS_F = 24 << 20
WS_ST = 64 << 20
OPT = dict(standin=True, fallback=True, stamps=False, nodma=False, nods=False, novalu=False, nowait=False, wopf=True, order='X', kvpol='', codepf=True, qvar=2)

V_KA, V_VA, V_KD, V_VD, V_L, V_L16, V_NEG, V_S, V_P, V_KF, V_VF = 10, 14, 22, 26, 28, 38, 40, 60, 76, 84, 116
A_O, A_Q = 0, 160
S_G, S_B, S_R, S_W, S_H, S_RW = 24, 25, 26, 27, 28, 29
S_T, S_R15, S_W8, S_END, S_OFF, S_OFF2, S_CNT, S_W1K, S_XOFF, S_WK, S_ROT, S_FB = 32, 33, 34, 35, 36, 37, 38, 39, 40, 41, 42, 43
S_T0, S_T1, S_T2, S_SPIN = 60, 61, 62, 63
S_TAB = 2
SRD_X, SRD_K, SRD_V, SRD_W, SRD_O, SRD_WO, SRD_PP, SRD_FL, SRD_DBG, SRD_OUT = 4, 8, 12, 16, 20, 44, 48, 52, 56, 84
S_POFF, S_F1, S_F2, S_XB, S_WOB, S_BAD, S_INIT = 80, 81, 82, 83, 88, 90, 89
K0, K1s, V0, V1 = 0, 8192, 16384, 24576
LE = 131072
SPIN_MAX = 20000

def stamp(A, i):
    if not OPT['stamps']: return
    A("s_memrealtime s[98:99]")
    A("s_waitcnt lgkmcnt(0)")
    A(f"v_writelane_b32 v39, s98, {i}")
def stamp_cyc(A, i):
    if not OPT['stamps']: return
    A("s_memtime s[98:99]")
    A("s_waitcnt lgkmcnt(0)")
    A(f"v_writelane_b32 v39, s98, {i}")
def stamp_out(A):
    if not OPT['stamps']: return
    A("s_load_dwordx2 s[92:93], s[0:1], 56")
    A("s_waitcnt lgkmcnt(0)")
    A(f"s_add_u32 s92, s92, {WS_ST}")
    A("s_addc_u32 s93, s93, 0")
    A("s_mov_b32 s94, 0x100000")
    A("s_mov_b32 s95, 0x00020000")
    A(f"s_lshl_b32 s96, s{S_R15}, 2")
    A(f"s_add_u32 s96, s96, s{S_W}")
    A("s_lshl_b32 s96, s96, 8")
    A("v_lshlrev_b32 v2, 2, v1")
    A("buffer_store_dword v39, v2, s[92:95], s96 offen")
    A("s_waitcnt vmcnt(0)")

def gemm_core(A, acc, FA, FB, xread, wread, plan):
    def reads(ks):
        buf = ks & 1
        w = [wread(ks, jt, hf, FA[buf] + 4 * jt + 2 * hf) for jt in range(2) for hf in range(2)]
        x = [xread(ks, t, FB[buf] + 4 * t) for t in range(5)]
        return [w[0], w[1], x[0], w[2], w[3], x[1], x[2], x[3], x[4]]
    for r in reads(0): A(r)
    for ks in range(16):
        buf = ks & 1
        p = plan.get(ks, {})
        fine = p.get('fine')
        if fine is not None: stamp_cyc(A, fine)
        A("s_waitcnt lgkmcnt(0)")
        for x in p.get('pre', []):
            A(x)
            if fine is not None and x.startswith("s_waitcnt vmcnt"): stamp_cyc(A, fine + 1)
            if fine is not None and x == "s_barrier": stamp_cyc(A, fine + 2)
        if p.get('stamp') is not None: stamp(A, p['stamp'])
        extra = list(p.get('fill', []))
        late = p.get('late')
        fill = reads(ks + 1) if (ks < 15 and late is None) else []
        m = 0
        groups = extra; extra = []
        for t in range(5):
            for jt in range(2):
                d = acc + (jt * 5 + t) * 4
                c = "0" if ks == 0 else vr(d, 4)
                A(f"v_mfma_f32_16x16x32_bf16 {vr(d,4)}, {vr(FA[buf]+4*jt,4)}, {vr(FB[buf]+4*t,4)}, {c}")
                n = 0
                while fill and n < 2: A(fill.pop(0)); n += 1
                bg = p.get('burst_gap')
                if bg is not None:
                    if m == bg:
                        for g_ in groups:
                            for x in g_: A(x)
                        groups = []
                elif not fill and groups and m >= 3:
                    k = (len(groups) + (9 - m)) // (10 - m)
                    for _ in range(min(k, len(groups))):
                        for x in groups.pop(0): A(x)
                m += 1
        for g_ in groups:
            for x in g_: A(x)
        for e in extra: A(e)
        if fine is not None: stamp_cyc(A, fine + 3)
        if late is not None:
            late(A) if callable(late) else [A(x) for x in late]
            if ks < 15:
                for r in reads(ks + 1): A(r)

def segments(scheme, phi):
    if scheme == 'rot4': return None
    return {'X': [[1,4,4,4,3], [2,4,4,4,2], [3,4,4,4,1], [4,4,4,4]],
            'Y': [[2,4,4,4,2], [2,1,4,4,4,1], [2,1,1,4,4,4], [2,1,1,1,4,4,3]],
            'Z': [[1,4,4,4,3], [1,1,4,4,4,2], [1,1,1,4,4,4,1], [1,1,1,1,4,4,4]],
            'Y2': [[2,4,4,4,2], [2,2,4,4,4], [2,3,4,4,3], [2,4,4,4,2]],
            'L': [[1]*16]*4,
            'R2': [[2]*8, [1] + [2]*7 + [1], [2]*8, [1] + [2]*7 + [1]],
            'R4': [[4]*4]*4}[scheme][phi]
def tile_order(scheme, phi, r):
    seg = segments(scheme, phi)
    if seg is None:
        return [((i + phi) & 12) | ((i + phi + r) & 3) for i in range(16)]
    out = []; s0 = 0
    for n in seg:
        out += [s0 + ((u + r) % n) for u in range(n)]; s0 += n
    assert sorted(out) == list(range(16)), (scheme, phi, r, out)
    return out
def table_setup(A):
    A(f"s_and_b32 s{S_T0}, s{S_B}, 3")
    A(f"s_lshl_b32 s{S_T0}, s{S_T0}, 2")
    A(f"s_add_u32 s{S_T0}, s{S_T0}, s{S_R}")
    for idx in range(16):
        o = tile_order(OPT['order'], idx >> 2, idx & 3)
        v = sum(t << (4 * i) for i, t in enumerate(o))
        if idx == 0:
            A(f"s_mov_b32 s{S_TAB}, {hex(v & 0xffffffff)}"); A(f"s_mov_b32 s{S_TAB+1}, {hex(v >> 32)}")
        else:
            A(f"s_cmp_eq_u32 s{S_T0}, {idx}")
            A(f"s_cselect_b32 s{S_TAB}, {hex(v & 0xffffffff)}, s{S_TAB}")
            A(f"s_cselect_b32 s{S_TAB+1}, {hex(v >> 32)}, s{S_TAB+1}")
    A(f"s_mov_b32 s{S_T}, 0")
def off_calc():
    return [f"s_and_b32 s{S_T0}, s{S_TAB}, 15",
            f"s_lshl_b32 s{S_T0}, s{S_T0}, 15",
            f"s_or_b32 s{S_OFF}, s{S_T0}, s{S_W8}",
            f"s_lshr_b64 s[{S_TAB}:{S_TAB+1}], s[{S_TAB}:{S_TAB+1}], 4",
            f"s_cmp_ge_u32 s{S_T}, 16",
            f"s_cselect_b32 s{S_OFF}, 0x80000, s{S_OFF}",
            f"s_add_u32 s{S_OFF2}, s{S_OFF}, 4096",
            f"s_add_u32 s{S_T}, s{S_T}, 1"]
def kv_dma(which, slot):
    srd = SRD_K if which == 'K' else SRD_V
    base = (K0, K1s)[slot] if which == 'K' else (V0, V1)[slot]
    l = []
    for half in range(2):
        l.append(f"s_add_u32 m0, s{S_RW}, {base + 4096 * half}")
        so = S_OFF if half == 0 else S_OFF2
        for i in range(4):
            vo = V_KD + i if which == 'K' else V_VD + (i & 1)
            l.append(f"buffer_load_dwordx4 v{vo}, {sr(srd,4)}, s{so} offen offset:{1024*i} {OPT['kvpol']} lds".replace("  ", " "))
    return l
def with_m0_gap(l):
    out = []
    for x in l:
        out.append(x)
        if x.startswith("s_add_u32 m0"): out.append("s_nop 0")
    return out
def kv_groups(which, slot):
    d = kv_dma(which, slot)
    return [[d[0], "s_nop 0", d[1]], [d[2]], [d[3]], [d[4]], [d[5], "s_nop 0", d[6]], [d[7]], [d[8]], [d[9]]]
def spread(A, main, groups, start=0):
    n = len(main); g = list(groups); k = len(g)
    pos = [start + (n - start) * (i + 1) // (k + 1) for i in range(k)]
    for i, x in enumerate(main):
        while pos and pos[0] <= i and not x.startswith(("s_addc", "s_cselect", "s_cbranch")):
            pos.pop(0)
            for y in g.pop(0): A(y)
        A(x)
    for gg in g:
        for y in gg: A(y)
def k_read(p, slot):
    kt, s = p >> 2, p & 3
    return f"ds_read_b128 {vr(V_KF + 4*p, 4)}, v{V_KA + s} offset:{(K0, K1s)[slot] + 4096*kt}"
def v_read(dt, hf, slot):
    return f"ds_read_b64_tr_b16 {vr(V_VF + 4*dt + 2*hf, 2)}, v{V_VA + dt} offset:{(V0, V1)[slot] + 4096*hf}"
def qk_mfma(p, tq, sbuf):
    kt, s = p >> 2, p & 3
    d = V_S + 8 * sbuf + 4 * kt
    c = vr(V_NEG + 4 * tq, 4) if s == 0 else vr(d, 4)
    return f"v_mfma_f32_16x16x32_bf16 {vr(d,4)}, {vr(V_KF + 4*p, 4)}, {ar(A_Q + (tq*4 + s)*4, 4)}, {c}"
def pv_mfma(dt, tp, pbuf):
    o = A_O + (tp * 8 + dt) * 4
    return f"v_mfma_f32_16x16x32_bf16 {ar(o,4)}, {vr(V_VF + 4*dt, 4)}, {vr(V_P + 4*pbuf, 4)}, {ar(o,4)}"
V_LM, V_ONE = 148, 168
def l_mfma(tp, pbuf):
    d = V_LM + 4 * tp
    return f"v_mfma_f32_16x16x32_bf16 {vr(d,4)}, {vr(V_ONE,4)}, {vr(V_P + 4*pbuf, 4)}, {vr(d,4)}"
def sm_valu(ts, buf):
    S = V_S + 8 * buf; P = V_P + 4 * buf
    g = [[] for _ in range(17)]
    for q in range(4):
        e0, e1 = S + 2 * q, S + 2 * q + 1
        g[4*q + 0].append(f"v_exp_f32 v{e0}, v{e0}")
        g[4*q + 1].append(f"v_exp_f32 v{e1}, v{e1}")
        g[4*q + 2].append(f"v_cvt_pk_bf16_f32 v{P + q}, v{e0}, v{e1}")
    return g

def stage_plan(km, par):
    it = []
    kd, vd = kv_dma('K', par), kv_dma('V', par)
    kl = kd[1:5] + kd[6:10]; vl = vd[1:5] + vd[6:10]
    if km == 0:
        for i, x in enumerate(off_calc()): it.append((i // 2, None, x))
        it.append((5, None, "s_waitcnt lgkmcnt(0)"))
        it.append((6, None, kd[0]))
        it += [(7, 'K', kl[0]), (11, 'K', kl[1]), (15, 'K', kl[2])]
    if km == 1:
        it += [(3, 'K', kl[3]), (4, None, kd[5]), (7, 'K', kl[4])]
        it.append((9, 'waitV', None))
        rd = [(10, 0, 0), (11, 0, 1), (11, 1, 0), (14, 1, 1), (15, 2, 0), (15, 2, 1), (16, 3, 0), (16, 3, 1)]
        for g_, dt, hf in rd: it.append((g_, None, v_read(dt, hf, par)))
        it.append((12, 'K', kl[5]))
    if km == 2:
        rd = [(2, 4, 0), (2, 4, 1), (3, 5, 0), (3, 5, 1), (6, 6, 0), (6, 6, 1), (7, 7, 0), (7, 7, 1)]
        for g_, dt, hf in rd: it.append((g_, None, v_read(dt, hf, par)))
        it += [(7, None, "s_waitcnt lgkmcnt(8)"), (11, 'K', kl[6]), (11, None, "s_waitcnt lgkmcnt(2)"), (14, None, "s_waitcnt lgkmcnt(0)"), (16, 'K', kl[7])]
    if km == 3:
        it += [(0, None, vd[0]), (3, 'V', vl[0]), (7, 'V', vl[1]), (11, 'V', vl[2]), (15, 'V', vl[3]), (16, 'waitK', None)]
    if km == 4:
        rd = [(2, 0), (3, 1), (3, 2), (6, 3), (7, 4), (7, 5), (10, 6), (11, 7)]
        for g_, p in rd: it.append((g_, None, k_read(p, 1 - par)))
        it += [(0, None, vd[5]), (4, 'V', vl[4]), (8, 'V', vl[5]), (12, 'V', vl[6]), (15, 'V', vl[7]), (16, None, "s_waitcnt lgkmcnt(2)")]
    return it
def vm_counts():
    seq = []
    waits = {}
    for j in range(3):
        for k in range(10):
            par = 0 if k < 5 else 1
            n = 2 * j + 2 + par
            for g_, tag, x in sorted(stage_plan(k % 5, par), key=lambda e: e[0]):
                if tag in ('K', 'V'): seq.append((tag, n))
                if tag == 'waitV' and j == 2:
                    need = ('V', 2 * j + par)
                    waits[('V', par)] = len(seq) - 1 - max(i for i, u in enumerate(seq) if u == need)
                if tag == 'waitK' and j == 2:
                    need = ('K', 2 * j + 1 + par)
                    waits[('K', par)] = len(seq) - 1 - max(i for i, u in enumerate(seq) if u == need)
    return waits

def main_stage(A, k):
    tq, ts, tp = k % 5, (k + 4) % 5, (k + 3) % 5
    nv = [[] for _ in range(17)]
    par = 0 if k < 5 else 1
    km = k % 5
    vm = vm_counts()
    for g_, tag, x in stage_plan(km, par):
        if tag == 'waitV': x = f"s_waitcnt vmcnt({vm[('V', par)]})"
        if tag == 'waitK': x = f"s_waitcnt vmcnt({vm[('K', par)]})"
        nv[g_].append(x)
    if k == 0 and OPT['wopf']:
        nv[16] += [f"s_cmp_eq_u32 s{S_CNT}, 2", "s_cbranch_scc0 L_nopf", f"s_lshl_b32 s{S_T0}, s{S_W}, 12", f"s_add_u32 m0, s{S_T0}, {LE}", "s_nop 0"]
        nv[16] += [f"buffer_load_dwordx4 v{V_L16}, {sr(SRD_WO,4)}, s{S_POFF} offen offset:{1024*i} lds" for i in range(4)]
        nv[16] += [f"s_add_u32 m0, s{S_RW}, {K0}", "L_nopf:"]
    va = sm_valu(ts, (k + 1) & 1)
    for p in range(17):
        A(qk_mfma(p, tq, k & 1) if p < 8 else (pv_mfma(p - 8, tp, k & 1) if p < 16 else l_mfma(tp, k & 1)))
        for x in nv[p]:
            if x.endswith(":"): A.raw(x); continue
            if OPT['nodma'] and x.startswith("buffer_load"): continue
            if OPT['nods'] and x.startswith("ds_read"): continue
            if OPT['nowait'] and x.startswith("s_waitcnt"): continue
            A(x)
        if OPT['novalu']: continue
        for x in va[p]: A(x)

def poll(A, tag, srd, soff, nwords, want, vtmp):
    A(f"s_mov_b32 s{S_SPIN}, {SPIN_MAX}")
    A.label(f"L_poll_{tag}")
    for i in range(nwords // 4):
        A(f"buffer_load_dwordx4 {vr(vtmp + 4*i, 4)}, off, {sr(srd,4)}, s{soff} offset:{16*i} sc1")
    A("s_waitcnt vmcnt(0)")
    for i in range(1, nwords): A(f"v_min_u32 v{vtmp}, v{vtmp}, v{vtmp+i}")
    A("s_nop 0")
    A(f"v_readfirstlane_b32 s{S_T0}, v{vtmp}")
    A("s_nop 3")
    A(f"s_cmp_ge_u32 s{S_T0}, {want}")
    A(f"s_cbranch_scc1 L_done_{tag}")
    A(f"s_sub_u32 s{S_SPIN}, s{S_SPIN}, 1")
    A(f"s_cmp_eq_u32 s{S_SPIN}, 0")
    A(f"s_cbranch_scc1 L_done_{tag}")
    A("s_sleep 1")
    A(f"s_branch L_poll_{tag}")
    A.label(f"L_done_{tag}")

def one_lane(A, instrs):
    A("s_mov_b64 exec, 1")
    for x in instrs: A(x)
    A("s_mov_b64 exec, -1")

def gen():
    A = Asm()
    A("s_cmp_ge_u32 s2, 256")
    A("s_cbranch_scc1 L_end")
    stamp(A, 0)
    stamp_cyc(A, 55)
    A("s_load_dwordx16 s[64:79], s[0:1], 0")
    if OPT['codepf']:
        A("s_getpc_b64 s[30:31]")
        A.label("L_pc")
        A("s_lshr_b32 s60, s2, 3")
        A("v_lshrrev_b32 v2, 6, v0")
        A("v_and_b32 v1, 63, v0")
        A("v_lshl_add_u32 v2, s60, 2, v2")
        A("v_lshl_add_u32 v2, v2, 2, v1")
        A("v_lshlrev_b32 v2, 7, v2")
        A("v_mov_b32 v5, s31")
        A("v_add_co_u32 v4, vcc, s30, v2")
        A("s_nop 1")
        A("v_addc_co_u32 v5, vcc, 0, v5, vcc")
        A("v_cmp_gt_u32 vcc, 4, v1")
        A("s_mov_b32 s60, L_text_main_end-L_pc")
        A("v_cmp_gt_u32 s[62:63], s60, v2")
        A("s_nop 1")
        A("s_and_b64 vcc, vcc, s[62:63]")
        A("s_and_saveexec_b64 s[62:63], vcc")
        A("s_cbranch_execz L_nocpf")
        A("global_load_dword v243, v[4:5], off")
        A.label("L_nocpf")
        A("s_mov_b64 exec, s[62:63]")
    A(f"""
    v_lshrrev_b32 v2, 6, v0
    v_and_b32 v1, 63, v0
    s_and_b32 s{S_G}, s2, 7
    s_lshr_b32 s30, s2, 3
    v_readfirstlane_b32 s{S_W}, v2
    s_lshr_b32 s{S_B}, s30, 2
    s_and_b32 s{S_R}, s30, 3
    s_lshl_b32 s{S_H}, s{S_G}, 2
    s_add_u32 s{S_H}, s{S_H}, s{S_R}
    v_and_b32 v3, 15, v1
    v_lshrrev_b32 v4, 4, v1
    v_bfe_u32 v5, v1, 2, 2
    v_and_b32 v6, 3, v1
    s_lshl_b32 s{S_W1K}, s{S_W}, 10
    s_add_u32 s{S_ROT}, s{S_B}, s{S_R}
    s_and_b32 s{S_ROT}, s{S_ROT}, 3
    """)
    ACC, FA, FB, VX, VAW = 148, (188, 196), (204, 224), 244, 252
    VXD, VWD = 84, 92
    A(f"""
    s_lshl_b32 s30, s{S_W}, 2
    v_add_u32 v8, s30, v4                   ; 4w+gq
    v_xor_b32 v9, v3, v8
    v_lshlrev_b32 v9, 4, v9
    v_lshl_add_u32 v{VXD}, v8, 10, v9
    v_lshlrev_b32 v9, 2, v4
    v_xor_b32 v9, v3, v9
    v_lshlrev_b32 v9, 4, v9
    v_lshl_add_u32 v{VWD}, v8, 13, v9
    s_mul_i32 s31, s{S_B}, 81920
    """)
    for t in range(1, 5): A(f"v_add_u32 v{VXD+t}, {t*16384}, v{VXD}")
    for i in range(1, 4): A(f"v_add_u32 v{VWD+i}, {i*16*8192}, v{VWD}")
    WT = [100, 101, 97, 96, 95, 94, 93, 92]
    XT = [88, 89, 90, 91]
    A(f"s_lshl_b32 s{S_T1}, s{S_H}, 8")
    A(f"s_lshl_b32 s{S_T2}, s{S_ROT}, 1")
    for u in range(8):
        A(f"s_add_u32 s{S_T0}, s{S_T2}, {u}")
        A(f"s_and_b32 s{S_T0}, s{S_T0}, 7")
        A(f"s_lshl_b32 s{S_T0}, s{S_T0}, 19")
        A(f"s_add_u32 s{WT[u]}, s{S_T0}, s{S_T1}")
    for a_ in range(4):
        A(f"s_add_u32 s{S_T0}, s{S_ROT}, {a_}")
        A(f"s_and_b32 s{S_T0}, s{S_T0}, 3")
        A(f"s_lshl_b32 s{S_T0}, s{S_T0}, 8")
        A(f"s_add_u32 s{XT[a_]}, s{S_T0}, s31")
    A("s_waitcnt lgkmcnt(0)")
    if OPT.get('qstamps'): stamp(A, 14)
    A(f"""
    s_mov_b32 s{SRD_X}, s64
    s_mov_b32 s{SRD_X+1}, s65
    s_mov_b32 s{SRD_X+2}, {640*1024}
    s_mov_b32 s{SRD_X+3}, 0x00020000
    s_mov_b32 s{SRD_W}, s70
    s_mov_b32 s{SRD_W+1}, s71
    s_mov_b32 s{SRD_W+2}, {512*8192}
    s_mov_b32 s{SRD_W+3}, 0x00020000
    """)
    pool1 = [w*32768 + V0 + h*4096 for w in range(4) for h in range(2)] + [K1s, K1s + 4096]
    pool2 = [w*32768 + K1s + h*4096 for w in (1, 2, 3) for h in range(2)] + [w*32768 + V1 + h*4096 for w in (0, 1) for h in range(2)]
    xarea = lambda a, t: (pool1 if a < 2 else pool2)[(a & 1) * 5 + t]
    wblk = lambda u, e: [[2*32768 + V1, 3*32768 + V1], [LE, LE + 8192], [LE + 16384, LE + 24576], [K0, 32768 + K0], [2*32768 + K0, 3*32768 + K0]][u % 5][e]
    def xdma(a):
        return [[f"s_add_u32 m0, s{S_W1K}, {xarea(a, t)}", "s_nop 0", f"buffer_load_dwordx4 v{VXD+t}, {sr(SRD_X,4)}, s{XT[a]} offen lds"] for t in range(5)]
    def wdma(u):
        return [[f"s_add_u32 m0, s{S_W1K}, {wblk(u, e) + 4096*hh}", "s_nop 0", f"buffer_load_dwordx4 v{VWD+2*e+hh}, {sr(SRD_W,4)}, s{WT[u]} offen lds"]
                for e in range(2) for hh in range(2)]
    def xread(ks, t, dst):
        p = xarea(ks >> 2, t)
        return f"ds_read_b128 {vr(dst,4)}, v{VX + 4*(p >> 16) + (ks & 3)} offset:{p & 0xffff}"
    def wread(ks, jt, hf, dst):
        p = wblk(ks >> 1, ks & 1)
        return f"ds_read_b64_tr_b16 {vr(dst,2)}, v{VAW + (p >> 16)} offset:{(p & 0xffff) + 1024*hf + 8*jt}"
    for g_ in wdma(0) + xdma(0):
        for x in g_: A(x)
    if OPT.get('qstamps'): stamp(A, 15)
    B = Asm()
    B(f"""
    s_lshl_b32 s{S_RW}, s{S_W}, 15
    s_lshl_b32 s{S_W8}, s{S_W}, 13
    s_mov_b32 s{S_FB}, 0
    s_lshl_b32 s30, s{S_B}, 3
    s_add_u32 s30, s30, s{S_G}               ; b*8+g
    s_lshl_b32 s{S_F1}, s30, 7
    s_lshl_b32 s30, s30, 19
    s_add_u32 s{SRD_K}, s66, s30
    s_addc_u32 s{SRD_K+1}, s67, 0
    s_mov_b32 s{SRD_K+2}, 0x80000
    s_mov_b32 s{SRD_K+3}, 0x00020000
    s_add_u32 s{SRD_V}, s68, s30
    s_addc_u32 s{SRD_V+1}, s69, 0
    s_mov_b32 s{SRD_V+2}, 0x80000
    s_mov_b32 s{SRD_V+3}, 0x00020000
    s_add_u32 s{SRD_O}, s78, {WS_O}
    s_addc_u32 s{SRD_O+1}, s79, 0
    s_mov_b32 s{SRD_O+2}, {5 << 20}
    s_mov_b32 s{SRD_O+3}, 0x00020000
    s_add_u32 s{SRD_PP}, s78, {WS_P}
    s_addc_u32 s{SRD_PP+1}, s79, 0
    s_mov_b32 s{SRD_PP+2}, {5 << 20}
    s_mov_b32 s{SRD_PP+3}, 0x00020000
    s_add_u32 s{SRD_FL}, s78, {WS_F}
    s_addc_u32 s{SRD_FL+1}, s79, 0
    s_mov_b32 s{SRD_FL+2}, 16384
    s_mov_b32 s{SRD_FL+3}, 0x00020000
    s_mov_b32 s{SRD_WO}, s72
    s_mov_b32 s{SRD_WO+1}, s73
    s_mov_b32 s{SRD_WO+2}, {4096*1024}
    s_mov_b32 s{SRD_WO+3}, 0x00020000
    s_mov_b32 s{SRD_DBG}, s76
    s_mov_b32 s{SRD_DBG+1}, s77
    s_mov_b32 s{SRD_DBG+2}, 256
    s_mov_b32 s{SRD_DBG+3}, 0x00020000
    s_mov_b32 s{SRD_OUT}, s74
    s_mov_b32 s{SRD_OUT+1}, s75
    s_mov_b32 s{SRD_OUT+2}, {640*1024}
    s_mov_b32 s{SRD_OUT+3}, 0x00020000
    s_lshl_b32 s30, s{S_B}, 2
    s_add_u32 s30, s30, s{S_R}               ; b*4+r
    s_lshl_b32 s{S_F2}, s30, 7
    s_add_u32 s{S_F2}, s{S_F2}, 8192
    s_lshl_b32 s{S_POFF}, s{S_G}, 19
    s_lshl_b32 s30, s30, 14
    s_add_u32 s{S_POFF}, s{S_POFF}, s30
    s_lshl_b32 s30, s{S_W}, 12
    s_add_u32 s{S_POFF}, s{S_POFF}, s30
    v_lshlrev_b32 v{V_L16}, 4, v1
    v_xor_b32 v7, v4, v3
    v_lshlrev_b32 v7, 4, v7
    v_lshl_add_u32 v7, v3, 8, v7            ; n*256 + (gq^n)*16
    """)
    B(f"s_mov_b32 s{S_R15}, s2")
    table_setup(B)
    for s_ in range(4):
        B(f"v_xor_b32 v{VX+s_}, {64*s_}, v7")
        B(f"v_add_u32 v{VX+4+s_}, 0x10000, v{VX+s_}")
        B(f"v_add_u32 v{V_KA+s_}, s{S_RW}, v{VX+s_}")
    B(f"""
    v_lshl_add_u32 v8, v4, 3, v5
    s_lshl_b32 s30, s{S_W}, 2
    v_add_u32 v9, s30, v6
    v_lshlrev_b32 v2, 2, v5
    v_xor_b32 v9, v9, v2
    v_lshlrev_b32 v9, 4, v9
    v_lshl_add_u32 v9, v8, 8, v9
    v_mov_b32 v{VAW}, v9
    v_add_u32 v{VAW+1}, 0x10000, v9
    v_add_u32 v{VAW+2}, 0x20000, v9
    v_lshl_add_u32 v8, v4, 2, v5
    v_and_b32 v9, 7, v8
    v_lshlrev_b32 v9, 5, v9
    v_lshl_add_u32 v9, v8, 8, v9
    v_lshl_add_u32 v9, v6, 3, v9
    """)
    for dt in range(8):
        B(f"v_xor_b32 v{V_VA+dt}, {32*dt}, v9")
        B(f"v_add_u32 v{V_VA+dt}, s{S_RW}, v{V_VA+dt}")
    B(f"""
    v_xor_b32 v9, v3, v4
    v_lshlrev_b32 v9, 4, v9
    v_lshl_add_u32 v9, v4, 8, v9
    """)
    for i in range(4): B(f"v_xor_b32 v{V_KD+i}, {64*i}, v9")
    B(f"""
    v_lshlrev_b32 v9, 1, v4
    v_xor_b32 v9, v3, v9
    v_lshlrev_b32 v9, 4, v9
    v_lshl_add_u32 v{V_VD}, v4, 8, v9
    v_xor_b32 v{V_VD+1}, 128, v{V_VD}
    """)
    for i in range(32): B(f"v_mov_b32 v{V_VF+i}, 0")
    for i in range(10): B(f"v_mfma_f32_32x32x16_bf16 {ar(A_O+16*i,16)}, {vr(V_VF,4)}, {vr(V_VF,4)}, 0")
    for i in range(4): B(f"v_mov_b32 v{V_P+i}, 0")
    for i in range(8): B(f"v_mov_b32 v{V_S+8+i}, 0xff7fffff")
    spread(A, [x.strip() for x in B.l], wdma(1))
    A(f"s_cmp_eq_u32 s{S_W}, 0")
    A("s_cbranch_scc0 L_noclr")
    A(f"s_lshl_b32 s{S_T0}, s{S_R}, 2")
    A(f"s_add_u32 s{S_T0}, s{S_T0}, s{S_F1}")
    A(f"s_lshl_b32 s{S_T1}, s{S_G}, 2")
    A(f"s_add_u32 s{S_T1}, s{S_T1}, s{S_F2}")
    A("v_mov_b32 v2, 0")
    one_lane(A, [f"buffer_store_dword v2, off, {sr(SRD_FL,4)}, s{S_T0} sc1", f"buffer_store_dword v2, off, {sr(SRD_FL,4)}, s{S_T1} sc1"])
    A.label("L_noclr")
    if OPT.get('qstamps'): stamp(A, 16)
    seq0 = ['W0'] * 4 + ['xA'] * 5 + ['W1'] * 4
    A(f"s_waitcnt vmcnt(4)")
    if OPT.get('qstamps'): stamp(A, 17)
    A("s_barrier")
    stamp(A, 1)
    stamp_cyc(A, 56)
    NV = 4 if OPT['qvar'] == 4 else (2 if OPT['qvar'] == 2 else 1)
    if NV == 4:
        for wv in range(1, 4):
            A(f"s_cmp_eq_u32 s{S_W}, {wv}")
            A(f"s_cbranch_scc1 L_qp{wv}")
    if NV == 2:
        A(f"s_cmp_ge_u32 s{S_W}, 2")
        A(f"s_cbranch_scc1 L_qp2")
    for wv in ((0, 1, 2, 3) if NV == 4 else ((0, 2) if NV == 2 else (0,))):
        if wv: A.label(f"L_qp{wv}")
        seq = list(seq0)
        def vm_for(need):
            last = max(i for i, t in enumerate(seq) if t in need)
            return len(seq) - 1 - last
        arrive = [f"s_lshr_b32 s{S_T0}, s{S_F1}, 5", "v_mov_b32 v2, 1", "s_mov_b64 exec, 1",
                  f"buffer_atomic_add v2, off, {sr(SRD_DBG,4)}, s{S_T0} sc1", "s_mov_b64 exec, -1"] if wv == 0 else []
        if NV < 4 and wv == 0: arrive = [f"s_cmp_eq_u32 s{S_W}, 0", "s_cbranch_scc0 L_noarr"] + arrive + ["L_noarr:"]
        kg0, vg0, kg1 = kv_groups('K', 0), kv_groups('V', 0), kv_groups('K', 1)
        kg0[0] = off_calc() + kg0[0]
        kg1[0] = off_calc() + kg1[0]
        ival = {0: [('xB', xdma(1)), ('W2', wdma(2))], 1: [('W3', wdma(3)), ('W4', wdma(4))], 2: [('xC', xdma(2)), ('W5', wdma(5))],
                3: [('W6', wdma(6)), ('xD', xdma(3))], 4: [('W7', wdma(7))], 5: [('K0', kg0)], 6: [('V0', vg0)], 7: []}
        needs = {1: ['W1'], 3: ['xB', 'W2'], 5: ['W3'], 7: ['xC', 'W4'], 9: ['W5'], 11: ['xD', 'W6'], 13: ['W7'], 15: None}
        plan = {}
        for ks in range(16):
            p = {}
            if ks in needs:
                p['pre'] = ([f"s_waitcnt vmcnt({vm_for(needs[ks])})"] if needs[ks] else []) + ["s_barrier"]
                if ks == 3: p['pre'] += arrive
            u = (ks + 1) >> 1
            first = (ks & 1) == 1 or ks == 0
            mine = (ks == 0) or (first and wv < 2) or (not first and wv >= 2)
            fill = []
            if NV == 1:
                allg = [(tag, g_) for tag, gs in ival.get(u, []) for g_ in gs]
                h = len(allg) if ks == 0 else (len(allg) + 1) // 2
                part = allg[:h] if first else allg[h:]
                if ks < 15:
                    for tag, g_ in part: fill.append(g_); seq.append(tag)
            elif ks < 15 and mine:
                for tag, gs in ival.get(u, []):
                    fill += gs; seq += [tag] * len(gs)
                if NV == 4: p['burst_gap'] = (4, 5, 7, 9)[wv] if ks == 0 else (4, 9)[wv & 1]
            if ks == 15 and wv < 2:
                fill = kg1; seq += ['K1'] * 8
                if NV == 4: p['burst_gap'] = (0, 9)[wv]
            p['fill'] = fill
            plan[ks] = p
        if OPT.get('qstamps'):
            for i, ks in enumerate((1, 3, 5, 7, 9, 11, 13, 15)): plan[ks]['stamp'] = 22 + i
        if OPT.get('fine'):
            for i, ks in enumerate(OPT['fine']): plan.setdefault(ks, {})['fine'] = 32 + 4 * i
        gemm_core(A, ACC, FA, FB, xread, wread, plan)
        stamp(A, 2)
        stamp_cyc(A, 57)
        A(f"s_mov_b32 s30, {hex(f32(C_SCALE))}")
        A(f"v_add_u32 v8, s{S_W1K}, v{V_L16}")
        A(f"v_add_u32 v8, {LE}, v8")
        A("s_nop 4")
        for t in range(5):
            for jt in range(2):
                d = ACC + (jt*5 + t)*4
                for h in range(2): A(f"v_pk_mul_f32 {vr(d+2*h,2)}, {vr(d+2*h,2)}, s[30:31] op_sel_hi:[1,0]")
            q = FB[0] + 4*t
            for jt in range(2):
                d = ACC + (jt*5 + t)*4
                A(f"v_cvt_pk_bf16_f32 v{q+2*jt}, v{d}, v{d+1}")
                A(f"v_cvt_pk_bf16_f32 v{q+2*jt+1}, v{d+2}, v{d+3}")
            A(f"ds_write_b128 v8, {vr(q,4)} offset:{t*4096}")
            if wv >= 2 and t == (1, 3)[wv - 2]:
                for g_ in kg1:
                    for x in g_: A(x)
        if wv < (3 if NV == 4 else (2 if NV == 2 else 0)): A("s_branch L_qdone")
    A.label("L_qdone")
    if OPT.get('qstamps'): stamp(A, 18)
    A("s_waitcnt vmcnt(16) lgkmcnt(0)")
    if OPT.get('qstamps'): stamp(A, 19)
    A("s_barrier")
    stamp(A, 30)
    A(f"v_add_u32 v8, {LE}, v{V_L16}")
    ST = 188
    if OPT['standin']:
        for s in range(4): A(f"ds_read_b128 {vr(ST+4*s,4)}, v{VX+s} offset:{K0}")
    for t in range(5):
        for s in range(4): A(f"ds_read_b128 {ar(A_Q+(t*4+s)*4,4)}, v8 offset:{(t*4+s)*1024}")
    for p in range(8): A(k_read(p, 0))
    for g_ in kv_groups('V', 1):
        for x in g_: A(x)
    if OPT.get('qstamps'): stamp(A, 32)
    VL2, VA2, VWD2, VCHK = 244, 245, 247, 248
    A(f"""
    v_lshl_add_u32 v8, v4, 2, v5
    s_lshl_b32 s30, s{S_W}, 2
    v_add_u32 v9, s30, v6
    v_lshlrev_b32 v2, 2, v5
    v_xor_b32 v9, v9, v2
    v_lshlrev_b32 v9, 4, v9
    v_lshl_add_u32 v9, v8, 8, v9
    v_add_u32 v8, s30, v4
    v_lshlrev_b32 v2, 2, v4
    v_xor_b32 v2, v3, v2
    v_lshlrev_b32 v2, 4, v2
    """)
    for i in range(20): A(f"v_mov_b32 v{V_LM+i}, 0")
    for i in range(4): A(f"v_mov_b32 v{V_ONE+i}, 0x3f803f80")
    if OPT['standin']:
        A("s_waitcnt lgkmcnt(8)")
        for t in range(5):
            for s in range(4):
                d = V_NEG + 4*t
                A(f"v_mfma_f32_16x16x32_bf16 {vr(d,4)}, {vr(ST+4*s,4)}, {ar(A_Q+(t*4+s)*4,4)}, {'0' if s == 0 else vr(d,4)}")
    if OPT.get('qstamps'): stamp(A, 31)
    A(f"v_add_u32 v{VA2}, 0x10000, v9")
    A(f"v_add_u32 v{VA2+1}, 0x20000, v9")
    A(f"v_lshl_add_u32 v{VWD2}, v8, 10, v2")
    A(f"v_add_u32 v{VL2}, 0x10000, v{V_L16}")
    if OPT['standin']:
        T = 204
        A("s_nop 4")
        for t in range(5):
            d = V_NEG + 4*t
            A(f"v_max3_f32 v{T+t}, v{d}, v{d+1}, v{d+2}")
        for t in range(5): A(f"v_max_f32 v{T+t}, v{T+t}, v{V_NEG+4*t+3}")
        for swap in ("v_permlane32_swap_b32", "v_permlane16_swap_b32"):
            for t in range(5): A(f"v_mov_b32 v{T+8+t}, v{T+t}")
            for t in range(5): A(f"{swap} v{T+t}, v{T+8+t}")
            for t in range(5): A(f"v_max_f32 v{T+t}, v{T+t}, v{T+8+t}")
        for t in range(5):
            for r in range(4): A(f"v_xor_b32 v{V_NEG+4*t+r}, 0x80000000, v{T+t}")
    else:
        for i in range(20): A(f"v_mov_b32 v{V_NEG+i}, 0")
    A("s_waitcnt lgkmcnt(0)")
    A("s_barrier")
    A(f"s_mov_b32 s{S_CNT}, 8")
    stamp(A, 3)
    stamp_cyc(A, 20)
    A.raw(".p2align 6")
    A.label("L_loop")
    for k in range(10): main_stage(A, k)
    A(f"s_sub_u32 s{S_CNT}, s{S_CNT}, 1")
    A(f"s_cmp_lg_u32 s{S_CNT}, 0")
    A("s_cbranch_scc1 L_loop")
    stamp(A, 4)
    stamp_cyc(A, 21)
    xarea2 = lambda a, t: (a * 5 + t) * 4096
    wslot = [LE, LE + 16384, 81920, 98304, 114688]
    wblk2 = lambda u, e: wslot[u % 5] + 8192 * e
    def wdma2(u):
        pre = [f"s_lshl_b32 s{S_T0}, s{S_R}, 1", f"s_add_u32 s{S_T0}, s{S_T0}, {u}", f"s_and_b32 s{S_T0}, s{S_T0}, 7", f"s_lshl_b32 s{S_T0}, s{S_T0}, 16",
               f"s_add_u32 s{S_WK}, s{S_T0}, s{S_WOB}"]
        l = []
        for e in range(2):
            for hh in range(2):
                l.append([f"s_add_u32 m0, s{S_W1K}, {wblk2(u, e) + 4096*hh}", f"s_add_u32 s{S_T0}, s{S_WK}, {(32*e + 16*hh)*1024}",
                          f"buffer_load_dwordx4 v{VWD2}, {sr(SRD_WO,4)}, s{S_T0} offen lds"])
        l[0] = pre + l[0]
        return l
    def xdma2(a):
        pre = [f"s_add_u32 s{S_T0}, s{S_R}, {a}", f"s_and_b32 s{S_T0}, s{S_T0}, 3", f"s_lshl_b32 s{S_T0}, s{S_T0}, 2",
               f"s_add_u32 s{S_T0}, s{S_T0}, s{S_W}", f"s_mul_i32 s{S_T0}, s{S_T0}, 5120", f"s_add_u32 s{S_XOFF}, s{S_T0}, s{S_XB}"]
        l = []
        for t in range(5):
            l.append([f"s_add_u32 m0, s{S_W1K}, {xarea2(a, t)}", f"s_add_u32 s{S_T0}, s{S_XOFF}, {t*1024}",
                      f"buffer_load_dwordx4 v{V_L16}, {sr(SRD_O,4)}, s{S_T0} offen sc1 lds"])
        l[0] = pre + l[0]
        return l
    flat = lambda gs: [x for g_ in gs for x in g_]
    def xread2(ks, t, dst):
        p = xarea2(ks >> 2, t) + (ks & 3) * 1024
        return f"ds_read_b128 {vr(dst,4)}, v{V_L16 if p < 65536 else VL2} offset:{p & 0xffff}"
    def wread2(ks, jt, hf, dst):
        p = wblk2(ks >> 1, ks & 1)
        return f"ds_read_b64_tr_b16 {vr(dst,2)}, v{VA2 + (p >> 16) - 1} offset:{(p & 0xffff) + 4096*hf + 8*jt}"
    A(f"s_lshl_b32 s{S_WOB}, s{S_G}, 19")
    A(f"s_lshl_b32 s{S_T1}, s{S_R}, 8")
    A(f"s_add_u32 s{S_WOB}, s{S_WOB}, s{S_T1}")
    A(f"s_lshl_b32 s30, s{S_B}, 7")
    A(f"s_lshl_b32 s31, s{S_G}, 4")
    A(f"s_add_u32 s30, s30, s31")
    A(f"s_mul_i32 s{S_XB}, s30, 5120")
    va = sm_valu(4, 1)
    for p in range(17):
        if p >= 8: A(pv_mfma(p - 8, 3, 0) if p < 16 else l_mfma(3, 0))
        for x in va[p]: A(x)
        if p < 8 and p % 4 in (1,): A("s_nop 0")
    A("s_nop 1")
    for dt in range(8): A(pv_mfma(dt, 4, 1))
    A(l_mfma(4, 1))
    A.label("L_combine")
    XL = 122880
    A("s_waitcnt vmcnt(0)")
    A("s_barrier")
    A(f"v_lshlrev_b32 v8, 2, v1")
    A(f"s_mul_i32 s30, s{S_W}, 1280")
    A(f"s_add_u32 s30, s30, {XL}")
    A(f"v_add_u32 v9, s30, v8")
    A("s_nop 1")
    for t in range(5): A(f"ds_write_b32 v9, v{V_LM+4*t} offset:{256*t}")
    TO = 60
    for d in range(4):
        A(f"s_cmp_eq_u32 s{S_W}, {d}")
        A(f"s_cbranch_scc1 L_own{d}")
        A(f"s_sub_u32 s30, s{S_W}, {d+1}")
        A(f"s_and_b32 s30, s30, 3")
        A(f"s_mul_i32 s30, s30, 10240")
        A(f"s_add_u32 s30, s30, {d*30720}")
        A(f"v_add_u32 v9, s30, v{V_L16}")
        for t in range(5):
            for j in range(2):
                A(f"ds_write_b128 v9, {ar(A_O + (t*8 + 2*d + j)*4, 4)} offset:{(t*2+j)*1024}")
        A(f"s_branch L_nxt{d}")
        A.label(f"L_own{d}")
        for t in range(5):
            for j in range(2):
                for r in range(4): A(f"v_accvgpr_read_b32 v{TO + (t*2+j)*4 + r}, a{A_O + (t*8 + 2*d + j)*4 + r}")
        A.label(f"L_nxt{d}")
    A("s_waitcnt lgkmcnt(0)")
    A("s_barrier")
    stamp(A, 5)
    stamp_cyc(A, 58)
    TL, RC, TR = 100, 120, 130
    A(f"v_add_u32 v9, {XL}, v8")
    for w in range(4):
        for t in range(5): A(f"ds_read_b32 v{TL + w*5 + t}, v9 offset:{w*1280 + t*256}")
    A(f"s_mul_i32 s30, s{S_W}, 30720")
    A(f"v_add_u32 v9, s30, v{V_L16}")
    rq = lambda q, sl: TR + ((q % 5)*3 + sl)*4
    def rd(q):
        for sl in range(3): A(f"ds_read_b128 {vr(rq(q, sl), 4)}, v9 offset:{(sl*10+q)*1024}")
    for q in range(3): rd(q)
    A("s_waitcnt lgkmcnt(9)")
    for t in range(5):
        A(f"v_add_f32 v{TL+t}, v{TL+t}, v{TL+5+t}")
        A(f"v_add_f32 v{TL+10+t}, v{TL+10+t}, v{TL+15+t}")
    for t in range(5): A(f"v_add_f32 v{TL+t}, v{TL+t}, v{TL+10+t}")
    if OPT['fallback']:
        A(f"v_add_f32 v{TL+9}, v{TL}, v{TL+1}")
        A(f"v_add_f32 v{TL+9}, v{TL+9}, v{TL+2}")
        A(f"v_add_f32 v{TL+9}, v{TL+9}, v{TL+3}")
        A(f"v_add_f32 v{TL+9}, v{TL+9}, v{TL+4}")
        A(f"s_mov_b32 s30, {hex(f32(2.0**40))}")
        A(f"v_cmp_ngt_f32 s[{S_BAD}:{S_BAD+1}], s30, v{TL+9}")
    for t in range(5): A(f"v_rcp_f32 v{RC+2*t}, v{TL+t}")
    OF = 100
    side = wdma2(0) + wdma2(1)
    side.append([f"s_lshl_b32 s{S_T2}, s{S_B}, 5", f"buffer_load_dwordx4 {vr(VCHK,4)}, off, {sr(SRD_DBG,4)}, s{S_T2} sc1",
                 f"buffer_load_dwordx4 {vr(VCHK+4,4)}, off, {sr(SRD_DBG,4)}, s{S_T2} offset:16 sc1"])
    for q in range(10):
        if q + 3 < 10: rd(q + 3)
        if side:
            for x in side.pop(0): A(x)
        A(f"s_waitcnt lgkmcnt({min(9, 3*(9-q))})")
        if q == 9: A("s_barrier")
        o = TO + 4*q
        for sl in range(3):
            for h in range(2):
                A(f"v_pk_add_f32 {vr(o+2*h,2)}, {vr(o+2*h,2)}, {vr(rq(q, sl)+2*h,2)}")
        t = q >> 1
        for h in range(2): A(f"v_pk_mul_f32 {vr(o+2*h,2)}, {vr(o+2*h,2)}, {vr(RC+2*t,2)} op_sel_hi:[1,0]")
    if OPT['fallback']:
        A(f"s_cmp_eq_u64 s[{S_BAD}:{S_BAD+1}], 0")
        A("s_cbranch_scc1 L_sum_ok")
        A(f"s_cmp_eq_u32 s{S_FB}, 0")
        A("s_cbranch_scc1 L_fallback")
        A.label("L_sum_ok")
    for t in range(5):
        for i in range(4): A(f"v_cvt_pk_bf16_f32 v{OF+4*t+i}, v{TO + t*8 + 2*i}, v{TO + t*8 + 2*i + 1}")
    stamp(A, 6)
    A(f"s_lshl_b32 s30, s{S_R}, 2")
    A(f"s_add_u32 s30, s30, s{S_W}")
    A(f"s_mul_i32 s30, s30, 5120")
    A(f"s_add_u32 s30, s30, s{S_XB}")
    for t in range(5):
        if t == 4: A("s_add_u32 s30, s30, 4096")
        A(f"buffer_store_dwordx4 {vr(OF+4*t,4)}, v{V_L16}, {sr(SRD_O,4)}, s30 offen offset:{(t*1024) & 4095} sc1")
    A(f"v_add_u32 v8, s{S_W1K}, v{V_L16}")
    for t in range(5): A(f"ds_write_b128 v8, {vr(OF+4*t,4)} offset:{xarea2(0, t)}")
    for x in flat(wdma2(2) + wdma2(3) + wdma2(4)): A(x)
    A("s_waitcnt vmcnt(12) lgkmcnt(0)")
    A("s_barrier")
    A(f"s_cmp_eq_u32 s{S_W}, 0")
    A("s_cbranch_scc0 L_noflag1")
    A(f"s_lshl_b32 s{S_T0}, s{S_R}, 2")
    A(f"s_add_u32 s{S_T0}, s{S_T0}, s{S_F1}")
    A("v_mov_b32 v2, 1")
    one_lane(A, [f"buffer_store_dword v2, off, {sr(SRD_FL,4)}, s{S_T0} sc1"])
    A.label("L_noflag1")
    VF1 = 56 - 56 + 120
    A(f"buffer_load_dwordx4 {vr(VF1,4)}, off, {sr(SRD_FL,4)}, s{S_F1} sc1")
    stamp(A, 7)
    def wait_group(A):
        for i in range(1, 8): A(f"v_min_u32 v{VCHK}, v{VCHK}, v{VCHK+i}")
        A("s_nop 0")
        A(f"v_readfirstlane_b32 s{S_T0}, v{VCHK}")
        A("s_nop 3")
        A(f"s_cmp_ge_u32 s{S_T0}, 4")
        A(f"s_cselect_b32 s{S_INIT}, 1, 0")
        A(f"s_cmp_ge_u32 s{S_T0}, 4")
        A("s_cbranch_scc1 L_done_init")
        A(f"s_lshl_b32 s{S_T2}, s{S_B}, 5")
        poll(A, "init", SRD_DBG, S_T2, 8, 4, VCHK)
        A("s_waitcnt vmcnt(0)")
        A(f"s_cmp_eq_u32 s{S_INIT}, 1")
        A("s_cbranch_scc0 L_look_again")
        for i in range(1, 4): A(f"v_min_u32 v{VF1}, v{VF1}, v{VF1+i}")
        A("s_nop 0")
        A(f"v_readfirstlane_b32 s{S_T0}, v{VF1}")
        A("s_nop 3")
        A(f"s_cmp_ge_u32 s{S_T0}, 1")
        A("s_cbranch_scc1 L_done_f1")
        A.label("L_look_again")
        poll(A, "f1", SRD_FL, S_F1, 4, 1, VCHK)
        stamp(A, 8)
        for x in flat(xdma2(1) + xdma2(2) + xdma2(3)): A(x)
        A("s_waitcnt vmcnt(10)")
        A("s_barrier")
        stamp(A, 9)
    plan2 = {1: dict(pre=["s_barrier"], fill=wdma2(5)),
             3: dict(pre=["s_barrier"], fill=wdma2(6), late=wait_group),
             5: dict(pre=["s_barrier"], fill=wdma2(7)),
             7: dict(pre=["s_waitcnt vmcnt(9)", "s_barrier"]),
             11: dict(pre=["s_waitcnt vmcnt(4)", "s_barrier"]),
             13: dict(pre=["s_waitcnt vmcnt(0)", "s_barrier"])}
    gemm_core(A, ACC, FA, FB, xread2, wread2, plan2)
    stamp(A, 10)
    stamp_cyc(A, 59)
    A(f"""
    s_lshl_b32 s30, s{S_B}, 2
    s_add_u32 s30, s30, s{S_R}
    s_lshl_b32 s30, s30, 2
    s_mul_i32 s{S_XB}, s30, 40960
    s_mul_i32 s30, s{S_W}, 40960
    s_add_u32 s30, s30, s{S_XB}
    s_lshl_b32 s31, s{S_G}, 10
    s_add_u32 s30, s30, s31
    """)
    PB = 60
    for t in range(5):
        d0, d1 = ACC + 4*t, ACC + 4*(5 + t)
        A(f"v_cvt_pk_bf16_f32 v{PB+4*t}, v{d0}, v{d0+1}")
        A(f"v_cvt_pk_bf16_f32 v{PB+4*t+1}, v{d0+2}, v{d0+3}")
        A(f"v_cvt_pk_bf16_f32 v{PB+4*t+2}, v{d1}, v{d1+1}")
        A(f"v_cvt_pk_bf16_f32 v{PB+4*t+3}, v{d1+2}, v{d1+3}")
        A(f"s_add_u32 s31, s30, {t*8192}")
        A(f"buffer_store_dwordx4 {vr(PB+4*t,4)}, v{V_L16}, {sr(SRD_PP,4)}, s31 offen sc1")
    A("s_waitcnt vmcnt(0)")
    A("s_barrier")
    A(f"s_cmp_eq_u32 s{S_W}, 0")
    A("s_cbranch_scc0 L_noflag2")
    A(f"s_lshl_b32 s{S_T0}, s{S_G}, 2")
    A(f"s_add_u32 s{S_T0}, s{S_T0}, s{S_F2}")
    A("v_mov_b32 v2, 1")
    one_lane(A, [f"buffer_store_dword v2, off, {sr(SRD_FL,4)}, s{S_T0} sc1"])
    A.label("L_noflag2")
    stamp(A, 11)
    A(f"s_lshl_b32 s30, s{S_W}, 3")
    A(f"s_add_u32 s30, s30, s{S_G}")
    A("s_cmp_ge_u32 s30, 20")
    A("s_cbranch_scc1 L_fin")
    poll(A, "f2", SRD_FL, S_F2, 8, 1, VCHK)
    stamp(A, 12)
    A(f"s_mul_hi_u32 s31, s30, {(1 << 32)//5 + 1}")
    A(f"s_mul_i32 s{S_T0}, s31, 5")
    A(f"s_sub_u32 s{S_T1}, s30, s{S_T0}              ; t")
    A(f"s_mul_i32 s{S_T0}, s31, 40960")
    A(f"s_add_u32 s{S_T0}, s{S_T0}, s{S_XB}")
    A(f"s_lshl_b32 s{S_T2}, s{S_T1}, 13")
    A(f"s_add_u32 s{S_T0}, s{S_T0}, s{S_T2}")
    RB = 60
    for g in range(8):
        if g == 4: A(f"s_add_u32 s{S_T0}, s{S_T0}, 4096")
        A(f"buffer_load_dwordx4 {vr(RB + 4*g, 4)}, v{V_L16}, {sr(SRD_PP,4)}, s{S_T0} offen offset:{(g%4)*1024} sc1")
    A(f"""
    s_mul_i32 s{S_T0}, s{S_B}, 80
    s_lshl_b32 s{S_T1}, s{S_T1}, 4
    s_add_u32 s{S_T0}, s{S_T0}, s{S_T1}
    v_add_u32 v8, s{S_T0}, v3
    v_lshlrev_b32 v8, 10, v8
    s_lshl_b32 s{S_T0}, s{S_R}, 2
    s_add_u32 s{S_T0}, s{S_T0}, s31
    s_lshl_b32 s{S_T0}, s{S_T0}, 6
    v_lshl_add_u32 v8, v4, 4, v8
    v_add_u32 v8, s{S_T0}, v8
    """)
    SUM, UN = 100, 110
    for g in range(8):
        A(f"s_waitcnt vmcnt({7-g})")
        dst = SUM if g == 0 else UN
        for i in range(4):
            A(f"v_lshlrev_b32 v{dst+2*i}, 16, v{RB+4*g+i}")
            A(f"v_and_b32 v{dst+2*i+1}, 0xffff0000, v{RB+4*g+i}")
        if g:
            for i in range(4): A(f"v_pk_add_f32 {vr(SUM+2*i,2)}, {vr(SUM+2*i,2)}, {vr(UN+2*i,2)}")
    for i in range(4): A(f"v_cvt_pk_bf16_f32 v{RB+64+i}, v{SUM+2*i}, v{SUM+2*i+1}")
    A(f"buffer_store_dwordx4 {vr(RB+64,4)}, v8, {sr(SRD_OUT,4)}, 0 offen")
    A.label("L_fin")
    A("s_waitcnt vmcnt(0)")
    stamp(A, 13)
    stamp_cyc(A, 60)
    stamp_out(A)
    if OPT.get('amp'):
        i0, i1, M = OPT['amp']
        A(f"s_add_u32 s30, s{S_R15}, s{S_W}")
        A("s_cmp_eq_u32 s30, 0")
        A("s_cbranch_scc0 L_end")
        A(f"v_readlane_b32 s30, v39, {i0}")
        A(f"v_readlane_b32 s31, v39, {i1}")
        A("s_nop 3")
        A("s_sub_u32 s30, s31, s30")
        A("s_min_u32 s30, s30, 10000")
        A(f"s_mul_i32 s30, s30, {M}")
        A("s_memrealtime s[64:65]")
        A("s_waitcnt lgkmcnt(0)")
        A.label("L_amp")
        A("s_sleep 4")
        A("s_memrealtime s[66:67]")
        A("s_waitcnt lgkmcnt(0)")
        A("s_sub_u32 s31, s66, s64")
        A("s_cmp_lt_u32 s31, s30")
        A("s_cbranch_scc1 L_amp")
    A.label("L_end")
    A("s_endpgm")
    A.label("L_text_main_end")
    if OPT['fallback']: gen_fallback(A)
    A.label("L_text_end")
    A("s_endpgm")
    return A.text()

def gen_fallback(A):
    M, AL, T = V_NEG, V_NEG + 8, 148
    SF = 160
    A.label("L_fallback")
    A(f"s_mov_b32 s{S_FB}, 1")
    for i in range(160): A(f"v_accvgpr_write_b32 a{A_O+i}, 0")
    for i in range(10): A(f"v_mov_b32 v{V_L+i}, 0")
    for t in range(5): A(f"v_mov_b32 v{M+t}, 0xff7fffff")
    A(f"s_mov_b32 s{S_CNT}, 16")
    A(f"s_mov_b32 s{S_OFF}, s{S_W8}")
    A.label("L_fb_loop")
    A(f"s_add_u32 s{S_OFF2}, s{S_OFF}, 4096")
    for x in with_m0_gap(kv_dma('K', 0)) + with_m0_gap(kv_dma('V', 0)): A(x)
    A("s_waitcnt vmcnt(0)")
    for p in range(8): A(k_read(p, 0))
    for dt in range(8):
        for hf in range(2): A(v_read(dt, hf, 0))
    A("s_waitcnt lgkmcnt(0)")
    for t in range(5):
        for p in range(8):
            kt, s = p >> 2, p & 3
            d = SF + 8*t + 4*kt
            A(f"v_mfma_f32_16x16x32_bf16 {vr(d,4)}, {vr(V_KF+4*p,4)}, {ar(A_Q+(t*4+s)*4,4)}, {'0' if s == 0 else vr(d,4)}")
    A("s_nop 7")
    for t in range(5):
        d = SF + 8*t
        A(f"v_max3_f32 v{T+t}, v{d}, v{d+1}, v{d+2}")
        A(f"v_max3_f32 v{T+t}, v{T+t}, v{d+3}, v{d+4}")
        A(f"v_max3_f32 v{T+t}, v{T+t}, v{d+5}, v{d+6}")
        A(f"v_max3_f32 v{T+t}, v{T+t}, v{d+7}, v{M+t}")
    A("s_nop 1")
    for swap in ("v_permlane32_swap_b32", "v_permlane16_swap_b32"):
        for t in range(5): A(f"v_mov_b32 v{T+5+t}, v{T+t}")
        for t in range(5): A(f"{swap} v{T+t}, v{T+5+t}")
        for t in range(5): A(f"v_max_f32 v{T+t}, v{T+t}, v{T+5+t}")
    for t in range(5): A(f"v_sub_f32 v{AL+t}, v{M+t}, v{T+t}")
    for t in range(5): A(f"v_exp_f32 v{AL+t}, v{AL+t}")
    for t in range(5): A(f"v_mov_b32 v{M+t}, v{T+t}")
    for t in range(5):
        for i in range(8): A(f"v_sub_f32 v{SF+8*t+i}, v{SF+8*t+i}, v{M+t}")
    for t in range(5):
        for i in range(8): A(f"v_exp_f32 v{SF+8*t+i}, v{SF+8*t+i}")
    A("s_nop 0")
    for t in range(5):
        A(f"v_mul_f32 v{V_L+2*t}, v{V_L+2*t}, v{AL+t}")
        for i in range(8): A(f"v_add_f32 v{V_L+2*t}, v{V_L+2*t}, v{SF+8*t+i}")
    for t in range(5):
        for i in range(32):
            A(f"v_accvgpr_read_b32 v{T+10}, a{A_O+t*32+i}")
            A(f"v_mul_f32 v{T+10}, v{T+10}, v{AL+t}")
            A(f"v_accvgpr_write_b32 a{A_O+t*32+i}, v{T+10}")
    PF = 200
    for t in range(5):
        for i in range(4): A(f"v_cvt_pk_bf16_f32 v{PF+4*t+i}, v{SF+8*t+2*i}, v{SF+8*t+2*i+1}")
    A("s_nop 1")
    for t in range(5):
        for dt in range(8):
            o = A_O + (t*8 + dt)*4
            A(f"v_mfma_f32_16x16x32_bf16 {ar(o,4)}, {vr(V_VF+4*dt,4)}, {vr(PF+4*t,4)}, {ar(o,4)}")
    A("s_nop 7")
    A(f"s_add_u32 s{S_OFF}, s{S_OFF}, 0x8000")
    A(f"s_sub_u32 s{S_CNT}, s{S_CNT}, 1")
    A(f"s_cmp_lg_u32 s{S_CNT}, 0")
    A("s_cbranch_scc1 L_fb_loop")
    XL = 0
    A("s_barrier")
    A(f"v_lshlrev_b32 v8, 2, v1")
    A(f"s_mul_i32 s30, s{S_W}, 1280")
    A(f"s_add_u32 s30, s30, {XL}")
    A(f"v_add_u32 v9, s30, v8")
    for t in range(5): A(f"ds_write_b32 v9, v{M+t} offset:{256*t}")
    A("s_waitcnt lgkmcnt(0)")
    A("s_barrier")
    for w in range(4):
        for t in range(5): A(f"ds_read_b32 v{SF + w*5 + t}, v8 offset:{XL + w*1280 + t*256}")
    A("s_waitcnt lgkmcnt(0)")
    for t in range(5):
        A(f"v_max3_f32 v{T+t}, v{SF+t}, v{SF+5+t}, v{SF+10+t}")
        A(f"v_max_f32 v{T+t}, v{T+t}, v{SF+15+t}")
        A(f"v_sub_f32 v{AL+t}, v{M+t}, v{T+t}")
    for t in range(5): A(f"v_exp_f32 v{AL+t}, v{AL+t}")
    A("s_nop 0")
    for t in range(5): A(f"v_mul_f32 v{V_L+2*t}, v{V_L+2*t}, v{AL+t}")
    for swap in ("v_permlane32_swap_b32", "v_permlane16_swap_b32"):
        for t in range(5): A(f"v_mov_b32 v{V_L+2*t+1}, v{V_L+2*t}")
        for t in range(5): A(f"{swap} v{V_L+2*t}, v{V_L+2*t+1}")
        for t in range(5): A(f"v_add_f32 v{V_L+2*t}, v{V_L+2*t}, v{V_L+2*t+1}")
    for t in range(5):
        for i in range(32):
            A(f"v_accvgpr_read_b32 v{T+10}, a{A_O+t*32+i}")
            A(f"v_mul_f32 v{T+10}, v{T+10}, v{AL+t}")
            A(f"v_accvgpr_write_b32 a{A_O+t*32+i}, v{T+10}")
    for t in range(5): A(f"v_mov_b32 v{V_LM+4*t}, v{V_L+2*t}")
    A("s_waitcnt vmcnt(0)")
    A("s_branch L_combine")

def build():
    s = HEADER + "; @launch grid=(256,1,1) block=(256,1,1) lds=163840\n"
    s += '.amdgcn_target "amdgcn-amd-amdhsa--gfx950"\n.text\n' + kernel_start(NAME) + gen()
    s += '.section .rodata,"a"\n.p2align 6\n' + kernel_desc(NAME, 512, 256, 102)
    return s

if __name__ == "__main__":
    out = sys.argv[1]
    for kv in sys.argv[2:]:
        k_, v_ = kv.split("=")
        OPT[k_] = eval(v_)
    open(out, "w").write(build())
```

```python
import sys, struct, math
from lib import *

def f32(x): return struct.unpack("<I", struct.pack("<f", x))[0]
C_SCALE = math.log2(math.e) / math.sqrt(128.0)
NAME = "standalone__gqa_block_cached__near_ridge_kernel"

WS_O = 0
WS_P = 8 << 20
WS_F = 24 << 20
WS_ST = 64 << 20
OPT = dict(standin=True, fallback=True, stamps=False, nodma=False, nods=False, novalu=False, nowait=False, wopf=True, order='X', kvpol='', codepf=True, qvar=2)

V_KA, V_VA, V_KD, V_VD, V_L, V_L16, V_NEG, V_S, V_P, V_KF, V_VF = 10, 14, 22, 26, 28, 38, 40, 60, 76, 84, 116
A_O, A_Q = 0, 160
S_G, S_B, S_R, S_W, S_H, S_RW = 24, 25, 26, 27, 28, 29
S_T, S_R15, S_W8, S_END, S_OFF, S_OFF2, S_CNT, S_W1K, S_XOFF, S_WK, S_ROT, S_FB = 32, 33, 34, 35, 36, 37, 38, 39, 40, 41, 42, 43
S_T0, S_T1, S_T2, S_SPIN = 60, 61, 62, 63
S_TAB = 2
SRD_X, SRD_K, SRD_V, SRD_W, SRD_O, SRD_WO, SRD_PP, SRD_FL, SRD_DBG, SRD_OUT = 4, 8, 12, 16, 20, 44, 48, 52, 56, 84
S_POFF, S_F1, S_F2, S_XB, S_WOB, S_BAD, S_INIT = 80, 81, 82, 83, 88, 90, 89
K0, K1s, V0, V1 = 0, 8192, 16384, 24576
LE = 131072
SPIN_MAX = 20000

def stamp(A, i):
    if not OPT['stamps']: return
    A("s_memrealtime s[98:99]")
    A("s_waitcnt lgkmcnt(0)")
    A(f"v_writelane_b32 v39, s98, {i}")
def stamp_cyc(A, i):
    if not OPT['stamps']: return
    A("s_memtime s[98:99]")
    A("s_waitcnt lgkmcnt(0)")
    A(f"v_writelane_b32 v39, s98, {i}")
def stamp_out(A):
    if not OPT['stamps']: return
    A("s_load_dwordx2 s[92:93], s[0:1], 56")
    A("s_waitcnt lgkmcnt(0)")
    A(f"s_add_u32 s92, s92, {WS_ST}")
    A("s_addc_u32 s93, s93, 0")
    A("s_mov_b32 s94, 0x100000")
    A("s_mov_b32 s95, 0x00020000")
    A(f"s_lshl_b32 s96, s{S_R15}, 2")
    A(f"s_add_u32 s96, s96, s{S_W}")
    A("s_lshl_b32 s96, s96, 8")
    A("v_lshlrev_b32 v2, 2, v1")
    A("buffer_store_dword v39, v2, s[92:95], s96 offen")
    A("s_waitcnt vmcnt(0)")

def gemm_core(A, acc, FA, FB, xread, wread, plan):
    def reads(ks):
        buf = ks & 1
        w = [wread(ks, jt, hf, FA[buf] + 4 * jt + 2 * hf) for jt in range(2) for hf in range(2)]
        x = [xread(ks, t, FB[buf] + 4 * t) for t in range(5)]
        return [w[0], w[1], x[0], w[2], w[3], x[1], x[2], x[3], x[4]]
    for r in reads(0): A(r)
    for ks in range(16):
        buf = ks & 1
        p = plan.get(ks, {})
        fine = p.get('fine')
        if fine is not None: stamp_cyc(A, fine)
        A("s_waitcnt lgkmcnt(0)")
        for x in p.get('pre', []):
            A(x)
            if fine is not None and x.startswith("s_waitcnt vmcnt"): stamp_cyc(A, fine + 1)
            if fine is not None and x == "s_barrier": stamp_cyc(A, fine + 2)
        if p.get('stamp') is not None: stamp(A, p['stamp'])
        extra = list(p.get('fill', []))
        late = p.get('late')
        fill = reads(ks + 1) if (ks < 15 and late is None) else []
        m = 0
        groups = extra; extra = []
        for t in range(5):
            for jt in range(2):
                d = acc + (jt * 5 + t) * 4
                c = "0" if ks == 0 else vr(d, 4)
                A(f"v_mfma_f32_16x16x32_bf16 {vr(d,4)}, {vr(FA[buf]+4*jt,4)}, {vr(FB[buf]+4*t,4)}, {c}")
                n = 0
                while fill and n < 2: A(fill.pop(0)); n += 1
                bg = p.get('burst_gap')
                if bg is not None:
                    if m == bg:
                        for g_ in groups:
                            for x in g_: A(x)
                        groups = []
                elif not fill and groups and m >= 3:
                    k = (len(groups) + (9 - m)) // (10 - m)
                    for _ in range(min(k, len(groups))):
                        for x in groups.pop(0): A(x)
                m += 1
        for g_ in groups:
            for x in g_: A(x)
        for e in extra: A(e)
        if fine is not None: stamp_cyc(A, fine + 3)
        if late is not None:
            late(A) if callable(late) else [A(x) for x in late]
            if ks < 15:
                for r in reads(ks + 1): A(r)

def segments(scheme, phi):
    if scheme == 'rot4': return None
    return {'X': [[1,4,4,4,3], [2,4,4,4,2], [3,4,4,4,1], [4,4,4,4]],
            'Y': [[2,4,4,4,2], [2,1,4,4,4,1], [2,1,1,4,4,4], [2,1,1,1,4,4,3]],
            'Z': [[1,4,4,4,3], [1,1,4,4,4,2], [1,1,1,4,4,4,1], [1,1,1,1,4,4,4]],
            'Y2': [[2,4,4,4,2], [2,2,4,4,4], [2,3,4,4,3], [2,4,4,4,2]],
            'L': [[1]*16]*4,
            'R2': [[2]*8, [1] + [2]*7 + [1], [2]*8, [1] + [2]*7 + [1]],
            'R4': [[4]*4]*4,
            'U': [[1,4,4,4,3]]*4,
            'X2': [[1,4,4,4,3], [1,1,4,4,4,2], [3,4,4,4,1], [4,4,4,4]],
            'X3': [[1,4,4,4,3], [2,4,4,4,2], [1,2,4,4,4,1], [4,4,4,4]],
            'X4': [[2,4,4,4,2], [3,4,4,4,1], [4,4,4,4], [1,4,4,4,3]],
            'R3': [[1,3,3,3,3,3], [2,3,3,3,3,2], [3,3,3,3,3,1], [1,3,3,3,3,3]],
            'R8': [[4,4,4,4], [2,4,4,4,2], [4,4,4,4], [2,4,4,4,2]]}[scheme][phi]
def tile_order(scheme, phi, r):
    seg = segments(scheme, phi)
    if seg is None:
        return [((i + phi) & 12) | ((i + phi + r) & 3) for i in range(16)]
    out = []; s0 = 0
    for n in seg:
        out += [s0 + ((u + r) % n) for u in range(n)]; s0 += n
    assert sorted(out) == list(range(16)), (scheme, phi, r, out)
    return out
def table_setup(A):
    A(f"s_and_b32 s{S_T0}, s{S_B}, 3")
    A(f"s_lshl_b32 s{S_T0}, s{S_T0}, 2")
    A(f"s_add_u32 s{S_T0}, s{S_T0}, s{S_R}")
    for idx in range(16):
        o = tile_order(OPT['order'], idx >> 2, idx & 3)
        v = sum(t << (4 * i) for i, t in enumerate(o))
        if idx == 0:
            A(f"s_mov_b32 s{S_TAB}, {hex(v & 0xffffffff)}"); A(f"s_mov_b32 s{S_TAB+1}, {hex(v >> 32)}")
        else:
            A(f"s_cmp_eq_u32 s{S_T0}, {idx}")
            A(f"s_cselect_b32 s{S_TAB}, {hex(v & 0xffffffff)}, s{S_TAB}")
            A(f"s_cselect_b32 s{S_TAB+1}, {hex(v >> 32)}, s{S_TAB+1}")
    A(f"s_mov_b32 s{S_T}, 0")
def off_calc():
    return [f"s_and_b32 s{S_T0}, s{S_TAB}, 15",
            f"s_lshl_b32 s{S_T0}, s{S_T0}, 15",
            f"s_or_b32 s{S_OFF}, s{S_T0}, s{S_W8}",
            f"s_lshr_b64 s[{S_TAB}:{S_TAB+1}], s[{S_TAB}:{S_TAB+1}], 4",
            f"s_cmp_ge_u32 s{S_T}, 16",
            f"s_cselect_b32 s{S_OFF}, 0x80000, s{S_OFF}",
            f"s_add_u32 s{S_OFF2}, s{S_OFF}, 4096",
            f"s_add_u32 s{S_T}, s{S_T}, 1"]
def kv_dma(which, slot):
    srd = SRD_K if which == 'K' else SRD_V
    base = (K0, K1s)[slot] if which == 'K' else (V0, V1)[slot]
    l = []
    for half in range(2):
        l.append(f"s_add_u32 m0, s{S_RW}, {base + 4096 * half}")
        so = S_OFF if half == 0 else S_OFF2
        for i in range(4):
            vo = V_KD + i if which == 'K' else V_VD + (i & 1)
            l.append(f"buffer_load_dwordx4 v{vo}, {sr(srd,4)}, s{so} offen offset:{1024*i} {OPT['kvpol']} lds".replace("  ", " "))
    return l
def with_m0_gap(l):
    out = []
    for x in l:
        out.append(x)
        if x.startswith("s_add_u32 m0"): out.append("s_nop 0")
    return out
def kv_groups(which, slot):
    d = kv_dma(which, slot)
    return [[d[0], "s_nop 0", d[1]], [d[2]], [d[3]], [d[4]], [d[5], "s_nop 0", d[6]], [d[7]], [d[8]], [d[9]]]
def spread(A, main, groups, start=0):
    n = len(main); g = list(groups); k = len(g)
    pos = [start + (n - start) * (i + 1) // (k + 1) for i in range(k)]
    for i, x in enumerate(main):
        while pos and pos[0] <= i and not x.startswith(("s_addc", "s_cselect", "s_cbranch")):
            pos.pop(0)
            for y in g.pop(0): A(y)
        A(x)
    for gg in g:
        for y in gg: A(y)
def k_read(p, slot):
    kt, s = p >> 2, p & 3
    return f"ds_read_b128 {vr(V_KF + 4*p, 4)}, v{V_KA + s} offset:{(K0, K1s)[slot] + 4096*kt}"
def v_read(dt, hf, slot):
    return f"ds_read_b64_tr_b16 {vr(V_VF + 4*dt + 2*hf, 2)}, v{V_VA + dt} offset:{(V0, V1)[slot] + 4096*hf}"
def qk_mfma(p, tq, sbuf):
    kt, s = p >> 2, p & 3
    d = V_S + 8 * sbuf + 4 * kt
    c = vr(V_NEG + 4 * tq, 4) if s == 0 else vr(d, 4)
    return f"v_mfma_f32_16x16x32_bf16 {vr(d,4)}, {vr(V_KF + 4*p, 4)}, {ar(A_Q + (tq*4 + s)*4, 4)}, {c}"
def pv_mfma(dt, tp, pbuf):
    o = A_O + (tp * 8 + dt) * 4
    return f"v_mfma_f32_16x16x32_bf16 {ar(o,4)}, {vr(V_VF + 4*dt, 4)}, {vr(V_P + 4*pbuf, 4)}, {ar(o,4)}"
V_LM, V_ONE = 148, 168
def l_mfma(tp, pbuf):
    d = V_LM + 4 * tp
    return f"v_mfma_f32_16x16x32_bf16 {vr(d,4)}, {vr(V_ONE,4)}, {vr(V_P + 4*pbuf, 4)}, {vr(d,4)}"
def sm_valu(ts, buf):
    S = V_S + 8 * buf; P = V_P + 4 * buf
    g = [[] for _ in range(17)]
    for q in range(4):
        e0, e1 = S + 2 * q, S + 2 * q + 1
        g[4*q + 0].append(f"v_exp_f32 v{e0}, v{e0}")
        g[4*q + 1].append(f"v_exp_f32 v{e1}, v{e1}")
        g[4*q + 2].append(f"v_cvt_pk_bf16_f32 v{P + q}, v{e0}, v{e1}")
    return g

def stage_plan(km, par):
    it = []
    kd, vd = kv_dma('K', par), kv_dma('V', par)
    kl = kd[1:5] + kd[6:10]; vl = vd[1:5] + vd[6:10]
    if km == 0:
        for i, x in enumerate(off_calc()): it.append((i // 2, None, x))
        it.append((5, None, "s_waitcnt lgkmcnt(0)"))
        it.append((6, None, kd[0]))
        it += [(7, 'K', kl[0]), (11, 'K', kl[1]), (15, 'K', kl[2])]
    if km == 1:
        it += [(3, 'K', kl[3]), (4, None, kd[5]), (7, 'K', kl[4])]
        it.append((9, 'waitV', None))
        rd = [(10, 0, 0), (11, 0, 1), (11, 1, 0), (14, 1, 1), (15, 2, 0), (15, 2, 1), (16, 3, 0), (16, 3, 1)]
        for g_, dt, hf in rd: it.append((g_, None, v_read(dt, hf, par)))
        it.append((12, 'K', kl[5]))
    if km == 2:
        rd = [(2, 4, 0), (2, 4, 1), (3, 5, 0), (3, 5, 1), (6, 6, 0), (6, 6, 1), (7, 7, 0), (7, 7, 1)]
        for g_, dt, hf in rd: it.append((g_, None, v_read(dt, hf, par)))
        it += [(7, None, "s_waitcnt lgkmcnt(8)"), (11, 'K', kl[6]), (11, None, "s_waitcnt lgkmcnt(2)"), (14, None, "s_waitcnt lgkmcnt(0)"), (16, 'K', kl[7])]
    if km == 3:
        it += [(0, None, vd[0]), (3, 'V', vl[0]), (7, 'V', vl[1]), (11, 'V', vl[2]), (15, 'V', vl[3]), (16, 'waitK', None)]
    if km == 4:
        rd = [(2, 0), (3, 1), (3, 2), (6, 3), (7, 4), (7, 5), (10, 6), (11, 7)]
        for g_, p in rd: it.append((g_, None, k_read(p, 1 - par)))
        it += [(0, None, vd[5]), (4, 'V', vl[4]), (8, 'V', vl[5]), (12, 'V', vl[6]), (15, 'V', vl[7]), (16, None, "s_waitcnt lgkmcnt(2)")]
    return it
def vm_counts():
    seq = []
    waits = {}
    for j in range(3):
        for k in range(10):
            par = 0 if k < 5 else 1
            n = 2 * j + 2 + par
            for g_, tag, x in sorted(stage_plan(k % 5, par), key=lambda e: e[0]):
                if tag in ('K', 'V'): seq.append((tag, n))
                if tag == 'waitV' and j == 2:
                    need = ('V', 2 * j + par)
                    waits[('V', par)] = len(seq) - 1 - max(i for i, u in enumerate(seq) if u == need)
                if tag == 'waitK' and j == 2:
                    need = ('K', 2 * j + 1 + par)
                    waits[('K', par)] = len(seq) - 1 - max(i for i, u in enumerate(seq) if u == need)
    return waits

def main_stage(A, k):
    tq, ts, tp = k % 5, (k + 4) % 5, (k + 3) % 5
    nv = [[] for _ in range(17)]
    par = 0 if k < 5 else 1
    km = k % 5
    vm = vm_counts()
    for g_, tag, x in stage_plan(km, par):
        if tag == 'waitV': x = f"s_waitcnt vmcnt({vm[('V', par)]})"
        if tag == 'waitK': x = f"s_waitcnt vmcnt({vm[('K', par)]})"
        if tag in ('waitV', 'waitK') and OPT.get('vmstall'):
            acc = 92 if tag == 'waitV' else 93
            nv[g_] += ["s_memtime s[94:95]", "s_waitcnt lgkmcnt(0)", x, "s_memtime s[96:97]", "s_waitcnt lgkmcnt(0)", "s_sub_u32 s96, s96, s94", f"s_add_u32 s{acc}, s{acc}, s96"]
            continue
        nv[g_].append(x)
    if k == 0 and OPT['wopf']:
        nv[16] += [f"s_cmp_eq_u32 s{S_CNT}, 2", "s_cbranch_scc0 L_nopf", f"s_lshl_b32 s{S_T0}, s{S_W}, 12", f"s_add_u32 m0, s{S_T0}, {LE}", "s_nop 0"]
        nv[16] += [f"buffer_load_dwordx4 v{V_L16}, {sr(SRD_WO,4)}, s{S_POFF} offen offset:{1024*i} lds" for i in range(4)]
        nv[16] += [f"s_add_u32 m0, s{S_RW}, {K0}", "L_nopf:"]
    va = sm_valu(ts, (k + 1) & 1)
    for p in range(17):
        A(qk_mfma(p, tq, k & 1) if p < 8 else (pv_mfma(p - 8, tp, k & 1) if p < 16 else l_mfma(tp, k & 1)))
        for x in nv[p]:
            if x.endswith(":"): A.raw(x); continue
            if OPT['nodma'] and x.startswith("buffer_load"): continue
            if OPT['nods'] and x.startswith("ds_read"): continue
            if OPT['nowait'] and x.startswith("s_waitcnt"): continue
            A(x)
        if OPT['novalu']: continue
        for x in va[p]: A(x)

def poll(A, tag, srd, soff, nwords, want, vtmp):
    A(f"s_mov_b32 s{S_SPIN}, {SPIN_MAX}")
    A.label(f"L_poll_{tag}")
    for i in range(nwords // 4):
        A(f"buffer_load_dwordx4 {vr(vtmp + 4*i, 4)}, off, {sr(srd,4)}, s{soff} offset:{16*i} sc1")
    A("s_waitcnt vmcnt(0)")
    for i in range(1, nwords): A(f"v_min_u32 v{vtmp}, v{vtmp}, v{vtmp+i}")
    A("s_nop 0")
    A(f"v_readfirstlane_b32 s{S_T0}, v{vtmp}")
    A("s_nop 3")
    A(f"s_cmp_ge_u32 s{S_T0}, {want}")
    A(f"s_cbranch_scc1 L_done_{tag}")
    A(f"s_sub_u32 s{S_SPIN}, s{S_SPIN}, 1")
    A(f"s_cmp_eq_u32 s{S_SPIN}, 0")
    A(f"s_cbranch_scc1 L_done_{tag}")
    A("s_sleep 1")
    A(f"s_branch L_poll_{tag}")
    A.label(f"L_done_{tag}")

def one_lane(A, instrs):
    A("s_mov_b64 exec, 1")
    for x in instrs: A(x)
    A("s_mov_b64 exec, -1")

def gen():
    A = Asm()
    A("s_cmp_ge_u32 s2, 256")
    A("s_cbranch_scc1 L_end")
    stamp(A, 0)
    stamp_cyc(A, 55)
    A("s_load_dwordx16 s[64:79], s[0:1], 0")
    if OPT['codepf']:
        A("s_getpc_b64 s[30:31]")
        A.label("L_pc")
        A("s_lshr_b32 s60, s2, 3")
        A("v_lshrrev_b32 v2, 6, v0")
        A("v_and_b32 v1, 63, v0")
        A("v_lshl_add_u32 v2, s60, 2, v2")
        A("v_lshl_add_u32 v2, v2, 2, v1")
        A("v_lshlrev_b32 v2, 7, v2")
        A("v_mov_b32 v5, s31")
        A("v_add_co_u32 v4, vcc, s30, v2")
        A("s_nop 1")
        A("v_addc_co_u32 v5, vcc, 0, v5, vcc")
        A("v_cmp_gt_u32 vcc, 4, v1")
        A("s_mov_b32 s60, L_text_main_end-L_pc")
        A("v_cmp_gt_u32 s[62:63], s60, v2")
        A("s_nop 1")
        A("s_and_b64 vcc, vcc, s[62:63]")
        A("s_and_saveexec_b64 s[62:63], vcc")
        A("s_cbranch_execz L_nocpf")
        A("global_load_dword v243, v[4:5], off")
        A.label("L_nocpf")
        A("s_mov_b64 exec, s[62:63]")
    A(f"""
    v_lshrrev_b32 v2, 6, v0
    v_and_b32 v1, 63, v0
    s_and_b32 s{S_G}, s2, 7
    s_lshr_b32 s30, s2, 3
    v_readfirstlane_b32 s{S_W}, v2
    s_lshr_b32 s{S_B}, s30, 2
    s_and_b32 s{S_R}, s30, 3
    s_lshl_b32 s{S_H}, s{S_G}, 2
    s_add_u32 s{S_H}, s{S_H}, s{S_R}
    v_and_b32 v3, 15, v1
    v_lshrrev_b32 v4, 4, v1
    v_bfe_u32 v5, v1, 2, 2
    v_and_b32 v6, 3, v1
    s_lshl_b32 s{S_W1K}, s{S_W}, 10
    s_add_u32 s{S_ROT}, s{S_B}, s{S_R}
    s_and_b32 s{S_ROT}, s{S_ROT}, 3
    """)
    ACC, FA, FB, VX, VAW = 148, (188, 196), (204, 224), 244, 252
    VXD, VWD = 84, 92
    A(f"""
    s_lshl_b32 s30, s{S_W}, 2
    v_add_u32 v8, s30, v4                   ; 4w+gq
    v_xor_b32 v9, v3, v8
    v_lshlrev_b32 v9, 4, v9
    v_lshl_add_u32 v{VXD}, v8, 10, v9
    v_lshlrev_b32 v9, 2, v4
    v_xor_b32 v9, v3, v9
    v_lshlrev_b32 v9, 4, v9
    v_lshl_add_u32 v{VWD}, v8, 13, v9
    s_mul_i32 s31, s{S_B}, 81920
    """)
    for t in range(1, 5): A(f"v_add_u32 v{VXD+t}, {t*16384}, v{VXD}")
    for i in range(1, 4): A(f"v_add_u32 v{VWD+i}, {i*16*8192}, v{VWD}")
    WT = [100, 101, 97, 96, 95, 94, 93, 92]
    XT = [88, 89, 90, 91]
    A(f"s_lshl_b32 s{S_T1}, s{S_H}, 8")
    A(f"s_lshl_b32 s{S_T2}, s{S_ROT}, 1")
    for u in range(8):
        A(f"s_add_u32 s{S_T0}, s{S_T2}, {u}")
        A(f"s_and_b32 s{S_T0}, s{S_T0}, 7")
        A(f"s_lshl_b32 s{S_T0}, s{S_T0}, 19")
        A(f"s_add_u32 s{WT[u]}, s{S_T0}, s{S_T1}")
    for a_ in range(4):
        A(f"s_add_u32 s{S_T0}, s{S_ROT}, {a_}")
        A(f"s_and_b32 s{S_T0}, s{S_T0}, 3")
        A(f"s_lshl_b32 s{S_T0}, s{S_T0}, 8")
        A(f"s_add_u32 s{XT[a_]}, s{S_T0}, s31")
    A("s_waitcnt lgkmcnt(0)")
    if OPT.get('qstamps'): stamp(A, 14)
    A(f"""
    s_mov_b32 s{SRD_X}, s64
    s_mov_b32 s{SRD_X+1}, s65
    s_mov_b32 s{SRD_X+2}, {640*1024}
    s_mov_b32 s{SRD_X+3}, 0x00020000
    s_mov_b32 s{SRD_W}, s70
    s_mov_b32 s{SRD_W+1}, s71
    s_mov_b32 s{SRD_W+2}, {512*8192}
    s_mov_b32 s{SRD_W+3}, 0x00020000
    """)
    pool1 = [w*32768 + V0 + h*4096 for w in range(4) for h in range(2)] + [K1s, K1s + 4096]
    pool2 = [w*32768 + K1s + h*4096 for w in (1, 2, 3) for h in range(2)] + [w*32768 + V1 + h*4096 for w in (0, 1) for h in range(2)]
    xarea = lambda a, t: (pool1 if a < 2 else pool2)[(a & 1) * 5 + t]
    wblk = lambda u, e: [[2*32768 + V1, 3*32768 + V1], [LE, LE + 8192], [LE + 16384, LE + 24576], [K0, 32768 + K0], [2*32768 + K0, 3*32768 + K0]][u % 5][e]
    def xdma(a):
        return [[f"s_add_u32 m0, s{S_W1K}, {xarea(a, t)}", "s_nop 0", f"buffer_load_dwordx4 v{VXD+t}, {sr(SRD_X,4)}, s{XT[a]} offen lds"] for t in range(5)]
    def wdma(u):
        return [[f"s_add_u32 m0, s{S_W1K}, {wblk(u, e) + 4096*hh}", "s_nop 0", f"buffer_load_dwordx4 v{VWD+2*e+hh}, {sr(SRD_W,4)}, s{WT[u]} offen lds"]
                for e in range(2) for hh in range(2)]
    def xread(ks, t, dst):
        p = xarea(ks >> 2, t)
        return f"ds_read_b128 {vr(dst,4)}, v{VX + 4*(p >> 16) + (ks & 3)} offset:{p & 0xffff}"
    def wread(ks, jt, hf, dst):
        p = wblk(ks >> 1, ks & 1)
        return f"ds_read_b64_tr_b16 {vr(dst,2)}, v{VAW + (p >> 16)} offset:{(p & 0xffff) + 1024*hf + 8*jt}"
    for g_ in wdma(0) + xdma(0):
        for x in g_: A(x)
    if OPT.get('qstamps'): stamp(A, 15)
    B = Asm()
    B(f"""
    s_lshl_b32 s{S_RW}, s{S_W}, 15
    s_lshl_b32 s{S_W8}, s{S_W}, 13
    s_mov_b32 s{S_FB}, 0
    s_lshl_b32 s30, s{S_B}, 3
    s_add_u32 s30, s30, s{S_G}               ; b*8+g
    s_lshl_b32 s{S_F1}, s30, 7
    s_lshl_b32 s30, s30, 19
    s_add_u32 s{SRD_K}, s66, s30
    s_addc_u32 s{SRD_K+1}, s67, 0
    s_mov_b32 s{SRD_K+2}, 0x80000
    s_mov_b32 s{SRD_K+3}, 0x00020000
    s_add_u32 s{SRD_V}, s68, s30
    s_addc_u32 s{SRD_V+1}, s69, 0
    s_mov_b32 s{SRD_V+2}, 0x80000
    s_mov_b32 s{SRD_V+3}, 0x00020000
    s_add_u32 s{SRD_O}, s78, {WS_O}
    s_addc_u32 s{SRD_O+1}, s79, 0
    s_mov_b32 s{SRD_O+2}, {5 << 20}
    s_mov_b32 s{SRD_O+3}, 0x00020000
    s_add_u32 s{SRD_PP}, s78, {WS_P}
    s_addc_u32 s{SRD_PP+1}, s79, 0
    s_mov_b32 s{SRD_PP+2}, {5 << 20}
    s_mov_b32 s{SRD_PP+3}, 0x00020000
    s_add_u32 s{SRD_FL}, s78, {WS_F}
    s_addc_u32 s{SRD_FL+1}, s79, 0
    s_mov_b32 s{SRD_FL+2}, 16384
    s_mov_b32 s{SRD_FL+3}, 0x00020000
    s_mov_b32 s{SRD_WO}, s72
    s_mov_b32 s{SRD_WO+1}, s73
    s_mov_b32 s{SRD_WO+2}, {4096*1024}
    s_mov_b32 s{SRD_WO+3}, 0x00020000
    s_mov_b32 s{SRD_DBG}, s76
    s_mov_b32 s{SRD_DBG+1}, s77
    s_mov_b32 s{SRD_DBG+2}, 256
    s_mov_b32 s{SRD_DBG+3}, 0x00020000
    s_mov_b32 s{SRD_OUT}, s74
    s_mov_b32 s{SRD_OUT+1}, s75
    s_mov_b32 s{SRD_OUT+2}, {640*1024}
    s_mov_b32 s{SRD_OUT+3}, 0x00020000
    s_lshl_b32 s30, s{S_B}, 2
    s_add_u32 s30, s30, s{S_R}               ; b*4+r
    s_lshl_b32 s{S_F2}, s30, 7
    s_add_u32 s{S_F2}, s{S_F2}, 8192
    s_lshl_b32 s{S_POFF}, s{S_G}, 19
    s_lshl_b32 s30, s30, 14
    s_add_u32 s{S_POFF}, s{S_POFF}, s30
    s_lshl_b32 s30, s{S_W}, 12
    s_add_u32 s{S_POFF}, s{S_POFF}, s30
    v_lshlrev_b32 v{V_L16}, 4, v1
    v_xor_b32 v7, v4, v3
    v_lshlrev_b32 v7, 4, v7
    v_lshl_add_u32 v7, v3, 8, v7            ; n*256 + (gq^n)*16
    """)
    B(f"s_mov_b32 s{S_R15}, s2")
    table_setup(B)
    for s_ in range(4):
        B(f"v_xor_b32 v{VX+s_}, {64*s_}, v7")
        B(f"v_add_u32 v{VX+4+s_}, 0x10000, v{VX+s_}")
        B(f"v_add_u32 v{V_KA+s_}, s{S_RW}, v{VX+s_}")
    B(f"""
    v_lshl_add_u32 v8, v4, 3, v5
    s_lshl_b32 s30, s{S_W}, 2
    v_add_u32 v9, s30, v6
    v_lshlrev_b32 v2, 2, v5
    v_xor_b32 v9, v9, v2
    v_lshlrev_b32 v9, 4, v9
    v_lshl_add_u32 v9, v8, 8, v9
    v_mov_b32 v{VAW}, v9
    v_add_u32 v{VAW+1}, 0x10000, v9
    v_add_u32 v{VAW+2}, 0x20000, v9
    v_lshl_add_u32 v8, v4, 2, v5
    v_and_b32 v9, 7, v8
    v_lshlrev_b32 v9, 5, v9
    v_lshl_add_u32 v9, v8, 8, v9
    v_lshl_add_u32 v9, v6, 3, v9
    """)
    for dt in range(8):
        B(f"v_xor_b32 v{V_VA+dt}, {32*dt}, v9")
        B(f"v_add_u32 v{V_VA+dt}, s{S_RW}, v{V_VA+dt}")
    B(f"""
    v_xor_b32 v9, v3, v4
    v_lshlrev_b32 v9, 4, v9
    v_lshl_add_u32 v9, v4, 8, v9
    """)
    for i in range(4): B(f"v_xor_b32 v{V_KD+i}, {64*i}, v9")
    B(f"""
    v_lshlrev_b32 v9, 1, v4
    v_xor_b32 v9, v3, v9
    v_lshlrev_b32 v9, 4, v9
    v_lshl_add_u32 v{V_VD}, v4, 8, v9
    v_xor_b32 v{V_VD+1}, 128, v{V_VD}
    """)
    for i in range(32): B(f"v_mov_b32 v{V_VF+i}, 0")
    for i in range(10): B(f"v_mfma_f32_32x32x16_bf16 {ar(A_O+16*i,16)}, {vr(V_VF,4)}, {vr(V_VF,4)}, 0")
    for i in range(4): B(f"v_mov_b32 v{V_P+i}, 0")
    for i in range(8): B(f"v_mov_b32 v{V_S+8+i}, 0xff7fffff")
    spread(A, [x.strip() for x in B.l], wdma(1))
    A(f"s_cmp_eq_u32 s{S_W}, {0 if not OPT.get('noinit') else 7}")
    A("s_cbranch_scc0 L_noclr")
    A(f"s_lshl_b32 s{S_T0}, s{S_R}, 2")
    A(f"s_add_u32 s{S_T0}, s{S_T0}, s{S_F1}")
    A(f"s_lshl_b32 s{S_T1}, s{S_G}, 2")
    A(f"s_add_u32 s{S_T1}, s{S_T1}, s{S_F2}")
    A("v_mov_b32 v2, 0")
    one_lane(A, [f"buffer_store_dword v2, off, {sr(SRD_FL,4)}, s{S_T0} sc1", f"buffer_store_dword v2, off, {sr(SRD_FL,4)}, s{S_T1} sc1"])
    A.label("L_noclr")
    if OPT.get('qstamps'): stamp(A, 16)
    seq0 = ['W0'] * 4 + ['xA'] * 5 + ['W1'] * 4
    A(f"s_waitcnt vmcnt(4)")
    if OPT.get('qstamps'): stamp(A, 17)
    A("s_barrier")
    stamp(A, 1)
    stamp_cyc(A, 56)
    NV = 4 if OPT['qvar'] == 4 else (2 if OPT['qvar'] == 2 else 1)
    if NV == 4:
        for wv in range(1, 4):
            A(f"s_cmp_eq_u32 s{S_W}, {wv}")
            A(f"s_cbranch_scc1 L_qp{wv}")
    if NV == 2:
        A(f"s_cmp_ge_u32 s{S_W}, 2")
        A(f"s_cbranch_scc1 L_qp2")
    for wv in ((0, 1, 2, 3) if NV == 4 else ((0, 2) if NV == 2 else (0,))):
        if wv: A.label(f"L_qp{wv}")
        seq = list(seq0)
        def vm_for(need):
            last = max(i for i, t in enumerate(seq) if t in need)
            return len(seq) - 1 - last
        arrive = [f"s_lshr_b32 s{S_T0}, s{S_F1}, 5", "v_mov_b32 v2, 1", "s_mov_b64 exec, 1",
                  f"buffer_atomic_add v2, off, {sr(SRD_DBG,4)}, s{S_T0} sc1", "s_mov_b64 exec, -1"] if wv == 0 else []
        if NV < 4 and wv == 0: arrive = [f"s_cmp_eq_u32 s{S_W}, 0", "s_cbranch_scc0 L_noarr"] + arrive + ["L_noarr:"]
        kg0, vg0, kg1 = kv_groups('K', 0), kv_groups('V', 0), kv_groups('K', 1)
        kg0[0] = off_calc() + kg0[0]
        kg1[0] = off_calc() + kg1[0]
        ival = {0: [('xB', xdma(1)), ('W2', wdma(2))], 1: [('W3', wdma(3)), ('W4', wdma(4))], 2: [('xC', xdma(2)), ('W5', wdma(5))],
                3: [('W6', wdma(6)), ('xD', xdma(3))], 4: [('W7', wdma(7))], 5: [('K0', kg0)], 6: [('V0', vg0)], 7: []}
        needs = {1: ['W1'], 3: ['xB', 'W2'], 5: ['W3'], 7: ['xC', 'W4'], 9: ['W5'], 11: ['xD', 'W6'], 13: ['W7'], 15: None}
        plan = {}
        for ks in range(16):
            p = {}
            if ks in needs:
                p['pre'] = ([f"s_waitcnt vmcnt({vm_for(needs[ks])})"] if needs[ks] else []) + ["s_barrier"]
                if ks == OPT.get('arrive_ks', 13) and not OPT.get('noinit'): p['pre'] += arrive
            u = (ks + 1) >> 1
            first = (ks & 1) == 1 or ks == 0
            mine = (ks == 0) or (first and wv < 2) or (not first and wv >= 2)
            fill = []
            if NV == 1:
                allg = [(tag, g_) for tag, gs in ival.get(u, []) for g_ in gs]
                h = len(allg) if ks == 0 else (len(allg) + 1) // 2
                part = allg[:h] if first else allg[h:]
                if ks < 15:
                    for tag, g_ in part: fill.append(g_); seq.append(tag)
            elif ks < 15 and mine:
                for tag, gs in ival.get(u, []):
                    fill += gs; seq += [tag] * len(gs)
                if NV == 4: p['burst_gap'] = (4, 5, 7, 9)[wv] if ks == 0 else (4, 9)[wv & 1]
            if ks == 15 and wv < 2:
                fill = kg1; seq += ['K1'] * 8
                if NV == 4: p['burst_gap'] = (0, 9)[wv]
            p['fill'] = fill
            plan[ks] = p
        if OPT.get('qstamps'):
            for i, ks in enumerate((1, 3, 5, 7, 9, 11, 13, 15)): plan[ks]['stamp'] = 22 + i
        if OPT.get('fine'):
            for i, ks in enumerate(OPT['fine']): plan.setdefault(ks, {})['fine'] = 32 + 4 * i
        gemm_core(A, ACC, FA, FB, xread, wread, plan)
        stamp(A, 2)
        stamp_cyc(A, 57)
        A(f"s_mov_b32 s30, {hex(f32(C_SCALE))}")
        A(f"v_add_u32 v8, s{S_W1K}, v{V_L16}")
        A(f"v_add_u32 v8, {LE}, v8")
        A("s_nop 4")
        for t in range(5):
            for jt in range(2):
                d = ACC + (jt*5 + t)*4
                for h in range(2): A(f"v_pk_mul_f32 {vr(d+2*h,2)}, {vr(d+2*h,2)}, s[30:31] op_sel_hi:[1,0]")
            q = FB[0] + 4*t
            for jt in range(2):
                d = ACC + (jt*5 + t)*4
                A(f"v_cvt_pk_bf16_f32 v{q+2*jt}, v{d}, v{d+1}")
                A(f"v_cvt_pk_bf16_f32 v{q+2*jt+1}, v{d+2}, v{d+3}")
            A(f"ds_write_b128 v8, {vr(q,4)} offset:{t*4096}")
            if wv >= 2 and t == (1, 3)[wv - 2]:
                for g_ in kg1:
                    for x in g_: A(x)
        if wv < (3 if NV == 4 else (2 if NV == 2 else 0)): A("s_branch L_qdone")
    A.label("L_qdone")
    if OPT.get('qstamps'): stamp(A, 18)
    A("s_waitcnt vmcnt(16) lgkmcnt(0)")
    if OPT.get('qstamps'): stamp(A, 19)
    A("s_barrier")
    stamp(A, 30)
    A(f"v_add_u32 v8, {LE}, v{V_L16}")
    ST = 188
    if OPT['standin']:
        for s in range(4): A(f"ds_read_b128 {vr(ST+4*s,4)}, v{VX+s} offset:{K0}")
    for t in range(5):
        for s in range(4): A(f"ds_read_b128 {ar(A_Q+(t*4+s)*4,4)}, v8 offset:{(t*4+s)*1024}")
    for p in range(8): A(k_read(p, 0))
    for g_ in kv_groups('V', 1):
        for x in g_: A(x)
    if OPT.get('qstamps'): stamp(A, 32)
    VL2, VA2, VWD2, VCHK = 244, 245, 247, 248
    A(f"""
    v_lshl_add_u32 v8, v4, 2, v5
    s_lshl_b32 s30, s{S_W}, 2
    v_add_u32 v9, s30, v6
    v_lshlrev_b32 v2, 2, v5
    v_xor_b32 v9, v9, v2
    v_lshlrev_b32 v9, 4, v9
    v_lshl_add_u32 v9, v8, 8, v9
    v_add_u32 v8, s30, v4
    v_lshlrev_b32 v2, 2, v4
    v_xor_b32 v2, v3, v2
    v_lshlrev_b32 v2, 4, v2
    """)
    for i in range(20): A(f"v_mov_b32 v{V_LM+i}, 0")
    for i in range(4): A(f"v_mov_b32 v{V_ONE+i}, 0x3f803f80")
    if OPT['standin']:
        A("s_waitcnt lgkmcnt(8)")
        for t in range(5):
            for s in range(4):
                d = V_NEG + 4*t
                A(f"v_mfma_f32_16x16x32_bf16 {vr(d,4)}, {vr(ST+4*s,4)}, {ar(A_Q+(t*4+s)*4,4)}, {'0' if s == 0 else vr(d,4)}")
    if OPT.get('qstamps'): stamp(A, 31)
    A(f"v_add_u32 v{VA2}, 0x10000, v9")
    A(f"v_add_u32 v{VA2+1}, 0x20000, v9")
    A(f"v_lshl_add_u32 v{VWD2}, v8, 10, v2")
    A(f"v_add_u32 v{VL2}, 0x10000, v{V_L16}")
    if OPT['standin']:
        T = 204
        A("s_nop 4")
        for t in range(5):
            d = V_NEG + 4*t
            A(f"v_max3_f32 v{T+t}, v{d}, v{d+1}, v{d+2}")
        for t in range(5): A(f"v_max_f32 v{T+t}, v{T+t}, v{V_NEG+4*t+3}")
        for swap in ("v_permlane32_swap_b32", "v_permlane16_swap_b32"):
            for t in range(5): A(f"v_mov_b32 v{T+8+t}, v{T+t}")
            for t in range(5): A(f"{swap} v{T+t}, v{T+8+t}")
            for t in range(5): A(f"v_max_f32 v{T+t}, v{T+t}, v{T+8+t}")
        for t in range(5):
            for r in range(4): A(f"v_xor_b32 v{V_NEG+4*t+r}, 0x80000000, v{T+t}")
    else:
        for i in range(20): A(f"v_mov_b32 v{V_NEG+i}, 0")
    A("s_waitcnt lgkmcnt(0)")
    A("s_barrier")
    A(f"s_mov_b32 s{S_CNT}, 8")
    if OPT.get('vmstall'):
        A("s_mov_b32 s92, 0"); A("s_mov_b32 s93, 0")
    stamp(A, 3)
    stamp_cyc(A, 20)
    A.raw(".p2align 6")
    A.label("L_loop")
    for k in range(10): main_stage(A, k)
    A(f"s_sub_u32 s{S_CNT}, s{S_CNT}, 1")
    A(f"s_cmp_lg_u32 s{S_CNT}, 0")
    A("s_cbranch_scc1 L_loop")
    stamp(A, 4)
    stamp_cyc(A, 21)
    if OPT.get('vmstall'):
        A("v_writelane_b32 v39, s92, 61"); A("v_writelane_b32 v39, s93, 62")
    xarea2 = lambda a, t: (a * 5 + t) * 4096
    VA0 = 9
    wslot = [LE, LE + 16384, 81920, 98304, 114688]
    wblk2 = lambda u, e: (wslot[u % 5] if u < 7 else 0) + 8192 * e
    def wdma2(u):
        pre = [f"s_lshl_b32 s{S_T0}, s{S_R}, 1", f"s_add_u32 s{S_T0}, s{S_T0}, {u}", f"s_and_b32 s{S_T0}, s{S_T0}, 7", f"s_lshl_b32 s{S_T0}, s{S_T0}, 16",
               f"s_add_u32 s{S_WK}, s{S_T0}, s{S_WOB}"]
        l = []
        for e in range(2):
            for hh in range(2):
                l.append([f"s_add_u32 m0, s{S_W1K}, {wblk2(u, e) + 4096*hh}", f"s_add_u32 s{S_T0}, s{S_WK}, {(32*e + 16*hh)*1024}",
                          f"buffer_load_dwordx4 v{VWD2}, {sr(SRD_WO,4)}, s{S_T0} offen lds"])
        l[0] = pre + l[0]
        return l
    def xdma2(a):
        pre = [f"s_add_u32 s{S_T0}, s{S_R}, {a}", f"s_and_b32 s{S_T0}, s{S_T0}, 3", f"s_lshl_b32 s{S_T0}, s{S_T0}, 2",
               f"s_add_u32 s{S_T0}, s{S_T0}, s{S_W}", f"s_mul_i32 s{S_T0}, s{S_T0}, 5120", f"s_add_u32 s{S_XOFF}, s{S_T0}, s{S_XB}"]
        l = []
        for t in range(5):
            l.append([f"s_add_u32 m0, s{S_W1K}, {xarea2(a, t)}", f"s_add_u32 s{S_T0}, s{S_XOFF}, {t*1024}",
                      f"buffer_load_dwordx4 v{V_L16}, {sr(SRD_O,4)}, s{S_T0} offen sc1 lds"])
        l[0] = pre + l[0]
        return l
    flat = lambda gs: [x for g_ in gs for x in g_]
    def xread2(ks, t, dst):
        p = xarea2(ks >> 2, t) + (ks & 3) * 1024
        return f"ds_read_b128 {vr(dst,4)}, v{V_L16 if p < 65536 else VL2} offset:{p & 0xffff}"
    def wread2(ks, jt, hf, dst):
        p = wblk2(ks >> 1, ks & 1)
        return f"ds_read_b64_tr_b16 {vr(dst,2)}, v{(VA2 + (p >> 16) - 1) if p >= 65536 else VA0} offset:{(p & 0xffff) + 4096*hf + 8*jt}"
    A(f"s_lshl_b32 s{S_WOB}, s{S_G}, 19")
    A(f"s_lshl_b32 s{S_T1}, s{S_R}, 8")
    A(f"s_add_u32 s{S_WOB}, s{S_WOB}, s{S_T1}")
    A(f"s_lshl_b32 s30, s{S_B}, 7")
    A(f"s_lshl_b32 s31, s{S_G}, 4")
    A(f"s_add_u32 s30, s30, s31")
    A(f"s_mul_i32 s{S_XB}, s30, 5120")
    va = sm_valu(4, 1)
    for p in range(17):
        if p >= 8: A(pv_mfma(p - 8, 3, 0) if p < 16 else l_mfma(3, 0))
        for x in va[p]: A(x)
        if p < 8 and p % 4 in (1,): A("s_nop 0")
    A("s_nop 1")
    for dt in range(8): A(pv_mfma(dt, 4, 1))
    A(l_mfma(4, 1))
    A.label("L_combine")
    XL = 122880
    A("s_waitcnt vmcnt(0)")
    A("s_barrier")
    A(f"v_lshlrev_b32 v8, 2, v1")
    A(f"s_mul_i32 s30, s{S_W}, 1280")
    A(f"s_add_u32 s30, s30, {XL}")
    A(f"v_add_u32 v9, s30, v8")
    A("s_nop 1")
    for t in range(5): A(f"ds_write_b32 v9, v{V_LM+4*t} offset:{256*t}")
    TO = 60
    for d in range(4):
        A(f"s_cmp_eq_u32 s{S_W}, {d}")
        A(f"s_cbranch_scc1 L_own{d}")
        A(f"s_sub_u32 s30, s{S_W}, {d+1}")
        A(f"s_and_b32 s30, s30, 3")
        A(f"s_mul_i32 s30, s30, 10240")
        A(f"s_add_u32 s30, s30, {d*30720}")
        A(f"v_add_u32 v9, s30, v{V_L16}")
        for t in range(5):
            for j in range(2):
                A(f"ds_write_b128 v9, {ar(A_O + (t*8 + 2*d + j)*4, 4)} offset:{(t*2+j)*1024}")
        A(f"s_branch L_nxt{d}")
        A.label(f"L_own{d}")
        for t in range(5):
            for j in range(2):
                for r in range(4): A(f"v_accvgpr_read_b32 v{TO + (t*2+j)*4 + r}, a{A_O + (t*8 + 2*d + j)*4 + r}")
        A.label(f"L_nxt{d}")
    A("s_waitcnt lgkmcnt(0)")
    A("s_barrier")
    stamp(A, 5)
    stamp_cyc(A, 58)
    TL, RC, TR = 100, 120, 130
    A(f"v_add_u32 v9, {XL}, v8")
    for w in range(4):
        for t in range(5): A(f"ds_read_b32 v{TL + w*5 + t}, v9 offset:{w*1280 + t*256}")
    A(f"s_mul_i32 s30, s{S_W}, 30720")
    A(f"v_add_u32 v9, s30, v{V_L16}")
    rq = lambda q, sl: TR + ((q % 5)*3 + sl)*4
    def rd(q):
        for sl in range(3): A(f"ds_read_b128 {vr(rq(q, sl), 4)}, v9 offset:{(sl*10+q)*1024}")
    for q in range(3): rd(q)
    A("s_waitcnt lgkmcnt(9)")
    for t in range(5):
        A(f"v_add_f32 v{TL+t}, v{TL+t}, v{TL+5+t}")
        A(f"v_add_f32 v{TL+10+t}, v{TL+10+t}, v{TL+15+t}")
    for t in range(5): A(f"v_add_f32 v{TL+t}, v{TL+t}, v{TL+10+t}")
    if OPT['fallback']:
        A(f"v_add_f32 v{TL+9}, v{TL}, v{TL+1}")
        A(f"v_add_f32 v{TL+9}, v{TL+9}, v{TL+2}")
        A(f"v_add_f32 v{TL+9}, v{TL+9}, v{TL+3}")
        A(f"v_add_f32 v{TL+9}, v{TL+9}, v{TL+4}")
        A(f"s_mov_b32 s30, {hex(f32(2.0**40))}")
        A(f"v_cmp_ngt_f32 s[{S_BAD}:{S_BAD+1}], s30, v{TL+9}")
    for t in range(5): A(f"v_rcp_f32 v{RC+2*t}, v{TL+t}")
    OF = 100
    side = wdma2(0) + wdma2(1)
    side.append([f"s_lshl_b32 s{S_T2}, s{S_B}, 5", f"buffer_load_dwordx4 {vr(VCHK,4)}, off, {sr(SRD_DBG,4)}, s{S_T2} sc1",
                 f"buffer_load_dwordx4 {vr(VCHK+4,4)}, off, {sr(SRD_DBG,4)}, s{S_T2} offset:16 sc1"])
    for q in range(10):
        if q + 3 < 10: rd(q + 3)
        if side:
            for x in side.pop(0): A(x)
        A(f"s_waitcnt lgkmcnt({min(9, 3*(9-q))})")
        if q == 9: A("s_barrier")
        o = TO + 4*q
        for sl in range(3):
            for h in range(2):
                A(f"v_pk_add_f32 {vr(o+2*h,2)}, {vr(o+2*h,2)}, {vr(rq(q, sl)+2*h,2)}")
        t = q >> 1
        for h in range(2): A(f"v_pk_mul_f32 {vr(o+2*h,2)}, {vr(o+2*h,2)}, {vr(RC+2*t,2)} op_sel_hi:[1,0]")
    if OPT['fallback']:
        A(f"s_cmp_eq_u64 s[{S_BAD}:{S_BAD+1}], 0")
        A("s_cbranch_scc1 L_sum_ok")
        A(f"s_cmp_eq_u32 s{S_FB}, 0")
        A("s_cbranch_scc1 L_fallback")
        A.label("L_sum_ok")
    for t in range(5):
        for i in range(4): A(f"v_cvt_pk_bf16_f32 v{OF+4*t+i}, v{TO + t*8 + 2*i}, v{TO + t*8 + 2*i + 1}")
    stamp(A, 6)
    A(f"s_lshl_b32 s30, s{S_R}, 2")
    A(f"s_add_u32 s30, s30, s{S_W}")
    A(f"s_mul_i32 s30, s30, 5120")
    A(f"s_add_u32 s30, s30, s{S_XB}")
    for t in range(5):
        if t == 4: A("s_add_u32 s30, s30, 4096")
        A(f"buffer_store_dwordx4 {vr(OF+4*t,4)}, v{V_L16}, {sr(SRD_O,4)}, s30 offen offset:{(t*1024) & 4095} sc1")
    A(f"v_add_u32 v8, s{S_W1K}, v{V_L16}")
    for t in range(5): A(f"ds_write_b128 v8, {vr(OF+4*t,4)} offset:{xarea2(0, t)}")
    A(f"v_add_u32 v{VA0}, 0xffff0000, v{VA2}")
    A("s_waitcnt vmcnt(0) lgkmcnt(0)")
    A("s_barrier")
    A(f"s_cmp_eq_u32 s{S_W}, 0")
    A("s_cbranch_scc0 L_noflag1")
    A(f"s_lshl_b32 s{S_T0}, s{S_R}, 2")
    A(f"s_add_u32 s{S_T0}, s{S_T0}, s{S_F1}")
    A("v_mov_b32 v2, 1")
    one_lane(A, [f"buffer_store_dword v2, off, {sr(SRD_FL,4)}, s{S_T0} sc1"])
    A.label("L_noflag1")
    VF1 = 56 - 56 + 120
    A(f"buffer_load_dwordx4 {vr(VF1,4)}, off, {sr(SRD_FL,4)}, s{S_F1} sc1")
    stamp(A, 7)
    def wait_group(A):
        for i in range(1, 8): A(f"v_min_u32 v{VCHK}, v{VCHK}, v{VCHK+i}")
        A("s_nop 0")
        A(f"v_readfirstlane_b32 s{S_T0}, v{VCHK}")
        A("s_nop 3")
        A(f"s_cmp_ge_u32 s{S_T0}, {4 if not OPT.get('noinit') else 0}")
        A(f"s_cselect_b32 s{S_INIT}, 1, 0")
        A(f"s_cmp_ge_u32 s{S_T0}, {4 if not OPT.get('noinit') else 0}")
        A("s_cbranch_scc1 L_done_init")
        A(f"s_lshl_b32 s{S_T2}, s{S_B}, 5")
        poll(A, "init", SRD_DBG, S_T2, 8, 4, VCHK)
        A("s_waitcnt vmcnt(0)")
        A(f"s_cmp_eq_u32 s{S_INIT}, 1")
        A("s_cbranch_scc0 L_look_again")
        for i in range(1, 4): A(f"v_min_u32 v{VF1}, v{VF1}, v{VF1+i}")
        A("s_nop 0")
        A(f"v_readfirstlane_b32 s{S_T0}, v{VF1}")
        A("s_nop 3")
        A(f"s_cmp_ge_u32 s{S_T0}, 1")
        A("s_cbranch_scc1 L_done_f1")
        A.label("L_look_again")
        poll(A, "f1", SRD_FL, S_F1, 4, 1, VCHK)
        stamp(A, 8)
        for x in flat(xdma2(1) + xdma2(2) + xdma2(3)): A(x)
        A("s_waitcnt vmcnt(10)")
        A("s_barrier")
        stamp(A, 9)
    plan2 = {0: dict(fill=wdma2(2)), 1: dict(pre=["s_barrier"], fill=wdma2(3)), 2: dict(fill=wdma2(4)),
             3: dict(pre=["s_barrier"], late=wait_group),
             4: dict(fill=wdma2(5)), 5: dict(fill=wdma2(6)), 6: dict(fill=wdma2(7)),
             7: dict(pre=["s_waitcnt vmcnt(17)", "s_barrier"]),
             9: dict(pre=["s_waitcnt vmcnt(8)", "s_barrier"]),
             11: dict(pre=["s_waitcnt vmcnt(4)", "s_barrier"]),
             13: dict(pre=["s_waitcnt vmcnt(0)", "s_barrier"])}
    gemm_core(A, ACC, FA, FB, xread2, wread2, plan2)
    stamp(A, 10)
    stamp_cyc(A, 59)
    A(f"""
    s_lshl_b32 s30, s{S_B}, 2
    s_add_u32 s30, s30, s{S_R}
    s_lshl_b32 s30, s30, 2
    s_mul_i32 s{S_XB}, s30, 40960
    s_mul_i32 s30, s{S_W}, 40960
    s_add_u32 s30, s30, s{S_XB}
    s_lshl_b32 s31, s{S_G}, 10
    s_add_u32 s30, s30, s31
    """)
    PB = 60
    for t in range(5):
        d0, d1 = ACC + 4*t, ACC + 4*(5 + t)
        A(f"v_cvt_pk_bf16_f32 v{PB+4*t}, v{d0}, v{d0+1}")
        A(f"v_cvt_pk_bf16_f32 v{PB+4*t+1}, v{d0+2}, v{d0+3}")
        A(f"v_cvt_pk_bf16_f32 v{PB+4*t+2}, v{d1}, v{d1+1}")
        A(f"v_cvt_pk_bf16_f32 v{PB+4*t+3}, v{d1+2}, v{d1+3}")
        A(f"s_add_u32 s31, s30, {t*8192}")
        A(f"buffer_store_dwordx4 {vr(PB+4*t,4)}, v{V_L16}, {sr(SRD_PP,4)}, s31 offen sc1")
    A("s_waitcnt vmcnt(0)")
    A("s_barrier")
    A(f"s_cmp_eq_u32 s{S_W}, 0")
    A("s_cbranch_scc0 L_noflag2")
    A(f"s_lshl_b32 s{S_T0}, s{S_G}, 2")
    A(f"s_add_u32 s{S_T0}, s{S_T0}, s{S_F2}")
    A("v_mov_b32 v2, 1")
    one_lane(A, [f"buffer_store_dword v2, off, {sr(SRD_FL,4)}, s{S_T0} sc1"])
    A.label("L_noflag2")
    stamp(A, 11)
    A(f"s_lshl_b32 s30, s{S_W}, 3")
    A(f"s_add_u32 s30, s30, s{S_G}")
    A("s_cmp_ge_u32 s30, 20")
    A("s_cbranch_scc1 L_fin")
    poll(A, "f2", SRD_FL, S_F2, 8, 1, VCHK)
    stamp(A, 12)
    A(f"s_mul_hi_u32 s31, s30, {(1 << 32)//5 + 1}")
    A(f"s_mul_i32 s{S_T0}, s31, 5")
    A(f"s_sub_u32 s{S_T1}, s30, s{S_T0}              ; t")
    A(f"s_mul_i32 s{S_T0}, s31, 40960")
    A(f"s_add_u32 s{S_T0}, s{S_T0}, s{S_XB}")
    A(f"s_lshl_b32 s{S_T2}, s{S_T1}, 13")
    A(f"s_add_u32 s{S_T0}, s{S_T0}, s{S_T2}")
    RB = 60
    for g in range(8):
        if g == 4: A(f"s_add_u32 s{S_T0}, s{S_T0}, 4096")
        A(f"buffer_load_dwordx4 {vr(RB + 4*g, 4)}, v{V_L16}, {sr(SRD_PP,4)}, s{S_T0} offen offset:{(g%4)*1024} sc1")
    A(f"""
    s_mul_i32 s{S_T0}, s{S_B}, 80
    s_lshl_b32 s{S_T1}, s{S_T1}, 4
    s_add_u32 s{S_T0}, s{S_T0}, s{S_T1}
    v_add_u32 v8, s{S_T0}, v3
    v_lshlrev_b32 v8, 10, v8
    s_lshl_b32 s{S_T0}, s{S_R}, 2
    s_add_u32 s{S_T0}, s{S_T0}, s31
    s_lshl_b32 s{S_T0}, s{S_T0}, 6
    v_lshl_add_u32 v8, v4, 4, v8
    v_add_u32 v8, s{S_T0}, v8
    """)
    SUM, UN = 100, 110
    for g in range(8):
        A(f"s_waitcnt vmcnt({7-g})")
        dst = SUM if g == 0 else UN
        for i in range(4):
            A(f"v_lshlrev_b32 v{dst+2*i}, 16, v{RB+4*g+i}")
            A(f"v_and_b32 v{dst+2*i+1}, 0xffff0000, v{RB+4*g+i}")
        if g:
            for i in range(4): A(f"v_pk_add_f32 {vr(SUM+2*i,2)}, {vr(SUM+2*i,2)}, {vr(UN+2*i,2)}")
    for i in range(4): A(f"v_cvt_pk_bf16_f32 v{RB+64+i}, v{SUM+2*i}, v{SUM+2*i+1}")
    A(f"buffer_store_dwordx4 {vr(RB+64,4)}, v8, {sr(SRD_OUT,4)}, 0 offen")
    A.label("L_fin")
    A("s_waitcnt vmcnt(0)")
    stamp(A, 13)
    stamp_cyc(A, 60)
    stamp_out(A)
    if OPT.get('amp'):
        i0, i1, M = OPT['amp']
        A(f"s_add_u32 s30, s{S_R15}, s{S_W}")
        A("s_cmp_eq_u32 s30, 0")
        A("s_cbranch_scc0 L_end")
        A(f"v_readlane_b32 s30, v39, {i0}")
        A(f"v_readlane_b32 s31, v39, {i1}")
        A("s_nop 3")
        A("s_sub_u32 s30, s31, s30")
        A("s_min_u32 s30, s30, 10000")
        A(f"s_mul_i32 s30, s30, {M}")
        A("s_memrealtime s[64:65]")
        A("s_waitcnt lgkmcnt(0)")
        A.label("L_amp")
        A("s_sleep 4")
        A("s_memrealtime s[66:67]")
        A("s_waitcnt lgkmcnt(0)")
        A("s_sub_u32 s31, s66, s64")
        A("s_cmp_lt_u32 s31, s30")
        A("s_cbranch_scc1 L_amp")
    A.label("L_end")
    A("s_endpgm")
    A.label("L_text_main_end")
    if OPT['fallback']: gen_fallback(A)
    A.label("L_text_end")
    A("s_endpgm")
    return A.text()

def gen_fallback(A):
    M, AL, T = V_NEG, V_NEG + 8, 148
    SF = 160
    A.label("L_fallback")
    A(f"s_mov_b32 s{S_FB}, 1")
    for i in range(160): A(f"v_accvgpr_write_b32 a{A_O+i}, 0")
    for i in range(10): A(f"v_mov_b32 v{V_L+i}, 0")
    for t in range(5): A(f"v_mov_b32 v{M+t}, 0xff7fffff")
    A(f"s_mov_b32 s{S_CNT}, 16")
    A(f"s_mov_b32 s{S_OFF}, s{S_W8}")
    A.label("L_fb_loop")
    A(f"s_add_u32 s{S_OFF2}, s{S_OFF}, 4096")
    for x in with_m0_gap(kv_dma('K', 0)) + with_m0_gap(kv_dma('V', 0)): A(x)
    A("s_waitcnt vmcnt(0)")
    for p in range(8): A(k_read(p, 0))
    for dt in range(8):
        for hf in range(2): A(v_read(dt, hf, 0))
    A("s_waitcnt lgkmcnt(0)")
    for t in range(5):
        for p in range(8):
            kt, s = p >> 2, p & 3
            d = SF + 8*t + 4*kt
            A(f"v_mfma_f32_16x16x32_bf16 {vr(d,4)}, {vr(V_KF+4*p,4)}, {ar(A_Q+(t*4+s)*4,4)}, {'0' if s == 0 else vr(d,4)}")
    A("s_nop 7")
    for t in range(5):
        d = SF + 8*t
        A(f"v_max3_f32 v{T+t}, v{d}, v{d+1}, v{d+2}")
        A(f"v_max3_f32 v{T+t}, v{T+t}, v{d+3}, v{d+4}")
        A(f"v_max3_f32 v{T+t}, v{T+t}, v{d+5}, v{d+6}")
        A(f"v_max3_f32 v{T+t}, v{T+t}, v{d+7}, v{M+t}")
    A("s_nop 1")
    for swap in ("v_permlane32_swap_b32", "v_permlane16_swap_b32"):
        for t in range(5): A(f"v_mov_b32 v{T+5+t}, v{T+t}")
        for t in range(5): A(f"{swap} v{T+t}, v{T+5+t}")
        for t in range(5): A(f"v_max_f32 v{T+t}, v{T+t}, v{T+5+t}")
    for t in range(5): A(f"v_sub_f32 v{AL+t}, v{M+t}, v{T+t}")
    for t in range(5): A(f"v_exp_f32 v{AL+t}, v{AL+t}")
    for t in range(5): A(f"v_mov_b32 v{M+t}, v{T+t}")
    for t in range(5):
        for i in range(8): A(f"v_sub_f32 v{SF+8*t+i}, v{SF+8*t+i}, v{M+t}")
    for t in range(5):
        for i in range(8): A(f"v_exp_f32 v{SF+8*t+i}, v{SF+8*t+i}")
    A("s_nop 0")
    for t in range(5):
        A(f"v_mul_f32 v{V_L+2*t}, v{V_L+2*t}, v{AL+t}")
        for i in range(8): A(f"v_add_f32 v{V_L+2*t}, v{V_L+2*t}, v{SF+8*t+i}")
    for t in range(5):
        for i in range(32):
            A(f"v_accvgpr_read_b32 v{T+10}, a{A_O+t*32+i}")
            A(f"v_mul_f32 v{T+10}, v{T+10}, v{AL+t}")
            A(f"v_accvgpr_write_b32 a{A_O+t*32+i}, v{T+10}")
    PF = 200
    for t in range(5):
        for i in range(4): A(f"v_cvt_pk_bf16_f32 v{PF+4*t+i}, v{SF+8*t+2*i}, v{SF+8*t+2*i+1}")
    A("s_nop 1")
    for t in range(5):
        for dt in range(8):
            o = A_O + (t*8 + dt)*4
            A(f"v_mfma_f32_16x16x32_bf16 {ar(o,4)}, {vr(V_VF+4*dt,4)}, {vr(PF+4*t,4)}, {ar(o,4)}")
    A("s_nop 7")
    A(f"s_add_u32 s{S_OFF}, s{S_OFF}, 0x8000")
    A(f"s_sub_u32 s{S_CNT}, s{S_CNT}, 1")
    A(f"s_cmp_lg_u32 s{S_CNT}, 0")
    A("s_cbranch_scc1 L_fb_loop")
    XL = 0
    A("s_barrier")
    A(f"v_lshlrev_b32 v8, 2, v1")
    A(f"s_mul_i32 s30, s{S_W}, 1280")
    A(f"s_add_u32 s30, s30, {XL}")
    A(f"v_add_u32 v9, s30, v8")
    for t in range(5): A(f"ds_write_b32 v9, v{M+t} offset:{256*t}")
    A("s_waitcnt lgkmcnt(0)")
    A("s_barrier")
    for w in range(4):
        for t in range(5): A(f"ds_read_b32 v{SF + w*5 + t}, v8 offset:{XL + w*1280 + t*256}")
    A("s_waitcnt lgkmcnt(0)")
    for t in range(5):
        A(f"v_max3_f32 v{T+t}, v{SF+t}, v{SF+5+t}, v{SF+10+t}")
        A(f"v_max_f32 v{T+t}, v{T+t}, v{SF+15+t}")
        A(f"v_sub_f32 v{AL+t}, v{M+t}, v{T+t}")
    for t in range(5): A(f"v_exp_f32 v{AL+t}, v{AL+t}")
    A("s_nop 0")
    for t in range(5): A(f"v_mul_f32 v{V_L+2*t}, v{V_L+2*t}, v{AL+t}")
    for swap in ("v_permlane32_swap_b32", "v_permlane16_swap_b32"):
        for t in range(5): A(f"v_mov_b32 v{V_L+2*t+1}, v{V_L+2*t}")
        for t in range(5): A(f"{swap} v{V_L+2*t}, v{V_L+2*t+1}")
        for t in range(5): A(f"v_add_f32 v{V_L+2*t}, v{V_L+2*t}, v{V_L+2*t+1}")
    for t in range(5):
        for i in range(32):
            A(f"v_accvgpr_read_b32 v{T+10}, a{A_O+t*32+i}")
            A(f"v_mul_f32 v{T+10}, v{T+10}, v{AL+t}")
            A(f"v_accvgpr_write_b32 a{A_O+t*32+i}, v{T+10}")
    for t in range(5): A(f"v_mov_b32 v{V_LM+4*t}, v{V_L+2*t}")
    A("s_waitcnt vmcnt(0)")
    A("s_branch L_combine")

def build():
    s = HEADER + "; @launch grid=(256,1,1) block=(256,1,1) lds=163840\n"
    s += '.amdgcn_target "amdgcn-amd-amdhsa--gfx950"\n.text\n' + kernel_start(NAME) + gen()
    s += '.section .rodata,"a"\n.p2align 6\n' + kernel_desc(NAME, 512, 256, 102)
    return s

if __name__ == "__main__":
    out = sys.argv[1]
    for kv in sys.argv[2:]:
        k_, v_ = kv.split("=")
        OPT[k_] = eval(v_)
    open(out, "w").write(build())
```

```python
import sys, struct, math
from lib import *

def f32(x): return struct.unpack("<I", struct.pack("<f", x))[0]
C_SCALE = math.log2(math.e) / math.sqrt(128.0)
NAME = "standalone__gqa_block_cached__near_ridge_kernel"

WS_O = 0
WS_P = 8 << 20
WS_F = 24 << 20
WS_ST = 64 << 20
OPT = dict(standin=True, fallback=True, stamps=False, nodma=False, nods=False, novalu=False, nowait=False, wopf=True, order='X', kvpol='', codepf=True, qvar=2, onerow=False, souter=False)

V_KA, V_VA, V_KD, V_VD, V_L, V_L16, V_NEG, V_S, V_P, V_KF, V_VF = 10, 14, 22, 26, 28, 38, 40, 60, 76, 84, 116
A_O, A_Q = 0, 160
S_G, S_B, S_R, S_W, S_H, S_RW = 24, 25, 26, 27, 28, 29
S_T, S_R15, S_W8, S_END, S_OFF, S_OFF2, S_CNT, S_W1K, S_XOFF, S_WK, S_ROT, S_FB = 32, 33, 34, 35, 36, 37, 38, 39, 40, 41, 42, 43
S_T0, S_T1, S_T2, S_SPIN = 60, 61, 62, 63
S_TAB = 2
SRD_X, SRD_K, SRD_V, SRD_W, SRD_O, SRD_WO, SRD_PP, SRD_FL, SRD_DBG, SRD_OUT = 4, 8, 12, 16, 20, 44, 48, 52, 56, 84
S_POFF, S_F1, S_F2, S_XB, S_WOB, S_BAD, S_INIT = 80, 81, 82, 83, 88, 90, 89
K0, K1s, V0, V1 = 0, 8192, 16384, 24576
LE = 131072
SPIN_MAX = 20000

def stamp(A, i):
    if not OPT['stamps']: return
    A("s_memrealtime s[98:99]")
    A("s_waitcnt lgkmcnt(0)")
    A(f"v_writelane_b32 v39, s98, {i}")
def stamp_cyc(A, i):
    if not OPT['stamps']: return
    A("s_memtime s[98:99]")
    A("s_waitcnt lgkmcnt(0)")
    A(f"v_writelane_b32 v39, s98, {i}")
def stamp_out(A):
    if not OPT['stamps']: return
    A("s_load_dwordx2 s[92:93], s[0:1], 56")
    A("s_waitcnt lgkmcnt(0)")
    A(f"s_add_u32 s92, s92, {WS_ST}")
    A("s_addc_u32 s93, s93, 0")
    A("s_mov_b32 s94, 0x100000")
    A("s_mov_b32 s95, 0x00020000")
    A(f"s_lshl_b32 s96, s{S_R15}, 2")
    A(f"s_add_u32 s96, s96, s{S_W}")
    A("s_lshl_b32 s96, s96, 8")
    A("v_lshlrev_b32 v2, 2, v1")
    A("buffer_store_dword v39, v2, s[92:95], s96 offen")
    A("s_waitcnt vmcnt(0)")

def gemm_core(A, acc, FA, FB, xread, wread, plan):
    def reads(ks):
        buf = ks & 1
        w = [wread(ks, jt, hf, FA[buf] + 4 * jt + 2 * hf) for jt in range(2) for hf in range(2)]
        x = [xread(ks, t, FB[buf] + 4 * t) for t in range(5)]
        return [w[0], w[1], x[0], w[2], w[3], x[1], x[2], x[3], x[4]]
    for r in reads(0): A(r)
    for ks in range(16):
        buf = ks & 1
        p = plan.get(ks, {})
        fine = p.get('fine')
        if fine is not None: stamp_cyc(A, fine)
        A("s_waitcnt lgkmcnt(0)")
        for x in p.get('pre', []):
            A(x)
            if fine is not None and x.startswith("s_waitcnt vmcnt"): stamp_cyc(A, fine + 1)
            if fine is not None and x == "s_barrier": stamp_cyc(A, fine + 2)
        if p.get('stamp') is not None: stamp(A, p['stamp'])
        extra = list(p.get('fill', []))
        late = p.get('late')
        fill = reads(ks + 1) if (ks < 15 and late is None) else []
        m = 0
        groups = extra; extra = []
        for t in range(5):
            for jt in range(2):
                d = acc + (jt * 5 + t) * 4
                c = "0" if ks == 0 else vr(d, 4)
                A(f"v_mfma_f32_16x16x32_bf16 {vr(d,4)}, {vr(FA[buf]+4*jt,4)}, {vr(FB[buf]+4*t,4)}, {c}")
                n = 0
                while fill and n < 2: A(fill.pop(0)); n += 1
                bg = p.get('burst_gap')
                if bg is not None:
                    if m == bg:
                        for g_ in groups:
                            for x in g_: A(x)
                        groups = []
                elif not fill and groups and m >= 3:
                    k = (len(groups) + (9 - m)) // (10 - m)
                    for _ in range(min(k, len(groups))):
                        for x in groups.pop(0): A(x)
                m += 1
        for g_ in groups:
            for x in g_: A(x)
        for e in extra: A(e)
        if fine is not None: stamp_cyc(A, fine + 3)
        if late is not None:
            late(A) if callable(late) else [A(x) for x in late]
            if ks < 15:
                for r in reads(ks + 1): A(r)

def segments(scheme, phi):
    if scheme == 'rot4': return None
    return {'X': [[1,4,4,4,3], [2,4,4,4,2], [3,4,4,4,1], [4,4,4,4]],
            'Y': [[2,4,4,4,2], [2,1,4,4,4,1], [2,1,1,4,4,4], [2,1,1,1,4,4,3]],
            'Z': [[1,4,4,4,3], [1,1,4,4,4,2], [1,1,1,4,4,4,1], [1,1,1,1,4,4,4]],
            'Y2': [[2,4,4,4,2], [2,2,4,4,4], [2,3,4,4,3], [2,4,4,4,2]],
            'L': [[1]*16]*4,
            'R2': [[2]*8, [1] + [2]*7 + [1], [2]*8, [1] + [2]*7 + [1]],
            'R4': [[4]*4]*4,
            'U': [[1,4,4,4,3]]*4,
            'X2': [[1,4,4,4,3], [1,1,4,4,4,2], [3,4,4,4,1], [4,4,4,4]],
            'X3': [[1,4,4,4,3], [2,4,4,4,2], [1,2,4,4,4,1], [4,4,4,4]],
            'X4': [[2,4,4,4,2], [3,4,4,4,1], [4,4,4,4], [1,4,4,4,3]],
            'R3': [[1,3,3,3,3,3], [2,3,3,3,3,2], [3,3,3,3,3,1], [1,3,3,3,3,3]],
            'R8': [[4,4,4,4], [2,4,4,4,2], [4,4,4,4], [2,4,4,4,2]]}[scheme][phi]
def tile_order(scheme, phi, r):
    seg = segments(scheme, phi)
    if seg is None:
        return [((i + phi) & 12) | ((i + phi + r) & 3) for i in range(16)]
    out = []; s0 = 0
    for n in seg:
        out += [s0 + ((u + r) % n) for u in range(n)]; s0 += n
    assert sorted(out) == list(range(16)), (scheme, phi, r, out)
    return out
def table_setup(A):
    A(f"s_and_b32 s{S_T0}, s{S_B}, 3")
    A(f"s_lshl_b32 s{S_T0}, s{S_T0}, 2")
    A(f"s_add_u32 s{S_T0}, s{S_T0}, s{S_R}")
    for idx in range(16):
        o = tile_order(OPT['order'], idx >> 2, idx & 3)
        v = sum(t << (4 * i) for i, t in enumerate(o))
        if idx == 0:
            A(f"s_mov_b32 s{S_TAB}, {hex(v & 0xffffffff)}"); A(f"s_mov_b32 s{S_TAB+1}, {hex(v >> 32)}")
        else:
            A(f"s_cmp_eq_u32 s{S_T0}, {idx}")
            A(f"s_cselect_b32 s{S_TAB}, {hex(v & 0xffffffff)}, s{S_TAB}")
            A(f"s_cselect_b32 s{S_TAB+1}, {hex(v >> 32)}, s{S_TAB+1}")
    A(f"s_mov_b32 s{S_T}, 0")
def off_calc():
    return [f"s_and_b32 s{S_T0}, s{S_TAB}, 15",
            f"s_lshl_b32 s{S_T0}, s{S_T0}, 15",
            f"s_or_b32 s{S_OFF}, s{S_T0}, s{S_W8}",
            f"s_lshr_b64 s[{S_TAB}:{S_TAB+1}], s[{S_TAB}:{S_TAB+1}], 4",
            f"s_cmp_ge_u32 s{S_T}, 16",
            f"s_cselect_b32 s{S_OFF}, 0x80000, s{S_OFF}",
            f"s_add_u32 s{S_OFF2}, s{S_OFF}, 4096",
            f"s_add_u32 s{S_T}, s{S_T}, 1"]
def kv_dma(which, slot):
    srd = SRD_K if which == 'K' else SRD_V
    base = (K0, K1s)[slot] if which == 'K' else (V0, V1)[slot]
    l = []
    for half in range(2):
        l.append(f"s_add_u32 m0, s{S_RW}, {base + 4096 * half}")
        so = S_OFF if half == 0 else S_OFF2
        for i in range(4):
            vo = V_KD + i if which == 'K' else V_VD + (i & 1)
            l.append(f"buffer_load_dwordx4 v{vo}, {sr(srd,4)}, s{so} offen offset:{1024*i} {OPT['kvpol']} lds".replace("  ", " "))
    return l
def with_m0_gap(l):
    out = []
    for x in l:
        out.append(x)
        if x.startswith("s_add_u32 m0"): out.append("s_nop 0")
    return out
def kv_groups(which, slot):
    d = kv_dma(which, slot)
    return [[d[0], "s_nop 0", d[1]], [d[2]], [d[3]], [d[4]], [d[5], "s_nop 0", d[6]], [d[7]], [d[8]], [d[9]]]
def spread(A, main, groups, start=0):
    n = len(main); g = list(groups); k = len(g)
    pos = [start + (n - start) * (i + 1) // (k + 1) for i in range(k)]
    for i, x in enumerate(main):
        while pos and pos[0] <= i and not x.startswith(("s_addc", "s_cselect", "s_cbranch")):
            pos.pop(0)
            for y in g.pop(0): A(y)
        A(x)
    for gg in g:
        for y in gg: A(y)
def k_read(p, slot):
    kt, s = p >> 2, p & 3
    return f"ds_read_b128 {vr(V_KF + 4*p, 4)}, v{V_KA + s} offset:{(K0, K1s)[slot] + 4096*kt}"
def v_read(dt, hf, slot):
    return f"ds_read_b64_tr_b16 {vr(V_VF + 4*dt + 2*hf, 2)}, v{V_VA + dt} offset:{(V0, V1)[slot] + 4096*hf}"
def frag_of(slot):
    return ((slot & 1) * 4 + (slot >> 1)) if OPT['souter'] else slot
def qk_mfma(slot, tq, sbuf):
    p = frag_of(slot)
    kt, s = p >> 2, p & 3
    d = V_S + 8 * sbuf + 4 * kt
    c = vr(V_NEG + 4 * tq, 4) if s == 0 else vr(d, 4)
    return f"v_mfma_f32_16x16x32_bf16 {vr(d,4)}, {vr(V_KF + 4*p, 4)}, {ar(A_Q + (tq*4 + s)*4, 4)}, {c}"
def pv_mfma(dt, tp, pbuf):
    o = A_O + (tp * 8 + dt) * 4
    return f"v_mfma_f32_16x16x32_bf16 {ar(o,4)}, {vr(V_VF + 4*dt, 4)}, {vr(V_P + 4*pbuf, 4)}, {ar(o,4)}"
V_LM, V_ONE = 148, 168
def l_mfma(tp, pbuf):
    d = V_LM + 4 * tp
    return f"v_mfma_f32_16x16x32_bf16 {vr(d,4)}, {vr(V_ONE,4)}, {vr(V_P + 4*pbuf, 4)}, {vr(d,4)}"
def sm_valu(ts, buf):
    S = V_S + 8 * buf; P = V_P + 4 * buf
    g = [[] for _ in range(17)]
    for q in range(4):
        e0, e1 = S + 2 * q, S + 2 * q + 1
        g[4*q + 0].append(f"v_exp_f32 v{e0}, v{e0}")
        g[4*q + 1].append(f"v_exp_f32 v{e1}, v{e1}")
        g[4*q + 2].append(f"v_cvt_pk_bf16_f32 v{P + q}, v{e0}, v{e1}")
    return g

def stage_plan(km, par):
    it = []
    kd, vd = kv_dma('K', par), kv_dma('V', par)
    kl = kd[1:5] + kd[6:10]; vl = vd[1:5] + vd[6:10]
    if km == 0:
        for i, x in enumerate(off_calc()): it.append((i // 2, None, x))
        it.append((5, None, "s_waitcnt lgkmcnt(0)"))
        it.append((6, None, kd[0]))
        it += [(7, 'K', kl[0]), (11, 'K', kl[1]), (15, 'K', kl[2])]
    if km == 1:
        it += [(3, 'K', kl[3]), (4, None, kd[5]), (7, 'K', kl[4])]
        it.append((9, 'waitV', None))
        rd = [(10, 0, 0), (11, 0, 1), (11, 1, 0), (14, 1, 1), (15, 2, 0), (15, 2, 1), (16, 3, 0), (16, 3, 1)]
        for g_, dt, hf in rd: it.append((g_, None, v_read(dt, hf, par)))
        it.append((12, 'K', kl[5]))
    if km == 2:
        rd = [(2, 4, 0), (2, 4, 1), (3, 5, 0), (3, 5, 1), (6, 6, 0), (6, 6, 1), (7, 7, 0), (7, 7, 1)]
        for g_, dt, hf in rd: it.append((g_, None, v_read(dt, hf, par)))
        it += [(7, None, "s_waitcnt lgkmcnt(8)"), (11, 'K', kl[6]), (11, None, "s_waitcnt lgkmcnt(2)"), (14, None, "s_waitcnt lgkmcnt(0)"), (16, 'K', kl[7])]
    if km == 3:
        it += [(0, None, vd[0]), (3, 'V', vl[0]), (7, 'V', vl[1]), (11, 'V', vl[2]), (15, 'V', vl[3]), (16, 'waitK', None)]
    if km == 4:
        rd = [(2, 0), (3, 1), (3, 2), (6, 3), (7, 4), (7, 5), (10, 6), (11, 7)]
        for g_, p in rd: it.append((g_, None, k_read(frag_of(p), 1 - par)))
        it += [(0, None, vd[5]), (4, 'V', vl[4]), (8, 'V', vl[5]), (12, 'V', vl[6]), (15, 'V', vl[7]), (16, None, "s_waitcnt lgkmcnt(2)")]
    return it
def vm_counts():
    seq = []
    waits = {}
    for j in range(3):
        for k in range(10):
            par = 0 if k < 5 else 1
            n = 2 * j + 2 + par
            for g_, tag, x in sorted(stage_plan(k % 5, par), key=lambda e: e[0]):
                if tag in ('K', 'V'): seq.append((tag, n))
                if tag == 'waitV' and j == 2:
                    need = ('V', 2 * j + par)
                    waits[('V', par)] = len(seq) - 1 - max(i for i, u in enumerate(seq) if u == need)
                if tag == 'waitK' and j == 2:
                    need = ('K', 2 * j + 1 + par)
                    waits[('K', par)] = len(seq) - 1 - max(i for i, u in enumerate(seq) if u == need)
    return waits

def main_stage(A, k):
    tq, ts, tp = k % 5, (k + 4) % 5, (k + 3) % 5
    nv = [[] for _ in range(17)]
    par = 0 if k < 5 else 1
    km = k % 5
    vm = vm_counts()
    for g_, tag, x in stage_plan(km, par):
        if tag == 'waitV': x = f"s_waitcnt vmcnt({vm[('V', par)]})"
        if tag == 'waitK': x = f"s_waitcnt vmcnt({vm[('K', par)]})"
        if tag in ('waitV', 'waitK') and OPT.get('vmstall'):
            acc = 92 if tag == 'waitV' else 93
            nv[g_] += ["s_memtime s[94:95]", "s_waitcnt lgkmcnt(0)", x, "s_memtime s[96:97]", "s_waitcnt lgkmcnt(0)", "s_sub_u32 s96, s96, s94", f"s_add_u32 s{acc}, s{acc}, s96"]
            continue
        nv[g_].append(x)
    if k == 0 and OPT['wopf']:
        nv[16] += [f"s_cmp_eq_u32 s{S_CNT}, 2", "s_cbranch_scc0 L_nopf", f"s_lshl_b32 s{S_T0}, s{S_W}, 12", f"s_add_u32 m0, s{S_T0}, {LE}", "s_nop 0"]
        nv[16] += [f"buffer_load_dwordx4 v{V_L16}, {sr(SRD_WO,4)}, s{S_POFF} offen offset:{1024*i} lds" for i in range(4)]
        if OPT.get('touch_tail'):
            nv[16] += [f"s_mul_i32 s{S_T0}, s{S_B}, {5 << 17}", f"buffer_load_dword v{V_L}, off, {sr(SRD_O,4)}, s{S_T0} sc1",
                       f"buffer_load_dword v{V_L}, off, {sr(SRD_PP,4)}, s{S_T0} sc1",
                       f"s_mul_i32 s{S_T0}, s{S_B}, 81920", f"buffer_load_dword v{V_L}, off, {sr(SRD_OUT,4)}, s{S_T0}"]
        nv[16] += [f"s_add_u32 m0, s{S_RW}, {K0}", "L_nopf:"]
    va = sm_valu(ts, (k + 1) & 1)
    for p in range(17):
        A(qk_mfma(p, tq, k & 1) if p < 8 else (pv_mfma(p - 8, tp, k & 1) if p < 16 else l_mfma(tp, k & 1)))
        for x in nv[p]:
            if x.endswith(":"): A.raw(x); continue
            if OPT['nodma'] and x.startswith("buffer_load"): continue
            if OPT['nods'] and x.startswith("ds_read"): continue
            if OPT['nowait'] and x.startswith("s_waitcnt"): continue
            A(x)
        if OPT['novalu']: continue
        for x in va[p]: A(x)

def poll(A, tag, srd, soff, nwords, want, vtmp):
    A(f"s_mov_b32 s{S_SPIN}, {SPIN_MAX}")
    A.label(f"L_poll_{tag}")
    for i in range(nwords // 4):
        A(f"buffer_load_dwordx4 {vr(vtmp + 4*i, 4)}, off, {sr(srd,4)}, s{soff} offset:{16*i} sc1")
    A("s_waitcnt vmcnt(0)")
    for i in range(1, nwords): A(f"v_min_u32 v{vtmp}, v{vtmp}, v{vtmp+i}")
    A("s_nop 0")
    A(f"v_readfirstlane_b32 s{S_T0}, v{vtmp}")
    A("s_nop 3")
    A(f"s_cmp_ge_u32 s{S_T0}, {want}")
    A(f"s_cbranch_scc1 L_done_{tag}")
    A(f"s_sub_u32 s{S_SPIN}, s{S_SPIN}, 1")
    A(f"s_cmp_eq_u32 s{S_SPIN}, 0")
    A(f"s_cbranch_scc1 L_done_{tag}")
    A("s_sleep 1")
    A(f"s_branch L_poll_{tag}")
    A.label(f"L_done_{tag}")

def one_lane(A, instrs):
    A("s_mov_b64 exec, 1")
    for x in instrs: A(x)
    A("s_mov_b64 exec, -1")

def gen():
    A = Asm()
    A("s_cmp_ge_u32 s2, 256")
    A("s_cbranch_scc1 L_end")
    stamp(A, 0)
    stamp_cyc(A, 55)
    A("s_load_dwordx16 s[64:79], s[0:1], 0")
    if OPT['codepf']:
        A("s_getpc_b64 s[30:31]")
        A.label("L_pc")
        A("s_lshr_b32 s60, s2, 3")
        A("v_lshrrev_b32 v2, 6, v0")
        A("v_and_b32 v1, 63, v0")
        A("v_lshl_add_u32 v2, s60, 2, v2")
        A("v_lshl_add_u32 v2, v2, 2, v1")
        A("v_lshlrev_b32 v2, 7, v2")
        A("v_mov_b32 v5, s31")
        A("v_add_co_u32 v4, vcc, s30, v2")
        A("s_nop 1")
        A("v_addc_co_u32 v5, vcc, 0, v5, vcc")
        A("v_cmp_gt_u32 vcc, 4, v1")
        A("s_mov_b32 s60, L_text_main_end-L_pc")
        A("v_cmp_gt_u32 s[62:63], s60, v2")
        A("s_nop 1")
        A("s_and_b64 vcc, vcc, s[62:63]")
        A("s_and_saveexec_b64 s[62:63], vcc")
        A("s_cbranch_execz L_nocpf")
        A("global_load_dword v243, v[4:5], off")
        A.label("L_nocpf")
        A("s_mov_b64 exec, s[62:63]")
    A(f"""
    v_lshrrev_b32 v2, 6, v0
    v_and_b32 v1, 63, v0
    s_and_b32 s{S_G}, s2, 7
    s_lshr_b32 s30, s2, 3
    v_readfirstlane_b32 s{S_W}, v2
    s_lshr_b32 s{S_B}, s30, 2
    s_and_b32 s{S_R}, s30, 3
    s_lshl_b32 s{S_H}, s{S_G}, 2
    s_add_u32 s{S_H}, s{S_H}, s{S_R}
    v_and_b32 v3, 15, v1
    v_lshrrev_b32 v4, 4, v1
    v_bfe_u32 v5, v1, 2, 2
    v_and_b32 v6, 3, v1
    s_lshl_b32 s{S_W1K}, s{S_W}, 10
    s_add_u32 s{S_ROT}, s{S_B}, s{S_R}
    s_and_b32 s{S_ROT}, s{S_ROT}, 3
    """)
    ACC, FA, FB, VX, VAW = 148, (188, 196), (204, 224), 244, 252
    VXD, VWD = 84, 92
    A(f"""
    s_lshl_b32 s30, s{S_W}, 2
    v_add_u32 v8, s30, v4                   ; 4w+gq
    v_xor_b32 v9, v3, v8
    v_lshlrev_b32 v9, 4, v9
    v_lshl_add_u32 v{VXD}, v8, 10, v9
    v_lshlrev_b32 v9, 2, v4
    v_xor_b32 v9, v3, v9
    v_lshlrev_b32 v9, 4, v9
    v_lshl_add_u32 v{VWD}, v8, 13, v9
    s_mul_i32 s31, s{S_B}, 81920
    """)
    for t in range(1, 5): A(f"v_add_u32 v{VXD+t}, {t*16384}, v{VXD}")
    for i in range(1, 4): A(f"v_add_u32 v{VWD+i}, {i*16*8192}, v{VWD}")
    WT = [100, 101, 97, 96, 95, 94, 93, 92]
    XT = [88, 89, 90, 91]
    A(f"s_lshl_b32 s{S_T1}, s{S_H}, 8")
    A(f"s_lshl_b32 s{S_T2}, s{S_ROT}, 1")
    for u in range(8):
        A(f"s_add_u32 s{S_T0}, s{S_T2}, {u}")
        A(f"s_and_b32 s{S_T0}, s{S_T0}, 7")
        A(f"s_lshl_b32 s{S_T0}, s{S_T0}, 19")
        A(f"s_add_u32 s{WT[u]}, s{S_T0}, s{S_T1}")
    for a_ in range(4):
        A(f"s_add_u32 s{S_T0}, s{S_ROT}, {a_}")
        A(f"s_and_b32 s{S_T0}, s{S_T0}, 3")
        A(f"s_lshl_b32 s{S_T0}, s{S_T0}, 8")
        A(f"s_add_u32 s{XT[a_]}, s{S_T0}, s31")
    A("s_waitcnt lgkmcnt(0)")
    if OPT.get('qstamps'): stamp(A, 14)
    A(f"""
    s_mov_b32 s{SRD_X}, s64
    s_mov_b32 s{SRD_X+1}, s65
    s_mov_b32 s{SRD_X+2}, {640*1024}
    s_mov_b32 s{SRD_X+3}, 0x00020000
    s_mov_b32 s{SRD_W}, s70
    s_mov_b32 s{SRD_W+1}, s71
    s_mov_b32 s{SRD_W+2}, {512*8192}
    s_mov_b32 s{SRD_W+3}, 0x00020000
    """)
    pool1 = [w*32768 + V0 + h*4096 for w in range(4) for h in range(2)] + [K1s, K1s + 4096]
    pool2 = [w*32768 + K1s + h*4096 for w in (1, 2, 3) for h in range(2)] + [w*32768 + V1 + h*4096 for w in (0, 1) for h in range(2)]
    xarea = lambda a, t: (pool1 if a < 2 else pool2)[(a & 1) * 5 + t]
    wblk = lambda u, e: [[2*32768 + V1, 3*32768 + V1], [LE, LE + 8192], [LE + 16384, LE + 24576], [K0, 32768 + K0], [2*32768 + K0, 3*32768 + K0]][u % 5][e]
    def xdma(a):
        return [[f"s_add_u32 m0, s{S_W1K}, {xarea(a, t)}", "s_nop 0", f"buffer_load_dwordx4 v{VXD+t}, {sr(SRD_X,4)}, s{XT[a]} offen lds"] for t in range(5)]
    def wdma(u):
        return [[f"s_add_u32 m0, s{S_W1K}, {wblk(u, e) + 4096*hh}", "s_nop 0", f"buffer_load_dwordx4 v{VWD+2*e+hh}, {sr(SRD_W,4)}, s{WT[u]} offen lds"]
                for e in range(2) for hh in range(2)]
    def xread(ks, t, dst):
        p = xarea(ks >> 2, t)
        return f"ds_read_b128 {vr(dst,4)}, v{VX + 4*(p >> 16) + (ks & 3)} offset:{p & 0xffff}"
    def wread(ks, jt, hf, dst):
        p = wblk(ks >> 1, ks & 1)
        return f"ds_read_b64_tr_b16 {vr(dst,2)}, v{VAW + (p >> 16)} offset:{(p & 0xffff) + 1024*hf + 8*jt}"
    for g_ in wdma(0) + xdma(0):
        for x in g_: A(x)
    if OPT.get('touch_kv'):
        A(f"s_lshl_b32 s30, s{S_B}, 3")
        A(f"s_add_u32 s30, s30, s{S_G}")
        A(f"s_lshl_b32 s30, s30, 19")
        A(f"s_add_u32 s{SRD_K}, s66, s30")
        A(f"s_addc_u32 s{SRD_K+1}, s67, 0")
        A(f"s_mov_b32 s{SRD_K+2}, 0x80000")
        A(f"s_mov_b32 s{SRD_K+3}, 0x00020000")
        A(f"s_add_u32 s{SRD_V}, s68, s30")
        A(f"s_addc_u32 s{SRD_V+1}, s69, 0")
        A(f"s_mov_b32 s{SRD_V+2}, 0x80000")
        A(f"s_mov_b32 s{SRD_V+3}, 0x00020000")
        A(f"buffer_load_dword v{V_L}, off, {sr(SRD_K,4)}, 0")
        A(f"buffer_load_dword v{V_L+1}, off, {sr(SRD_V,4)}, 0")
    if OPT.get('qstamps'): stamp(A, 15)
    B = Asm()
    B(f"""
    s_lshl_b32 s{S_RW}, s{S_W}, 15
    s_lshl_b32 s{S_W8}, s{S_W}, 13
    s_mov_b32 s{S_FB}, 0
    s_lshl_b32 s30, s{S_B}, 3
    s_add_u32 s30, s30, s{S_G}               ; b*8+g
    s_lshl_b32 s{S_F1}, s30, 7
    s_lshl_b32 s30, s30, 19
    s_add_u32 s{SRD_K}, s66, s30
    s_addc_u32 s{SRD_K+1}, s67, 0
    s_mov_b32 s{SRD_K+2}, 0x80000
    s_mov_b32 s{SRD_K+3}, 0x00020000
    s_add_u32 s{SRD_V}, s68, s30
    s_addc_u32 s{SRD_V+1}, s69, 0
    s_mov_b32 s{SRD_V+2}, 0x80000
    s_mov_b32 s{SRD_V+3}, 0x00020000
    s_add_u32 s{SRD_O}, s78, {WS_O}
    s_addc_u32 s{SRD_O+1}, s79, 0
    s_mov_b32 s{SRD_O+2}, {5 << 20}
    s_mov_b32 s{SRD_O+3}, 0x00020000
    s_add_u32 s{SRD_PP}, s78, {WS_P}
    s_addc_u32 s{SRD_PP+1}, s79, 0
    s_mov_b32 s{SRD_PP+2}, {5 << 20}
    s_mov_b32 s{SRD_PP+3}, 0x00020000
    s_add_u32 s{SRD_FL}, s78, {WS_F}
    s_addc_u32 s{SRD_FL+1}, s79, 0
    s_mov_b32 s{SRD_FL+2}, 16384
    s_mov_b32 s{SRD_FL+3}, 0x00020000
    s_mov_b32 s{SRD_WO}, s72
    s_mov_b32 s{SRD_WO+1}, s73
    s_mov_b32 s{SRD_WO+2}, {4096*1024}
    s_mov_b32 s{SRD_WO+3}, 0x00020000
    s_mov_b32 s{SRD_DBG}, s76
    s_mov_b32 s{SRD_DBG+1}, s77
    s_mov_b32 s{SRD_DBG+2}, 256
    s_mov_b32 s{SRD_DBG+3}, 0x00020000
    s_mov_b32 s{SRD_OUT}, s74
    s_mov_b32 s{SRD_OUT+1}, s75
    s_mov_b32 s{SRD_OUT+2}, {640*1024}
    s_mov_b32 s{SRD_OUT+3}, 0x00020000
    s_lshl_b32 s30, s{S_B}, 2
    s_add_u32 s30, s30, s{S_R}               ; b*4+r
    s_lshl_b32 s{S_F2}, s30, 7
    s_add_u32 s{S_F2}, s{S_F2}, 8192
    s_lshl_b32 s{S_POFF}, s{S_G}, 19
    s_lshl_b32 s30, s30, 14
    s_add_u32 s{S_POFF}, s{S_POFF}, s30
    s_lshl_b32 s30, s{S_W}, 12
    s_add_u32 s{S_POFF}, s{S_POFF}, s30
    v_lshlrev_b32 v{V_L16}, 4, v1
    v_xor_b32 v7, v4, v3
    v_lshlrev_b32 v7, 4, v7
    v_lshl_add_u32 v7, v3, 8, v7            ; n*256 + (gq^n)*16
    """)
    B(f"s_mov_b32 s{S_R15}, s2")
    table_setup(B)
    for s_ in range(4):
        B(f"v_xor_b32 v{VX+s_}, {64*s_}, v7")
        B(f"v_add_u32 v{VX+4+s_}, 0x10000, v{VX+s_}")
        B(f"v_add_u32 v{V_KA+s_}, s{S_RW}, v{VX+s_}")
    B(f"""
    v_lshl_add_u32 v8, v4, 3, v5
    s_lshl_b32 s30, s{S_W}, 2
    v_add_u32 v9, s30, v6
    v_lshlrev_b32 v2, 2, v5
    v_xor_b32 v9, v9, v2
    v_lshlrev_b32 v9, 4, v9
    v_lshl_add_u32 v9, v8, 8, v9
    v_mov_b32 v{VAW}, v9
    v_add_u32 v{VAW+1}, 0x10000, v9
    v_add_u32 v{VAW+2}, 0x20000, v9
    v_lshl_add_u32 v8, v4, 2, v5
    v_and_b32 v9, 7, v8
    v_lshlrev_b32 v9, 5, v9
    v_lshl_add_u32 v9, v8, 8, v9
    v_lshl_add_u32 v9, v6, 3, v9
    """)
    for dt in range(8):
        B(f"v_xor_b32 v{V_VA+dt}, {32*dt}, v9")
        B(f"v_add_u32 v{V_VA+dt}, s{S_RW}, v{V_VA+dt}")
    B(f"""
    v_xor_b32 v9, v3, v4
    v_lshlrev_b32 v9, 4, v9
    v_lshl_add_u32 v9, v4, 8, v9
    """)
    for i in range(4): B(f"v_xor_b32 v{V_KD+i}, {64*i}, v9")
    B(f"""
    v_lshlrev_b32 v9, 1, v4
    v_xor_b32 v9, v3, v9
    v_lshlrev_b32 v9, 4, v9
    v_lshl_add_u32 v{V_VD}, v4, 8, v9
    v_xor_b32 v{V_VD+1}, 128, v{V_VD}
    """)
    for i in range(32): B(f"v_mov_b32 v{V_VF+i}, 0")
    for i in range(10): B(f"v_mfma_f32_32x32x16_bf16 {ar(A_O+16*i,16)}, {vr(V_VF,4)}, {vr(V_VF,4)}, 0")
    for i in range(4): B(f"v_mov_b32 v{V_P+i}, 0")
    for i in range(8): B(f"v_mov_b32 v{V_S+8+i}, 0xff7fffff")
    spread(A, [x.strip() for x in B.l], wdma(1))
    A(f"s_cmp_eq_u32 s{S_W}, {0 if not OPT.get('noinit') else 7}")
    A("s_cbranch_scc0 L_noclr")
    A(f"s_lshl_b32 s{S_T0}, s{S_R}, 2")
    A(f"s_add_u32 s{S_T0}, s{S_T0}, s{S_F1}")
    A(f"s_lshl_b32 s{S_T1}, s{S_G}, 2")
    A(f"s_add_u32 s{S_T1}, s{S_T1}, s{S_F2}")
    A("v_mov_b32 v2, 0")
    one_lane(A, [f"buffer_store_dword v2, off, {sr(SRD_FL,4)}, s{S_T0} sc1", f"buffer_store_dword v2, off, {sr(SRD_FL,4)}, s{S_T1} sc1"])
    A.label("L_noclr")
    if OPT.get('qstamps'): stamp(A, 16)
    seq0 = ['W0'] * 4 + ['xA'] * 5 + ['W1'] * 4
    A(f"s_waitcnt vmcnt(4)")
    if OPT.get('qstamps'): stamp(A, 17)
    A("s_barrier")
    stamp(A, 1)
    stamp_cyc(A, 56)
    NV = 4 if OPT['qvar'] == 4 else (2 if OPT['qvar'] == 2 else 1)
    if NV == 4:
        for wv in range(1, 4):
            A(f"s_cmp_eq_u32 s{S_W}, {wv}")
            A(f"s_cbranch_scc1 L_qp{wv}")
    if NV == 2:
        A(f"s_cmp_ge_u32 s{S_W}, 2")
        A(f"s_cbranch_scc1 L_qp2")
    for wv in ((0, 1, 2, 3) if NV == 4 else ((0, 2) if NV == 2 else (0,))):
        if wv: A.label(f"L_qp{wv}")
        seq = list(seq0)
        def vm_for(need):
            last = max(i for i, t in enumerate(seq) if t in need)
            return len(seq) - 1 - last
        arrive = [f"s_lshr_b32 s{S_T0}, s{S_F1}, 5", "v_mov_b32 v2, 1", "s_mov_b64 exec, 1",
                  f"buffer_atomic_add v2, off, {sr(SRD_DBG,4)}, s{S_T0} sc1", "s_mov_b64 exec, -1"] if wv == 0 else []
        if NV < 4 and wv == 0: arrive = [f"s_cmp_eq_u32 s{S_W}, 0", "s_cbranch_scc0 L_noarr"] + arrive + ["L_noarr:"]
        kg0, vg0, kg1 = kv_groups('K', 0), kv_groups('V', 0), kv_groups('K', 1)
        kg0[0] = off_calc() + kg0[0]
        kg1[0] = off_calc() + kg1[0]
        ival = {0: [('xB', xdma(1)), ('W2', wdma(2))], 1: [('W3', wdma(3)), ('W4', wdma(4))], 2: [('xC', xdma(2)), ('W5', wdma(5))],
                3: [('W6', wdma(6)), ('xD', xdma(3))], 4: [('W7', wdma(7))], 5: [('K0', kg0)], 6: [('V0', vg0)], 7: []}
        needs = {1: ['W1'], 3: ['xB', 'W2'], 5: ['W3'], 7: ['xC', 'W4'], 9: ['W5'], 11: ['xD', 'W6'], 13: ['W7'], 15: None}
        plan = {}
        for ks in range(16):
            p = {}
            if ks in needs:
                p['pre'] = ([f"s_waitcnt vmcnt({vm_for(needs[ks])})"] if needs[ks] else []) + ["s_barrier"]
                if ks == OPT.get('arrive_ks', 13) and not OPT.get('noinit'): p['pre'] += arrive
            u = (ks + 1) >> 1
            first = (ks & 1) == 1 or ks == 0
            mine = (ks == 0) or (first and wv < 2) or (not first and wv >= 2)
            fill = []
            if NV == 1:
                allg = [(tag, g_) for tag, gs in ival.get(u, []) for g_ in gs]
                h = len(allg) if ks == 0 else (len(allg) + 1) // 2
                part = allg[:h] if first else allg[h:]
                if ks < 15:
                    for tag, g_ in part: fill.append(g_); seq.append(tag)
            elif ks < 15 and mine:
                for tag, gs in ival.get(u, []):
                    fill += gs; seq += [tag] * len(gs)
                if NV == 4: p['burst_gap'] = (4, 5, 7, 9)[wv] if ks == 0 else (4, 9)[wv & 1]
            if ks == 15 and wv < 2:
                fill = kg1; seq += ['K1'] * 8
                if NV == 4: p['burst_gap'] = (0, 9)[wv]
            p['fill'] = fill
            plan[ks] = p
        if OPT.get('qstamps'):
            for i, ks in enumerate((1, 3, 5, 7, 9, 11, 13, 15)): plan[ks]['stamp'] = 22 + i
        if OPT.get('fine'):
            for i, ks in enumerate(OPT['fine']): plan.setdefault(ks, {})['fine'] = 32 + 4 * i
        gemm_core(A, ACC, FA, FB, xread, wread, plan)
        stamp(A, 2)
        stamp_cyc(A, 57)
        A(f"s_mov_b32 s30, {hex(f32(C_SCALE))}")
        A(f"v_add_u32 v8, s{S_W1K}, v{V_L16}")
        A(f"v_add_u32 v8, {LE}, v8")
        A("s_nop 4")
        for t in range(5):
            for jt in range(2):
                d = ACC + (jt*5 + t)*4
                for h in range(2): A(f"v_pk_mul_f32 {vr(d+2*h,2)}, {vr(d+2*h,2)}, s[30:31] op_sel_hi:[1,0]")
            q = FB[0] + 4*t
            for jt in range(2):
                d = ACC + (jt*5 + t)*4
                A(f"v_cvt_pk_bf16_f32 v{q+2*jt}, v{d}, v{d+1}")
                A(f"v_cvt_pk_bf16_f32 v{q+2*jt+1}, v{d+2}, v{d+3}")
            A(f"ds_write_b128 v8, {vr(q,4)} offset:{t*4096}")
            if wv >= 2 and t == (1, 3)[wv - 2]:
                for g_ in kg1:
                    for x in g_: A(x)
        if wv < (3 if NV == 4 else (2 if NV == 2 else 0)): A("s_branch L_qdone")
    A.label("L_qdone")
    if OPT.get('qstamps'): stamp(A, 18)
    A("s_waitcnt vmcnt(16) lgkmcnt(0)")
    if OPT.get('qstamps'): stamp(A, 19)
    A("s_barrier")
    stamp(A, 30)
    A(f"v_add_u32 v8, {LE}, v{V_L16}")
    ST = 188
    if OPT['standin']:
        for s in range(4): A(f"ds_read_b128 {vr(ST+4*s,4)}, v{VX+s} offset:{K0}")
    for t in range(5):
        for s in range(4): A(f"ds_read_b128 {ar(A_Q+(t*4+s)*4,4)}, v8 offset:{(t*4+s)*1024}")
    for p in range(8): A(k_read(p, 0))
    for g_ in kv_groups('V', 1):
        for x in g_: A(x)
    if OPT.get('qstamps'): stamp(A, 32)
    VL2, VA2, VWD2, VCHK = 244, 245, 247, 248
    A(f"""
    v_lshl_add_u32 v8, v4, 2, v5
    s_lshl_b32 s30, s{S_W}, 2
    v_add_u32 v9, s30, v6
    v_lshlrev_b32 v2, 2, v5
    v_xor_b32 v9, v9, v2
    v_lshlrev_b32 v9, 4, v9
    v_lshl_add_u32 v9, v8, 8, v9
    v_add_u32 v8, s30, v4
    v_lshlrev_b32 v2, 2, v4
    v_xor_b32 v2, v3, v2
    v_lshlrev_b32 v2, 4, v2
    """)
    for i in range(20): A(f"v_mov_b32 v{V_LM+i}, 0")
    if OPT['onerow']:
        A("v_cmp_eq_u32 vcc, 0, v3")
        A(f"v_mov_b32 v{V_ONE}, 0x3f803f80")
        A("s_nop 0")
        A(f"v_cndmask_b32 v{V_ONE}, 0, v{V_ONE}, vcc")
        for i in range(1, 4): A(f"v_mov_b32 v{V_ONE+i}, v{V_ONE}")
    else:
        for i in range(4): A(f"v_mov_b32 v{V_ONE+i}, 0x3f803f80")
    if OPT['standin']:
        A("s_waitcnt lgkmcnt(8)")
        for t in range(5):
            for s in range(4):
                d = V_NEG + 4*t
                A(f"v_mfma_f32_16x16x32_bf16 {vr(d,4)}, {vr(ST+4*s,4)}, {ar(A_Q+(t*4+s)*4,4)}, {'0' if s == 0 else vr(d,4)}")
    if OPT.get('qstamps'): stamp(A, 31)
    A(f"v_add_u32 v{VA2}, 0x10000, v9")
    A(f"v_add_u32 v{VA2+1}, 0x20000, v9")
    A(f"v_lshl_add_u32 v{VWD2}, v8, 10, v2")
    A(f"v_add_u32 v{VL2}, 0x10000, v{V_L16}")
    if OPT['standin']:
        T = 204
        A("s_nop 4")
        for t in range(5):
            d = V_NEG + 4*t
            A(f"v_max3_f32 v{T+t}, v{d}, v{d+1}, v{d+2}")
        for t in range(5): A(f"v_max_f32 v{T+t}, v{T+t}, v{V_NEG+4*t+3}")
        for swap in ("v_permlane32_swap_b32", "v_permlane16_swap_b32"):
            for t in range(5): A(f"v_mov_b32 v{T+8+t}, v{T+t}")
            for t in range(5): A(f"{swap} v{T+t}, v{T+8+t}")
            for t in range(5): A(f"v_max_f32 v{T+t}, v{T+t}, v{T+8+t}")
        for t in range(5):
            for r in range(4): A(f"v_xor_b32 v{V_NEG+4*t+r}, 0x80000000, v{T+t}")
    else:
        for i in range(20): A(f"v_mov_b32 v{V_NEG+i}, 0")
    A("s_waitcnt lgkmcnt(0)")
    A("s_barrier")
    A(f"s_mov_b32 s{S_CNT}, 8")
    if OPT.get('vmstall'):
        A("s_mov_b32 s92, 0"); A("s_mov_b32 s93, 0")
    stamp(A, 3)
    stamp_cyc(A, 20)
    A.raw(".p2align 6")
    A.label("L_loop")
    for k in range(10): main_stage(A, k)
    A(f"s_sub_u32 s{S_CNT}, s{S_CNT}, 1")
    A(f"s_cmp_lg_u32 s{S_CNT}, 0")
    A("s_cbranch_scc1 L_loop")
    stamp(A, 4)
    stamp_cyc(A, 21)
    if OPT.get('vmstall'):
        A("v_writelane_b32 v39, s92, 61"); A("v_writelane_b32 v39, s93, 62")
    xarea2 = lambda a, t: (a * 5 + t) * 4096
    VA0 = 9
    wslot = [LE, LE + 16384, 81920, 98304, 114688]
    wblk2 = lambda u, e: (wslot[u % 5] if u < 7 else 0) + 8192 * e
    def wdma2(u):
        pre = [f"s_lshl_b32 s{S_T0}, s{S_R}, 1", f"s_add_u32 s{S_T0}, s{S_T0}, {u}", f"s_and_b32 s{S_T0}, s{S_T0}, 7", f"s_lshl_b32 s{S_T0}, s{S_T0}, 16",
               f"s_add_u32 s{S_WK}, s{S_T0}, s{S_WOB}"]
        l = []
        for e in range(2):
            for hh in range(2):
                l.append([f"s_add_u32 m0, s{S_W1K}, {wblk2(u, e) + 4096*hh}", f"s_add_u32 s{S_T0}, s{S_WK}, {(32*e + 16*hh)*1024}",
                          f"buffer_load_dwordx4 v{VWD2}, {sr(SRD_WO,4)}, s{S_T0} offen lds"])
        l[0] = pre + l[0]
        return l
    def xdma2(a):
        pre = [f"s_add_u32 s{S_T0}, s{S_R}, {a}", f"s_and_b32 s{S_T0}, s{S_T0}, 3", f"s_lshl_b32 s{S_T0}, s{S_T0}, 2",
               f"s_add_u32 s{S_T0}, s{S_T0}, s{S_W}", f"s_mul_i32 s{S_T0}, s{S_T0}, 5120", f"s_add_u32 s{S_XOFF}, s{S_T0}, s{S_XB}"]
        l = []
        for t in range(5):
            l.append([f"s_add_u32 m0, s{S_W1K}, {xarea2(a, t)}", f"s_add_u32 s{S_T0}, s{S_XOFF}, {t*1024}",
                      f"buffer_load_dwordx4 v{V_L16}, {sr(SRD_O,4)}, s{S_T0} offen sc1 lds"])
        l[0] = pre + l[0]
        return l
    flat = lambda gs: [x for g_ in gs for x in g_]
    def xread2(ks, t, dst):
        p = xarea2(ks >> 2, t) + (ks & 3) * 1024
        return f"ds_read_b128 {vr(dst,4)}, v{V_L16 if p < 65536 else VL2} offset:{p & 0xffff}"
    def wread2(ks, jt, hf, dst):
        p = wblk2(ks >> 1, ks & 1)
        return f"ds_read_b64_tr_b16 {vr(dst,2)}, v{(VA2 + (p >> 16) - 1) if p >= 65536 else VA0} offset:{(p & 0xffff) + 4096*hf + 8*jt}"
    A(f"s_lshl_b32 s{S_WOB}, s{S_G}, 19")
    A(f"s_lshl_b32 s{S_T1}, s{S_R}, 8")
    A(f"s_add_u32 s{S_WOB}, s{S_WOB}, s{S_T1}")
    A(f"s_lshl_b32 s30, s{S_B}, 7")
    A(f"s_lshl_b32 s31, s{S_G}, 4")
    A(f"s_add_u32 s30, s30, s31")
    A(f"s_mul_i32 s{S_XB}, s30, 5120")
    va = sm_valu(4, 1)
    for p in range(17):
        if p >= 8: A(pv_mfma(p - 8, 3, 0) if p < 16 else l_mfma(3, 0))
        for x in va[p]: A(x)
        if p < 8 and p % 4 in (1,): A("s_nop 0")
    A("s_nop 1")
    for dt in range(8): A(pv_mfma(dt, 4, 1))
    A(l_mfma(4, 1))
    A.label("L_combine")
    XL = 122880
    A("s_waitcnt vmcnt(0)")
    A("s_barrier")
    A(f"v_lshlrev_b32 v8, 2, v1")
    A(f"s_mul_i32 s30, s{S_W}, 1280")
    A(f"s_add_u32 s30, s30, {XL}")
    A(f"v_add_u32 v9, s30, v8")
    A("s_nop 1")
    for t in range(5): A(f"ds_write_b32 v9, v{V_LM+4*t} offset:{256*t}")
    TO = 60
    for d in range(4):
        A(f"s_cmp_eq_u32 s{S_W}, {d}")
        A(f"s_cbranch_scc1 L_own{d}")
        A(f"s_sub_u32 s30, s{S_W}, {d+1}")
        A(f"s_and_b32 s30, s30, 3")
        A(f"s_mul_i32 s30, s30, 10240")
        A(f"s_add_u32 s30, s30, {d*30720}")
        A(f"v_add_u32 v9, s30, v{V_L16}")
        for t in range(5):
            for j in range(2):
                A(f"ds_write_b128 v9, {ar(A_O + (t*8 + 2*d + j)*4, 4)} offset:{(t*2+j)*1024}")
        A(f"s_branch L_nxt{d}")
        A.label(f"L_own{d}")
        for t in range(5):
            for j in range(2):
                for r in range(4): A(f"v_accvgpr_read_b32 v{TO + (t*2+j)*4 + r}, a{A_O + (t*8 + 2*d + j)*4 + r}")
        A.label(f"L_nxt{d}")
    A("s_waitcnt lgkmcnt(0)")
    A("s_barrier")
    stamp(A, 5)
    stamp_cyc(A, 58)
    TL, RC, TR = 100, 120, 130
    A(f"v_add_u32 v9, {XL}, v8")
    for w in range(4):
        for t in range(5): A(f"ds_read_b32 v{TL + w*5 + t}, v9 offset:{w*1280 + t*256}")
    A(f"s_mul_i32 s30, s{S_W}, 30720")
    A(f"v_add_u32 v9, s30, v{V_L16}")
    rq = lambda q, sl: TR + ((q % 5)*3 + sl)*4
    def rd(q):
        for sl in range(3): A(f"ds_read_b128 {vr(rq(q, sl), 4)}, v9 offset:{(sl*10+q)*1024}")
    for q in range(3): rd(q)
    A("s_waitcnt lgkmcnt(9)")
    for t in range(5):
        A(f"v_add_f32 v{TL+t}, v{TL+t}, v{TL+5+t}")
        A(f"v_add_f32 v{TL+10+t}, v{TL+10+t}, v{TL+15+t}")
    for t in range(5): A(f"v_add_f32 v{TL+t}, v{TL+t}, v{TL+10+t}")
    if OPT['onerow']:
        for swap in ("v_permlane32_swap_b32", "v_permlane16_swap_b32"):
            for t in range(5): A(f"v_mov_b32 v{TL+8+t}, v{TL+t}")
            for t in range(5): A(f"{swap} v{TL+t}, v{TL+8+t}")
            for t in range(5): A(f"v_add_f32 v{TL+t}, v{TL+t}, v{TL+8+t}")
    if OPT['fallback']:
        A(f"v_add_f32 v{TL+9}, v{TL}, v{TL+1}")
        A(f"v_add_f32 v{TL+9}, v{TL+9}, v{TL+2}")
        A(f"v_add_f32 v{TL+9}, v{TL+9}, v{TL+3}")
        A(f"v_add_f32 v{TL+9}, v{TL+9}, v{TL+4}")
        A(f"s_mov_b32 s30, {hex(f32(2.0**40))}")
        A(f"v_cmp_ngt_f32 s[{S_BAD}:{S_BAD+1}], s30, v{TL+9}")
    for t in range(5): A(f"v_rcp_f32 v{RC+2*t}, v{TL+t}")
    OF = 100
    side = wdma2(0) + wdma2(1)
    side.append([f"s_lshl_b32 s{S_T2}, s{S_B}, 5", f"buffer_load_dwordx4 {vr(VCHK,4)}, off, {sr(SRD_DBG,4)}, s{S_T2} sc1",
                 f"buffer_load_dwordx4 {vr(VCHK+4,4)}, off, {sr(SRD_DBG,4)}, s{S_T2} offset:16 sc1"])
    for q in range(10):
        if q + 3 < 10: rd(q + 3)
        if side:
            for x in side.pop(0): A(x)
        A(f"s_waitcnt lgkmcnt({min(9, 3*(9-q))})")
        if q == 9: A("s_barrier")
        o = TO + 4*q
        for sl in range(3):
            for h in range(2):
                A(f"v_pk_add_f32 {vr(o+2*h,2)}, {vr(o+2*h,2)}, {vr(rq(q, sl)+2*h,2)}")
        t = q >> 1
        for h in range(2): A(f"v_pk_mul_f32 {vr(o+2*h,2)}, {vr(o+2*h,2)}, {vr(RC+2*t,2)} op_sel_hi:[1,0]")
    if OPT['fallback']:
        A(f"s_cmp_eq_u64 s[{S_BAD}:{S_BAD+1}], 0")
        A("s_cbranch_scc1 L_sum_ok")
        A(f"s_cmp_eq_u32 s{S_FB}, 0")
        A("s_cbranch_scc1 L_fallback")
        A.label("L_sum_ok")
    for t in range(5):
        for i in range(4): A(f"v_cvt_pk_bf16_f32 v{OF+4*t+i}, v{TO + t*8 + 2*i}, v{TO + t*8 + 2*i + 1}")
    stamp(A, 6)
    A(f"s_lshl_b32 s30, s{S_R}, 2")
    A(f"s_add_u32 s30, s30, s{S_W}")
    A(f"s_mul_i32 s30, s30, 5120")
    A(f"s_add_u32 s30, s30, s{S_XB}")
    for t in range(5):
        if t == 4: A("s_add_u32 s30, s30, 4096")
        A(f"buffer_store_dwordx4 {vr(OF+4*t,4)}, v{V_L16}, {sr(SRD_O,4)}, s30 offen offset:{(t*1024) & 4095} sc1")
    A(f"v_add_u32 v8, s{S_W1K}, v{V_L16}")
    for t in range(5): A(f"ds_write_b128 v8, {vr(OF+4*t,4)} offset:{xarea2(0, t)}")
    A(f"v_add_u32 v{VA0}, 0xffff0000, v{VA2}")
    A("s_waitcnt vmcnt(0) lgkmcnt(0)")
    A("s_barrier")
    A(f"s_cmp_eq_u32 s{S_W}, 0")
    A("s_cbranch_scc0 L_noflag1")
    A(f"s_lshl_b32 s{S_T0}, s{S_R}, 2")
    A(f"s_add_u32 s{S_T0}, s{S_T0}, s{S_F1}")
    A("v_mov_b32 v2, 1")
    one_lane(A, [f"buffer_store_dword v2, off, {sr(SRD_FL,4)}, s{S_T0} sc1"])
    A.label("L_noflag1")
    VF1 = 56 - 56 + 120
    A(f"buffer_load_dwordx4 {vr(VF1,4)}, off, {sr(SRD_FL,4)}, s{S_F1} sc1")
    stamp(A, 7)
    def wait_group(A):
        for i in range(1, 8): A(f"v_min_u32 v{VCHK}, v{VCHK}, v{VCHK+i}")
        A("s_nop 0")
        A(f"v_readfirstlane_b32 s{S_T0}, v{VCHK}")
        A("s_nop 3")
        A(f"s_cmp_ge_u32 s{S_T0}, {4 if not OPT.get('noinit') else 0}")
        A(f"s_cselect_b32 s{S_INIT}, 1, 0")
        A(f"s_cmp_ge_u32 s{S_T0}, {4 if not OPT.get('noinit') else 0}")
        A("s_cbranch_scc1 L_done_init")
        A(f"s_lshl_b32 s{S_T2}, s{S_B}, 5")
        poll(A, "init", SRD_DBG, S_T2, 8, 4, VCHK)
        A("s_waitcnt vmcnt(0)")
        A(f"s_cmp_eq_u32 s{S_INIT}, 1")
        A("s_cbranch_scc0 L_look_again")
        for i in range(1, 4): A(f"v_min_u32 v{VF1}, v{VF1}, v{VF1+i}")
        A("s_nop 0")
        A(f"v_readfirstlane_b32 s{S_T0}, v{VF1}")
        A("s_nop 3")
        A(f"s_cmp_ge_u32 s{S_T0}, 1")
        A("s_cbranch_scc1 L_done_f1")
        A.label("L_look_again")
        poll(A, "f1", SRD_FL, S_F1, 4, 1, VCHK)
        stamp(A, 8)
        for x in flat(xdma2(1) + xdma2(2) + xdma2(3)): A(x)
        A("s_waitcnt vmcnt(10)")
        A("s_barrier")
        stamp(A, 9)
    plan2 = {0: dict(fill=wdma2(2)), 1: dict(pre=["s_barrier"], fill=wdma2(3)), 2: dict(fill=wdma2(4)),
             3: dict(pre=["s_barrier"], late=wait_group),
             4: dict(fill=wdma2(5)), 5: dict(fill=wdma2(6)), 6: dict(fill=wdma2(7)),
             7: dict(pre=["s_waitcnt vmcnt(17)", "s_barrier"]),
             9: dict(pre=["s_waitcnt vmcnt(8)", "s_barrier"]),
             11: dict(pre=["s_waitcnt vmcnt(4)", "s_barrier"]),
             13: dict(pre=["s_waitcnt vmcnt(0)", "s_barrier"])}
    gemm_core(A, ACC, FA, FB, xread2, wread2, plan2)
    stamp(A, 10)
    stamp_cyc(A, 59)
    A(f"""
    s_lshl_b32 s30, s{S_B}, 2
    s_add_u32 s30, s30, s{S_R}
    s_lshl_b32 s30, s30, 2
    s_mul_i32 s{S_XB}, s30, 40960
    s_mul_i32 s30, s{S_W}, 40960
    s_add_u32 s30, s30, s{S_XB}
    s_lshl_b32 s31, s{S_G}, 10
    s_add_u32 s30, s30, s31
    """)
    PB = 60
    for t in range(5):
        d0, d1 = ACC + 4*t, ACC + 4*(5 + t)
        A(f"v_cvt_pk_bf16_f32 v{PB+4*t}, v{d0}, v{d0+1}")
        A(f"v_cvt_pk_bf16_f32 v{PB+4*t+1}, v{d0+2}, v{d0+3}")
        A(f"v_cvt_pk_bf16_f32 v{PB+4*t+2}, v{d1}, v{d1+1}")
        A(f"v_cvt_pk_bf16_f32 v{PB+4*t+3}, v{d1+2}, v{d1+3}")
        A(f"s_add_u32 s31, s30, {t*8192}")
        A(f"buffer_store_dwordx4 {vr(PB+4*t,4)}, v{V_L16}, {sr(SRD_PP,4)}, s31 offen sc1")
    A("s_waitcnt vmcnt(0)")
    A("s_barrier")
    A(f"s_cmp_eq_u32 s{S_W}, 0")
    A("s_cbranch_scc0 L_noflag2")
    A(f"s_lshl_b32 s{S_T0}, s{S_G}, 2")
    A(f"s_add_u32 s{S_T0}, s{S_T0}, s{S_F2}")
    A("v_mov_b32 v2, 1")
    one_lane(A, [f"buffer_store_dword v2, off, {sr(SRD_FL,4)}, s{S_T0} sc1"])
    A.label("L_noflag2")
    stamp(A, 11)
    A(f"s_lshl_b32 s30, s{S_W}, 3")
    A(f"s_add_u32 s30, s30, s{S_G}")
    A("s_cmp_ge_u32 s30, 20")
    A("s_cbranch_scc1 L_fin")
    poll(A, "f2", SRD_FL, S_F2, 8, 1, VCHK)
    stamp(A, 12)
    A(f"s_mul_hi_u32 s31, s30, {(1 << 32)//5 + 1}")
    A(f"s_mul_i32 s{S_T0}, s31, 5")
    A(f"s_sub_u32 s{S_T1}, s30, s{S_T0}              ; t")
    A(f"s_mul_i32 s{S_T0}, s31, 40960")
    A(f"s_add_u32 s{S_T0}, s{S_T0}, s{S_XB}")
    A(f"s_lshl_b32 s{S_T2}, s{S_T1}, 13")
    A(f"s_add_u32 s{S_T0}, s{S_T0}, s{S_T2}")
    RB = 60
    for g in range(8):
        if g == 4: A(f"s_add_u32 s{S_T0}, s{S_T0}, 4096")
        A(f"buffer_load_dwordx4 {vr(RB + 4*g, 4)}, v{V_L16}, {sr(SRD_PP,4)}, s{S_T0} offen offset:{(g%4)*1024} sc1")
    A(f"""
    s_mul_i32 s{S_T0}, s{S_B}, 80
    s_lshl_b32 s{S_T1}, s{S_T1}, 4
    s_add_u32 s{S_T0}, s{S_T0}, s{S_T1}
    v_add_u32 v8, s{S_T0}, v3
    v_lshlrev_b32 v8, 10, v8
    s_lshl_b32 s{S_T0}, s{S_R}, 2
    s_add_u32 s{S_T0}, s{S_T0}, s31
    s_lshl_b32 s{S_T0}, s{S_T0}, 6
    v_lshl_add_u32 v8, v4, 4, v8
    v_add_u32 v8, s{S_T0}, v8
    """)
    SUM, UN = 100, 110
    for g in range(8):
        A(f"s_waitcnt vmcnt({7-g})")
        dst = SUM if g == 0 else UN
        for i in range(4):
            A(f"v_lshlrev_b32 v{dst+2*i}, 16, v{RB+4*g+i}")
            A(f"v_and_b32 v{dst+2*i+1}, 0xffff0000, v{RB+4*g+i}")
        if g:
            for i in range(4): A(f"v_pk_add_f32 {vr(SUM+2*i,2)}, {vr(SUM+2*i,2)}, {vr(UN+2*i,2)}")
    for i in range(4): A(f"v_cvt_pk_bf16_f32 v{RB+64+i}, v{SUM+2*i}, v{SUM+2*i+1}")
    A(f"buffer_store_dwordx4 {vr(RB+64,4)}, v8, {sr(SRD_OUT,4)}, 0 offen")
    A.label("L_fin")
    A("s_waitcnt vmcnt(0)")
    stamp(A, 13)
    stamp_cyc(A, 60)
    stamp_out(A)
    if OPT.get('amp'):
        i0, i1, M = OPT['amp']
        A(f"s_add_u32 s30, s{S_R15}, s{S_W}")
        A("s_cmp_eq_u32 s30, 0")
        A("s_cbranch_scc0 L_end")
        A(f"v_readlane_b32 s30, v39, {i0}")
        A(f"v_readlane_b32 s31, v39, {i1}")
        A("s_nop 3")
        A("s_sub_u32 s30, s31, s30")
        A("s_min_u32 s30, s30, 10000")
        A(f"s_mul_i32 s30, s30, {M}")
        A("s_memrealtime s[64:65]")
        A("s_waitcnt lgkmcnt(0)")
        A.label("L_amp")
        A("s_sleep 4")
        A("s_memrealtime s[66:67]")
        A("s_waitcnt lgkmcnt(0)")
        A("s_sub_u32 s31, s66, s64")
        A("s_cmp_lt_u32 s31, s30")
        A("s_cbranch_scc1 L_amp")
    A.label("L_end")
    A("s_endpgm")
    A.label("L_text_main_end")
    if OPT['fallback']: gen_fallback(A)
    A.label("L_text_end")
    A("s_endpgm")
    return A.text()

def gen_fallback(A):
    M, AL, T = V_NEG, V_NEG + 8, 148
    SF = 160
    A.label("L_fallback")
    A(f"s_mov_b32 s{S_FB}, 1")
    for i in range(160): A(f"v_accvgpr_write_b32 a{A_O+i}, 0")
    for i in range(10): A(f"v_mov_b32 v{V_L+i}, 0")
    for t in range(5): A(f"v_mov_b32 v{M+t}, 0xff7fffff")
    A(f"s_mov_b32 s{S_CNT}, 16")
    A(f"s_mov_b32 s{S_OFF}, s{S_W8}")
    A.label("L_fb_loop")
    A(f"s_add_u32 s{S_OFF2}, s{S_OFF}, 4096")
    for x in with_m0_gap(kv_dma('K', 0)) + with_m0_gap(kv_dma('V', 0)): A(x)
    A("s_waitcnt vmcnt(0)")
    for p in range(8): A(k_read(p, 0))
    for dt in range(8):
        for hf in range(2): A(v_read(dt, hf, 0))
    A("s_waitcnt lgkmcnt(0)")
    for t in range(5):
        for p in range(8):
            kt, s = p >> 2, p & 3
            d = SF + 8*t + 4*kt
            A(f"v_mfma_f32_16x16x32_bf16 {vr(d,4)}, {vr(V_KF+4*p,4)}, {ar(A_Q+(t*4+s)*4,4)}, {'0' if s == 0 else vr(d,4)}")
    A("s_nop 7")
    for t in range(5):
        d = SF + 8*t
        A(f"v_max3_f32 v{T+t}, v{d}, v{d+1}, v{d+2}")
        A(f"v_max3_f32 v{T+t}, v{T+t}, v{d+3}, v{d+4}")
        A(f"v_max3_f32 v{T+t}, v{T+t}, v{d+5}, v{d+6}")
        A(f"v_max3_f32 v{T+t}, v{T+t}, v{d+7}, v{M+t}")
    A("s_nop 1")
    for swap in ("v_permlane32_swap_b32", "v_permlane16_swap_b32"):
        for t in range(5): A(f"v_mov_b32 v{T+5+t}, v{T+t}")
        for t in range(5): A(f"{swap} v{T+t}, v{T+5+t}")
        for t in range(5): A(f"v_max_f32 v{T+t}, v{T+t}, v{T+5+t}")
    for t in range(5): A(f"v_sub_f32 v{AL+t}, v{M+t}, v{T+t}")
    for t in range(5): A(f"v_exp_f32 v{AL+t}, v{AL+t}")
    for t in range(5): A(f"v_mov_b32 v{M+t}, v{T+t}")
    for t in range(5):
        for i in range(8): A(f"v_sub_f32 v{SF+8*t+i}, v{SF+8*t+i}, v{M+t}")
    for t in range(5):
        for i in range(8): A(f"v_exp_f32 v{SF+8*t+i}, v{SF+8*t+i}")
    A("s_nop 0")
    for t in range(5):
        A(f"v_mul_f32 v{V_L+2*t}, v{V_L+2*t}, v{AL+t}")
        for i in range(8): A(f"v_add_f32 v{V_L+2*t}, v{V_L+2*t}, v{SF+8*t+i}")
    for t in range(5):
        for i in range(32):
            A(f"v_accvgpr_read_b32 v{T+10}, a{A_O+t*32+i}")
            A(f"v_mul_f32 v{T+10}, v{T+10}, v{AL+t}")
            A(f"v_accvgpr_write_b32 a{A_O+t*32+i}, v{T+10}")
    PF = 200
    for t in range(5):
        for i in range(4): A(f"v_cvt_pk_bf16_f32 v{PF+4*t+i}, v{SF+8*t+2*i}, v{SF+8*t+2*i+1}")
    A("s_nop 1")
    for t in range(5):
        for dt in range(8):
            o = A_O + (t*8 + dt)*4
            A(f"v_mfma_f32_16x16x32_bf16 {ar(o,4)}, {vr(V_VF+4*dt,4)}, {vr(PF+4*t,4)}, {ar(o,4)}")
    A("s_nop 7")
    A(f"s_add_u32 s{S_OFF}, s{S_OFF}, 0x8000")
    A(f"s_sub_u32 s{S_CNT}, s{S_CNT}, 1")
    A(f"s_cmp_lg_u32 s{S_CNT}, 0")
    A("s_cbranch_scc1 L_fb_loop")
    XL = 0
    A("s_barrier")
    A(f"v_lshlrev_b32 v8, 2, v1")
    A(f"s_mul_i32 s30, s{S_W}, 1280")
    A(f"s_add_u32 s30, s30, {XL}")
    A(f"v_add_u32 v9, s30, v8")
    for t in range(5): A(f"ds_write_b32 v9, v{M+t} offset:{256*t}")
    A("s_waitcnt lgkmcnt(0)")
    A("s_barrier")
    for w in range(4):
        for t in range(5): A(f"ds_read_b32 v{SF + w*5 + t}, v8 offset:{XL + w*1280 + t*256}")
    A("s_waitcnt lgkmcnt(0)")
    for t in range(5):
        A(f"v_max3_f32 v{T+t}, v{SF+t}, v{SF+5+t}, v{SF+10+t}")
        A(f"v_max_f32 v{T+t}, v{T+t}, v{SF+15+t}")
        A(f"v_sub_f32 v{AL+t}, v{M+t}, v{T+t}")
    for t in range(5): A(f"v_exp_f32 v{AL+t}, v{AL+t}")
    A("s_nop 0")
    for t in range(5): A(f"v_mul_f32 v{V_L+2*t}, v{V_L+2*t}, v{AL+t}")
    for swap in ("v_permlane32_swap_b32", "v_permlane16_swap_b32"):
        for t in range(5): A(f"v_mov_b32 v{V_L+2*t+1}, v{V_L+2*t}")
        for t in range(5): A(f"{swap} v{V_L+2*t}, v{V_L+2*t+1}")
        for t in range(5): A(f"v_add_f32 v{V_L+2*t}, v{V_L+2*t}, v{V_L+2*t+1}")
    for t in range(5):
        for i in range(32):
            A(f"v_accvgpr_read_b32 v{T+10}, a{A_O+t*32+i}")
            A(f"v_mul_f32 v{T+10}, v{T+10}, v{AL+t}")
            A(f"v_accvgpr_write_b32 a{A_O+t*32+i}, v{T+10}")
    if OPT['onerow']:
        A("v_cmp_gt_u32 vcc, 16, v1")
        A("s_nop 1")
        for t in range(5): A(f"v_cndmask_b32 v{V_LM+4*t}, 0, v{V_L+2*t}, vcc")
    else:
        for t in range(5): A(f"v_mov_b32 v{V_LM+4*t}, v{V_L+2*t}")
    A("s_waitcnt vmcnt(0)")
    A("s_branch L_combine")

def build():
    s = HEADER + "; @launch grid=(256,1,1) block=(256,1,1) lds=163840\n"
    s += '.amdgcn_target "amdgcn-amd-amdhsa--gfx950"\n.text\n' + kernel_start(NAME) + gen()
    s += '.section .rodata,"a"\n.p2align 6\n' + kernel_desc(NAME, 512, 256, 102)
    return s

if __name__ == "__main__":
    out = sys.argv[1]
    for kv in sys.argv[2:]:
        k_, v_ = kv.split("=")
        OPT[k_] = eval(v_)
    open(out, "w").write(build())
```

```python
import sys, struct, math
from lib import *

def f32(x): return struct.unpack("<I", struct.pack("<f", x))[0]
C_SCALE = math.log2(math.e) / math.sqrt(128.0)
NAME = "standalone__gqa_block_cached__near_ridge_kernel"

WS_O = 0
WS_P = 8 << 20
WS_F = 24 << 20
WS_ST = 64 << 20
OPT = dict(standin=True, fallback=True, stamps=False, nodma=False, nods=False, novalu=False, nowait=False, wopf=True, order='X', kvpol='', codepf=True, qvar=2, onerow=False, souter=False, peel_first=True)

V_KA, V_VA, V_KD, V_VD, V_L, V_L16, V_NEG, V_S, V_P, V_KF, V_VF = 10, 14, 22, 26, 28, 38, 40, 60, 76, 84, 116
A_O, A_Q = 0, 160
S_G, S_B, S_R, S_W, S_H, S_RW = 24, 25, 26, 27, 28, 29
S_T, S_R15, S_W8, S_END, S_OFF, S_OFF2, S_CNT, S_W1K, S_XOFF, S_WK, S_ROT, S_FB = 32, 33, 34, 35, 36, 37, 38, 39, 40, 41, 42, 43
S_T0, S_T1, S_T2, S_SPIN = 60, 61, 62, 63
S_TAB = 2
SRD_X, SRD_K, SRD_V, SRD_W, SRD_O, SRD_WO, SRD_PP, SRD_FL, SRD_DBG, SRD_OUT = 4, 8, 12, 16, 20, 44, 48, 52, 56, 84
S_POFF, S_F1, S_F2, S_XB, S_WOB, S_BAD, S_INIT = 80, 81, 82, 83, 88, 90, 89
K0, K1s, V0, V1 = 0, 8192, 16384, 24576
LE = 131072
SPIN_MAX = 20000

def stamp(A, i):
    if not OPT['stamps']: return
    A("s_memrealtime s[98:99]")
    A("s_waitcnt lgkmcnt(0)")
    A(f"v_writelane_b32 v39, s98, {i}")
def stamp_cyc(A, i):
    if not OPT['stamps']: return
    A("s_memtime s[98:99]")
    A("s_waitcnt lgkmcnt(0)")
    A(f"v_writelane_b32 v39, s98, {i}")
def stamp_out(A):
    if not OPT['stamps']: return
    A("s_load_dwordx2 s[92:93], s[0:1], 56")
    A("s_waitcnt lgkmcnt(0)")
    A(f"s_add_u32 s92, s92, {WS_ST}")
    A("s_addc_u32 s93, s93, 0")
    A("s_mov_b32 s94, 0x100000")
    A("s_mov_b32 s95, 0x00020000")
    A(f"s_lshl_b32 s96, s{S_R15}, 2")
    A(f"s_add_u32 s96, s96, s{S_W}")
    A("s_lshl_b32 s96, s96, 8")
    A("v_lshlrev_b32 v2, 2, v1")
    A("buffer_store_dword v39, v2, s[92:95], s96 offen")
    A("s_waitcnt vmcnt(0)")

def gemm_core(A, acc, FA, FB, xread, wread, plan):
    def reads(ks):
        buf = ks & 1
        w = [wread(ks, jt, hf, FA[buf] + 4 * jt + 2 * hf) for jt in range(2) for hf in range(2)]
        x = [xread(ks, t, FB[buf] + 4 * t) for t in range(5)]
        return [w[0], w[1], x[0], w[2], w[3], x[1], x[2], x[3], x[4]]
    for r in reads(0): A(r)
    for ks in range(16):
        buf = ks & 1
        p = plan.get(ks, {})
        fine = p.get('fine')
        if fine is not None: stamp_cyc(A, fine)
        A("s_waitcnt lgkmcnt(0)")
        for x in p.get('pre', []):
            A(x)
            if fine is not None and x.startswith("s_waitcnt vmcnt"): stamp_cyc(A, fine + 1)
            if fine is not None and x == "s_barrier": stamp_cyc(A, fine + 2)
        if p.get('stamp') is not None: stamp(A, p['stamp'])
        extra = list(p.get('fill', []))
        late = p.get('late')
        fill = reads(ks + 1) if (ks < 15 and late is None) else []
        m = 0
        groups = extra; extra = []
        for t in range(5):
            for jt in range(2):
                d = acc + (jt * 5 + t) * 4
                c = "0" if ks == 0 else vr(d, 4)
                A(f"v_mfma_f32_16x16x32_bf16 {vr(d,4)}, {vr(FA[buf]+4*jt,4)}, {vr(FB[buf]+4*t,4)}, {c}")
                n = 0
                while fill and n < 2: A(fill.pop(0)); n += 1
                bg = p.get('burst_gap')
                if bg is not None:
                    if m == bg:
                        for g_ in groups:
                            for x in g_: A(x)
                        groups = []
                elif not fill and groups and m >= 3:
                    k = (len(groups) + (9 - m)) // (10 - m)
                    for _ in range(min(k, len(groups))):
                        for x in groups.pop(0): A(x)
                m += 1
        for g_ in groups:
            for x in g_: A(x)
        for e in extra: A(e)
        if fine is not None: stamp_cyc(A, fine + 3)
        if late is not None:
            late(A) if callable(late) else [A(x) for x in late]
            if ks < 15:
                for r in reads(ks + 1): A(r)

def segments(scheme, phi):
    if scheme == 'rot4': return None
    return {'X': [[1,4,4,4,3], [2,4,4,4,2], [3,4,4,4,1], [4,4,4,4]],
            'Y': [[2,4,4,4,2], [2,1,4,4,4,1], [2,1,1,4,4,4], [2,1,1,1,4,4,3]],
            'Z': [[1,4,4,4,3], [1,1,4,4,4,2], [1,1,1,4,4,4,1], [1,1,1,1,4,4,4]],
            'Y2': [[2,4,4,4,2], [2,2,4,4,4], [2,3,4,4,3], [2,4,4,4,2]],
            'L': [[1]*16]*4,
            'R2': [[2]*8, [1] + [2]*7 + [1], [2]*8, [1] + [2]*7 + [1]],
            'R4': [[4]*4]*4,
            'U': [[1,4,4,4,3]]*4,
            'X2': [[1,4,4,4,3], [1,1,4,4,4,2], [3,4,4,4,1], [4,4,4,4]],
            'X3': [[1,4,4,4,3], [2,4,4,4,2], [1,2,4,4,4,1], [4,4,4,4]],
            'X4': [[2,4,4,4,2], [3,4,4,4,1], [4,4,4,4], [1,4,4,4,3]],
            'R3': [[1,3,3,3,3,3], [2,3,3,3,3,2], [3,3,3,3,3,1], [1,3,3,3,3,3]],
            'R8': [[4,4,4,4], [2,4,4,4,2], [4,4,4,4], [2,4,4,4,2]]}[scheme][phi]
def tile_order(scheme, phi, r):
    seg = segments(scheme, phi)
    if seg is None:
        return [((i + phi) & 12) | ((i + phi + r) & 3) for i in range(16)]
    out = []; s0 = 0
    for n in seg:
        out += [s0 + ((u + r) % n) for u in range(n)]; s0 += n
    assert sorted(out) == list(range(16)), (scheme, phi, r, out)
    return out
def table_setup(A):
    A(f"s_and_b32 s{S_T0}, s{S_B}, 3")
    A(f"s_lshl_b32 s{S_T0}, s{S_T0}, 2")
    A(f"s_add_u32 s{S_T0}, s{S_T0}, s{S_R}")
    for idx in range(16):
        o = tile_order(OPT['order'], idx >> 2, idx & 3)
        v = sum(t << (4 * i) for i, t in enumerate(o))
        if idx == 0:
            A(f"s_mov_b32 s{S_TAB}, {hex(v & 0xffffffff)}"); A(f"s_mov_b32 s{S_TAB+1}, {hex(v >> 32)}")
        else:
            A(f"s_cmp_eq_u32 s{S_T0}, {idx}")
            A(f"s_cselect_b32 s{S_TAB}, {hex(v & 0xffffffff)}, s{S_TAB}")
            A(f"s_cselect_b32 s{S_TAB+1}, {hex(v >> 32)}, s{S_TAB+1}")
    A(f"s_mov_b32 s{S_T}, 0")
def off_calc():
    return [f"s_and_b32 s{S_T0}, s{S_TAB}, 15",
            f"s_lshl_b32 s{S_T0}, s{S_T0}, 15",
            f"s_or_b32 s{S_OFF}, s{S_T0}, s{S_W8}",
            f"s_lshr_b64 s[{S_TAB}:{S_TAB+1}], s[{S_TAB}:{S_TAB+1}], 4",
            f"s_cmp_ge_u32 s{S_T}, 16",
            f"s_cselect_b32 s{S_OFF}, 0x80000, s{S_OFF}",
            f"s_add_u32 s{S_OFF2}, s{S_OFF}, 4096",
            f"s_add_u32 s{S_T}, s{S_T}, 1"]
def kv_dma(which, slot):
    srd = SRD_K if which == 'K' else SRD_V
    base = (K0, K1s)[slot] if which == 'K' else (V0, V1)[slot]
    l = []
    for half in range(2):
        l.append(f"s_add_u32 m0, s{S_RW}, {base + 4096 * half}")
        so = S_OFF if half == 0 else S_OFF2
        for i in range(4):
            vo = V_KD + i if which == 'K' else V_VD + (i & 1)
            l.append(f"buffer_load_dwordx4 v{vo}, {sr(srd,4)}, s{so} offen offset:{1024*i} {OPT['kvpol']} lds".replace("  ", " "))
    return l
def with_m0_gap(l):
    out = []
    for x in l:
        out.append(x)
        if x.startswith("s_add_u32 m0"): out.append("s_nop 0")
    return out
def kv_groups(which, slot):
    d = kv_dma(which, slot)
    return [[d[0], "s_nop 0", d[1]], [d[2]], [d[3]], [d[4]], [d[5], "s_nop 0", d[6]], [d[7]], [d[8]], [d[9]]]
def spread(A, main, groups, start=0):
    n = len(main); g = list(groups); k = len(g)
    pos = [start + (n - start) * (i + 1) // (k + 1) for i in range(k)]
    for i, x in enumerate(main):
        while pos and pos[0] <= i and not x.startswith(("s_addc", "s_cselect", "s_cbranch")):
            pos.pop(0)
            for y in g.pop(0): A(y)
        A(x)
    for gg in g:
        for y in gg: A(y)
def k_read(p, slot):
    kt, s = p >> 2, p & 3
    return f"ds_read_b128 {vr(V_KF + 4*p, 4)}, v{V_KA + s} offset:{(K0, K1s)[slot] + 4096*kt}"
def v_read(dt, hf, slot):
    return f"ds_read_b64_tr_b16 {vr(V_VF + 4*dt + 2*hf, 2)}, v{V_VA + dt} offset:{(V0, V1)[slot] + 4096*hf}"
def frag_of(slot):
    return ((slot & 1) * 4 + (slot >> 1)) if OPT['souter'] else slot
def qk_mfma(slot, tq, sbuf):
    p = frag_of(slot)
    kt, s = p >> 2, p & 3
    d = V_S + 8 * sbuf + 4 * kt
    c = vr(V_NEG + 4 * tq, 4) if s == 0 else vr(d, 4)
    return f"v_mfma_f32_16x16x32_bf16 {vr(d,4)}, {vr(V_KF + 4*p, 4)}, {ar(A_Q + (tq*4 + s)*4, 4)}, {c}"
def pv_mfma(dt, tp, pbuf):
    o = A_O + (tp * 8 + dt) * 4
    return f"v_mfma_f32_16x16x32_bf16 {ar(o,4)}, {vr(V_VF + 4*dt, 4)}, {vr(V_P + 4*pbuf, 4)}, {ar(o,4)}"
V_LM, V_ONE = 148, 168
def l_mfma(tp, pbuf):
    d = V_LM + 4 * tp
    return f"v_mfma_f32_16x16x32_bf16 {vr(d,4)}, {vr(V_ONE,4)}, {vr(V_P + 4*pbuf, 4)}, {vr(d,4)}"
def sm_valu(ts, buf):
    S = V_S + 8 * buf; P = V_P + 4 * buf
    g = [[] for _ in range(17)]
    for q in range(4):
        e0, e1 = S + 2 * q, S + 2 * q + 1
        g[4*q + 0].append(f"v_exp_f32 v{e0}, v{e0}")
        g[4*q + 1].append(f"v_exp_f32 v{e1}, v{e1}")
        g[4*q + 2].append(f"v_cvt_pk_bf16_f32 v{P + q}, v{e0}, v{e1}")
    return g

def stage_plan(km, par):
    it = []
    kd, vd = kv_dma('K', par), kv_dma('V', par)
    kl = kd[1:5] + kd[6:10]; vl = vd[1:5] + vd[6:10]
    if km == 0:
        for i, x in enumerate(off_calc()): it.append((i // 2, None, x))
        it.append((5, None, "s_waitcnt lgkmcnt(0)"))
        it.append((6, None, kd[0]))
        it += [(7, 'K', kl[0]), (11, 'K', kl[1]), (15, 'K', kl[2])]
    if km == 1:
        it += [(3, 'K', kl[3]), (4, None, kd[5]), (7, 'K', kl[4])]
        it.append((9, 'waitV', None))
        rd = [(10, 0, 0), (11, 0, 1), (11, 1, 0), (14, 1, 1), (15, 2, 0), (15, 2, 1), (16, 3, 0), (16, 3, 1)]
        for g_, dt, hf in rd: it.append((g_, None, v_read(dt, hf, par)))
        it.append((12, 'K', kl[5]))
    if km == 2:
        rd = [(2, 4, 0), (2, 4, 1), (3, 5, 0), (3, 5, 1), (6, 6, 0), (6, 6, 1), (7, 7, 0), (7, 7, 1)]
        for g_, dt, hf in rd: it.append((g_, None, v_read(dt, hf, par)))
        it += [(7, None, "s_waitcnt lgkmcnt(8)"), (11, 'K', kl[6]), (11, None, "s_waitcnt lgkmcnt(2)"), (14, None, "s_waitcnt lgkmcnt(0)"), (16, 'K', kl[7])]
    if km == 3:
        it += [(0, None, vd[0]), (3, 'V', vl[0]), (7, 'V', vl[1]), (11, 'V', vl[2]), (15, 'V', vl[3]), (16, 'waitK', None)]
    if km == 4:
        rd = [(2, 0), (3, 1), (3, 2), (6, 3), (7, 4), (7, 5), (10, 6), (11, 7)]
        for g_, p in rd: it.append((g_, None, k_read(frag_of(p), 1 - par)))
        it += [(0, None, vd[5]), (4, 'V', vl[4]), (8, 'V', vl[5]), (12, 'V', vl[6]), (15, 'V', vl[7]), (16, None, "s_waitcnt lgkmcnt(2)")]
    return it
def vm_counts():
    seq = []
    waits = {}
    for j in range(3):
        for k in range(10):
            par = 0 if k < 5 else 1
            n = 2 * j + 2 + par
            for g_, tag, x in sorted(stage_plan(k % 5, par), key=lambda e: e[0]):
                if tag in ('K', 'V'): seq.append((tag, n))
                if tag == 'waitV' and j == 2:
                    need = ('V', 2 * j + par)
                    waits[('V', par)] = len(seq) - 1 - max(i for i, u in enumerate(seq) if u == need)
                if tag == 'waitK' and j == 2:
                    need = ('K', 2 * j + 1 + par)
                    waits[('K', par)] = len(seq) - 1 - max(i for i, u in enumerate(seq) if u == need)
    return waits

def main_stage(A, k, last=False, extra=None, first=False):
    tq, ts, tp = k % 5, (k + 4) % 5, (k + 3) % 5
    nv = [[] for _ in range(17)]
    par = 0 if k < 5 else 1
    km = k % 5
    vm = vm_counts()
    for g_, tag, x in stage_plan(km, par):
        if last:
            if tag in ('K', 'V') or (x and (x.startswith("s_add_u32 m0") or x in off_calc())): continue
            if k == 9 and x and x.startswith(("ds_read", "s_waitcnt")): continue
            if tag == 'waitV': nv[g_].append(f"s_waitcnt vmcnt({16 if par == 0 else 0})"); continue
            if tag == 'waitK':
                if par == 0: nv[g_].append("s_waitcnt vmcnt(8)")
                continue
        if tag == 'waitV': x = f"s_waitcnt vmcnt({vm[('V', par)]})"
        if tag == 'waitK': x = f"s_waitcnt vmcnt({vm[('K', par)]})"
        if tag in ('waitV', 'waitK') and OPT.get('vmstall'):
            acc = 92 if tag == 'waitV' else 93
            nv[g_] += ["s_memtime s[94:95]", "s_waitcnt lgkmcnt(0)", x, "s_memtime s[96:97]", "s_waitcnt lgkmcnt(0)", "s_sub_u32 s96, s96, s94", f"s_add_u32 s{acc}, s{acc}, s96"]
            continue
        nv[g_].append(x)
    if k == 0 and not last and not first and OPT['wopf']:
        nv[16] += [f"s_cmp_eq_u32 s{S_CNT}, 1", "s_cbranch_scc1 L_side", "L_side_back:"]
    if extra:
        for g_, x in extra: nv[g_].append(x)
    va = sm_valu(ts, (k + 1) & 1)
    if first and k == 0: va = [[] for _ in range(17)]
    for p in range(17):
        if p < 8 or not first: A(qk_mfma(p, tq, k & 1) if p < 8 else (pv_mfma(p - 8, tp, k & 1) if p < 16 else l_mfma(tp, k & 1)))
        elif va[p] and va[p][0].startswith("v_cvt"): A("s_nop 0")
        for x in nv[p]:
            if x.endswith(":"): A.raw(x); continue
            if OPT['nodma'] and x.startswith("buffer_load"): continue
            if OPT['nods'] and x.startswith("ds_read"): continue
            if OPT['nowait'] and x.startswith("s_waitcnt"): continue
            A(x)
        if OPT['novalu']: continue
        for x in va[p]: A(x)

XL = 122880
TO, VXA = 176, 236
def xaddr(A):
    for j in range(1, 4):
        A(f"s_add_u32 s30, s{S_W}, {j}")
        A(f"s_and_b32 s30, s30, 3")
        A(f"s_mul_i32 s30, s30, 30720")
        A(f"s_add_u32 s30, s30, {(j-1)*10240}")
        A(f"v_add_u32 v{VXA+j-1}, s30, v{V_L16}")
    A(f"v_lshlrev_b32 v8, 2, v1")
    A(f"s_mul_i32 s30, s{S_W}, 1280")
    A(f"s_add_u32 s30, s30, {XL}")
    A(f"v_add_u32 v{VXA+3}, s30, v8")
def xsend(t):
    l = []
    for j in range(1, 4):
        for h in range(2): l.append(f"ds_write_b128 v{VXA+j-1}, {ar(A_O + (t*8 + 2*j + h)*4, 4)} offset:{(t*2+h)*1024}")
    for h in range(2):
        for r in range(4): l.append(f"v_accvgpr_read_b32 v{TO + (t*2+h)*4 + r}, a{A_O + (t*8 + h)*4 + r}")
    return l
def lsend():
    return [f"ds_write_b32 v{VXA+3}, v{V_LM+4*t} offset:{256*t}" for t in range(5)]

def poll(A, tag, srd, soff, nwords, want, vtmp):
    A(f"s_mov_b32 s{S_SPIN}, {SPIN_MAX}")
    A.label(f"L_poll_{tag}")
    for i in range(nwords // 4):
        A(f"buffer_load_dwordx4 {vr(vtmp + 4*i, 4)}, off, {sr(srd,4)}, s{soff} offset:{16*i} sc1")
    A("s_waitcnt vmcnt(0)")
    for i in range(1, nwords): A(f"v_min_u32 v{vtmp}, v{vtmp}, v{vtmp+i}")
    A("s_nop 0")
    A(f"v_readfirstlane_b32 s{S_T0}, v{vtmp}")
    A("s_nop 3")
    A(f"s_cmp_ge_u32 s{S_T0}, {want}")
    A(f"s_cbranch_scc1 L_done_{tag}")
    A(f"s_sub_u32 s{S_SPIN}, s{S_SPIN}, 1")
    A(f"s_cmp_eq_u32 s{S_SPIN}, 0")
    A(f"s_cbranch_scc1 L_done_{tag}")
    A("s_sleep 1")
    A(f"s_branch L_poll_{tag}")
    A.label(f"L_done_{tag}")

def one_lane(A, instrs):
    A("s_mov_b64 exec, 1")
    for x in instrs: A(x)
    A("s_mov_b64 exec, -1")

def gen():
    A = Asm()
    A("s_cmp_ge_u32 s2, 256")
    A("s_cbranch_scc1 L_end")
    stamp(A, 0)
    stamp_cyc(A, 55)
    A("s_load_dwordx16 s[64:79], s[0:1], 0")
    if OPT['codepf']:
        A("s_getpc_b64 s[30:31]")
        A.label("L_pc")
        A("s_lshr_b32 s60, s2, 3")
        A("v_lshrrev_b32 v2, 6, v0")
        A("v_and_b32 v1, 63, v0")
        A("v_lshl_add_u32 v2, s60, 2, v2")
        A("v_lshl_add_u32 v2, v2, 2, v1")
        A("v_lshlrev_b32 v2, 7, v2")
        A("v_mov_b32 v5, s31")
        A("v_add_co_u32 v4, vcc, s30, v2")
        A("s_nop 1")
        A("v_addc_co_u32 v5, vcc, 0, v5, vcc")
        A("v_cmp_gt_u32 vcc, 4, v1")
        A("s_mov_b32 s60, L_text_main_end-L_pc")
        A("v_cmp_gt_u32 s[62:63], s60, v2")
        A("s_nop 1")
        A("s_and_b64 vcc, vcc, s[62:63]")
        A("s_and_saveexec_b64 s[62:63], vcc")
        A("s_cbranch_execz L_nocpf")
        A("global_load_dword v243, v[4:5], off")
        A.label("L_nocpf")
        A("s_mov_b64 exec, s[62:63]")
    A(f"""
    v_lshrrev_b32 v2, 6, v0
    v_and_b32 v1, 63, v0
    s_and_b32 s{S_G}, s2, 7
    s_lshr_b32 s30, s2, 3
    v_readfirstlane_b32 s{S_W}, v2
    s_lshr_b32 s{S_B}, s30, 2
    s_and_b32 s{S_R}, s30, 3
    s_lshl_b32 s{S_H}, s{S_G}, 2
    s_add_u32 s{S_H}, s{S_H}, s{S_R}
    v_and_b32 v3, 15, v1
    v_lshrrev_b32 v4, 4, v1
    v_bfe_u32 v5, v1, 2, 2
    v_and_b32 v6, 3, v1
    s_lshl_b32 s{S_W1K}, s{S_W}, 10
    s_add_u32 s{S_ROT}, s{S_B}, s{S_R}
    s_and_b32 s{S_ROT}, s{S_ROT}, 3
    """)
    ACC, FA, FB, VX, VAW = 148, (188, 196), (204, 224), 244, 252
    VXD, VWD = 84, 92
    A(f"""
    s_lshl_b32 s30, s{S_W}, 2
    v_add_u32 v8, s30, v4                   ; 4w+gq
    v_xor_b32 v9, v3, v8
    v_lshlrev_b32 v9, 4, v9
    v_lshl_add_u32 v{VXD}, v8, 10, v9
    v_lshlrev_b32 v9, 2, v4
    v_xor_b32 v9, v3, v9
    v_lshlrev_b32 v9, 4, v9
    v_lshl_add_u32 v{VWD}, v8, 13, v9
    s_mul_i32 s31, s{S_B}, 81920
    """)
    for t in range(1, 5): A(f"v_add_u32 v{VXD+t}, {t*16384}, v{VXD}")
    for i in range(1, 4): A(f"v_add_u32 v{VWD+i}, {i*16*8192}, v{VWD}")
    WT = [100, 101, 97, 96, 95, 94, 93, 92]
    XT = [88, 89, 90, 91]
    A(f"s_lshl_b32 s{S_T1}, s{S_H}, 8")
    A(f"s_lshl_b32 s{S_T2}, s{S_ROT}, 1")
    for u in range(8):
        A(f"s_add_u32 s{S_T0}, s{S_T2}, {u}")
        A(f"s_and_b32 s{S_T0}, s{S_T0}, 7")
        A(f"s_lshl_b32 s{S_T0}, s{S_T0}, 19")
        A(f"s_add_u32 s{WT[u]}, s{S_T0}, s{S_T1}")
    for a_ in range(4):
        A(f"s_add_u32 s{S_T0}, s{S_ROT}, {a_}")
        A(f"s_and_b32 s{S_T0}, s{S_T0}, 3")
        A(f"s_lshl_b32 s{S_T0}, s{S_T0}, 8")
        A(f"s_add_u32 s{XT[a_]}, s{S_T0}, s31")
    A("s_waitcnt lgkmcnt(0)")
    if OPT.get('qstamps'): stamp(A, 14)
    A(f"""
    s_mov_b32 s{SRD_X}, s64
    s_mov_b32 s{SRD_X+1}, s65
    s_mov_b32 s{SRD_X+2}, {640*1024}
    s_mov_b32 s{SRD_X+3}, 0x00020000
    s_mov_b32 s{SRD_W}, s70
    s_mov_b32 s{SRD_W+1}, s71
    s_mov_b32 s{SRD_W+2}, {512*8192}
    s_mov_b32 s{SRD_W+3}, 0x00020000
    """)
    pool1 = [w*32768 + V0 + h*4096 for w in range(4) for h in range(2)] + [K1s, K1s + 4096]
    pool2 = [w*32768 + K1s + h*4096 for w in (1, 2, 3) for h in range(2)] + [w*32768 + V1 + h*4096 for w in (0, 1) for h in range(2)]
    xarea = lambda a, t: (pool1 if a < 2 else pool2)[(a & 1) * 5 + t]
    wblk = lambda u, e: [[2*32768 + V1, 3*32768 + V1], [LE, LE + 8192], [LE + 16384, LE + 24576], [K0, 32768 + K0], [2*32768 + K0, 3*32768 + K0]][u % 5][e]
    def xdma(a):
        return [[f"s_add_u32 m0, s{S_W1K}, {xarea(a, t)}", "s_nop 0", f"buffer_load_dwordx4 v{VXD+t}, {sr(SRD_X,4)}, s{XT[a]} offen lds"] for t in range(5)]
    def wdma(u):
        return [[f"s_add_u32 m0, s{S_W1K}, {wblk(u, e) + 4096*hh}", "s_nop 0", f"buffer_load_dwordx4 v{VWD+2*e+hh}, {sr(SRD_W,4)}, s{WT[u]} offen lds"]
                for e in range(2) for hh in range(2)]
    def xread(ks, t, dst):
        p = xarea(ks >> 2, t)
        return f"ds_read_b128 {vr(dst,4)}, v{VX + 4*(p >> 16) + (ks & 3)} offset:{p & 0xffff}"
    def wread(ks, jt, hf, dst):
        p = wblk(ks >> 1, ks & 1)
        return f"ds_read_b64_tr_b16 {vr(dst,2)}, v{VAW + (p >> 16)} offset:{(p & 0xffff) + 1024*hf + 8*jt}"
    for g_ in wdma(0) + xdma(0):
        for x in g_: A(x)
    if OPT.get('touch_kv'):
        A(f"s_lshl_b32 s30, s{S_B}, 3")
        A(f"s_add_u32 s30, s30, s{S_G}")
        A(f"s_lshl_b32 s30, s30, 19")
        A(f"s_add_u32 s{SRD_K}, s66, s30")
        A(f"s_addc_u32 s{SRD_K+1}, s67, 0")
        A(f"s_mov_b32 s{SRD_K+2}, 0x80000")
        A(f"s_mov_b32 s{SRD_K+3}, 0x00020000")
        A(f"s_add_u32 s{SRD_V}, s68, s30")
        A(f"s_addc_u32 s{SRD_V+1}, s69, 0")
        A(f"s_mov_b32 s{SRD_V+2}, 0x80000")
        A(f"s_mov_b32 s{SRD_V+3}, 0x00020000")
        A(f"buffer_load_dword v{V_L}, off, {sr(SRD_K,4)}, 0")
        A(f"buffer_load_dword v{V_L+1}, off, {sr(SRD_V,4)}, 0")
    if OPT.get('qstamps'): stamp(A, 15)
    B = Asm()
    B(f"""
    s_lshl_b32 s{S_RW}, s{S_W}, 15
    s_lshl_b32 s{S_W8}, s{S_W}, 13
    s_mov_b32 s{S_FB}, 0
    s_lshl_b32 s30, s{S_B}, 3
    s_add_u32 s30, s30, s{S_G}               ; b*8+g
    s_lshl_b32 s{S_F1}, s30, 7
    s_lshl_b32 s30, s30, 19
    s_add_u32 s{SRD_K}, s66, s30
    s_addc_u32 s{SRD_K+1}, s67, 0
    s_mov_b32 s{SRD_K+2}, 0x80000
    s_mov_b32 s{SRD_K+3}, 0x00020000
    s_add_u32 s{SRD_V}, s68, s30
    s_addc_u32 s{SRD_V+1}, s69, 0
    s_mov_b32 s{SRD_V+2}, 0x80000
    s_mov_b32 s{SRD_V+3}, 0x00020000
    s_add_u32 s{SRD_O}, s78, {WS_O}
    s_addc_u32 s{SRD_O+1}, s79, 0
    s_mov_b32 s{SRD_O+2}, {5 << 20}
    s_mov_b32 s{SRD_O+3}, 0x00020000
    s_add_u32 s{SRD_PP}, s78, {WS_P}
    s_addc_u32 s{SRD_PP+1}, s79, 0
    s_mov_b32 s{SRD_PP+2}, {5 << 20}
    s_mov_b32 s{SRD_PP+3}, 0x00020000
    s_add_u32 s{SRD_FL}, s78, {WS_F}
    s_addc_u32 s{SRD_FL+1}, s79, 0
    s_mov_b32 s{SRD_FL+2}, 16384
    s_mov_b32 s{SRD_FL+3}, 0x00020000
    s_mov_b32 s{SRD_WO}, s72
    s_mov_b32 s{SRD_WO+1}, s73
    s_mov_b32 s{SRD_WO+2}, {4096*1024}
    s_mov_b32 s{SRD_WO+3}, 0x00020000
    s_mov_b32 s{SRD_DBG}, s76
    s_mov_b32 s{SRD_DBG+1}, s77
    s_mov_b32 s{SRD_DBG+2}, 256
    s_mov_b32 s{SRD_DBG+3}, 0x00020000
    s_mov_b32 s{SRD_OUT}, s74
    s_mov_b32 s{SRD_OUT+1}, s75
    s_mov_b32 s{SRD_OUT+2}, {640*1024}
    s_mov_b32 s{SRD_OUT+3}, 0x00020000
    s_lshl_b32 s30, s{S_B}, 2
    s_add_u32 s30, s30, s{S_R}               ; b*4+r
    s_lshl_b32 s{S_F2}, s30, 7
    s_add_u32 s{S_F2}, s{S_F2}, 8192
    s_lshl_b32 s{S_POFF}, s{S_G}, 19
    s_lshl_b32 s30, s30, 14
    s_add_u32 s{S_POFF}, s{S_POFF}, s30
    s_lshl_b32 s30, s{S_W}, 12
    s_add_u32 s{S_POFF}, s{S_POFF}, s30
    v_lshlrev_b32 v{V_L16}, 4, v1
    v_xor_b32 v7, v4, v3
    v_lshlrev_b32 v7, 4, v7
    v_lshl_add_u32 v7, v3, 8, v7            ; n*256 + (gq^n)*16
    """)
    B(f"s_mov_b32 s{S_R15}, s2")
    table_setup(B)
    for s_ in range(4):
        B(f"v_xor_b32 v{VX+s_}, {64*s_}, v7")
        B(f"v_add_u32 v{VX+4+s_}, 0x10000, v{VX+s_}")
        B(f"v_add_u32 v{V_KA+s_}, s{S_RW}, v{VX+s_}")
    B(f"""
    v_lshl_add_u32 v8, v4, 3, v5
    s_lshl_b32 s30, s{S_W}, 2
    v_add_u32 v9, s30, v6
    v_lshlrev_b32 v2, 2, v5
    v_xor_b32 v9, v9, v2
    v_lshlrev_b32 v9, 4, v9
    v_lshl_add_u32 v9, v8, 8, v9
    v_mov_b32 v{VAW}, v9
    v_add_u32 v{VAW+1}, 0x10000, v9
    v_add_u32 v{VAW+2}, 0x20000, v9
    v_lshl_add_u32 v8, v4, 2, v5
    v_and_b32 v9, 7, v8
    v_lshlrev_b32 v9, 5, v9
    v_lshl_add_u32 v9, v8, 8, v9
    v_lshl_add_u32 v9, v6, 3, v9
    """)
    for dt in range(8):
        B(f"s_lshl_b32 s{S_T1}, s{S_W}, 1")
        B(f"s_add_u32 s{S_T1}, s{S_T1}, {dt}")
        B(f"s_and_b32 s{S_T1}, s{S_T1}, 7")
        B(f"s_lshl_b32 s{S_T1}, s{S_T1}, 5")
        B(f"v_xor_b32 v{V_VA+dt}, s{S_T1}, v9")
        B(f"v_add_u32 v{V_VA+dt}, s{S_RW}, v{V_VA+dt}")
    B(f"""
    v_xor_b32 v9, v3, v4
    v_lshlrev_b32 v9, 4, v9
    v_lshl_add_u32 v9, v4, 8, v9
    """)
    for i in range(4): B(f"v_xor_b32 v{V_KD+i}, {64*i}, v9")
    B(f"""
    v_lshlrev_b32 v9, 1, v4
    v_xor_b32 v9, v3, v9
    v_lshlrev_b32 v9, 4, v9
    v_lshl_add_u32 v{V_VD}, v4, 8, v9
    v_xor_b32 v{V_VD+1}, 128, v{V_VD}
    """)
    for i in range(4 if OPT['peel_first'] else 32): B(f"v_mov_b32 v{V_VF+i}, 0")
    B("s_nop 1")
    for i in range(10): B(f"v_mfma_f32_32x32x16_bf16 {ar(A_O+16*i,16)}, {vr(V_VF,4)}, {vr(V_VF,4)}, 0")
    if not OPT['peel_first']:
        for i in range(4): B(f"v_mov_b32 v{V_P+i}, 0")
        for i in range(8): B(f"v_mov_b32 v{V_S+8+i}, 0xff7fffff")
    spread(A, [x.strip() for x in B.l], wdma(1))
    A(f"s_cmp_eq_u32 s{S_W}, {0 if not OPT.get('noinit') else 7}")
    A("s_cbranch_scc0 L_noclr")
    A(f"s_lshl_b32 s{S_T0}, s{S_R}, 2")
    A(f"s_add_u32 s{S_T0}, s{S_T0}, s{S_F1}")
    A(f"s_lshl_b32 s{S_T1}, s{S_G}, 2")
    A(f"s_add_u32 s{S_T1}, s{S_T1}, s{S_F2}")
    A("v_mov_b32 v2, 0")
    one_lane(A, [f"buffer_store_dword v2, off, {sr(SRD_FL,4)}, s{S_T0} sc1", f"buffer_store_dword v2, off, {sr(SRD_FL,4)}, s{S_T1} sc1"])
    A.label("L_noclr")
    if OPT.get('qstamps'): stamp(A, 16)
    seq0 = ['W0'] * 4 + ['xA'] * 5 + ['W1'] * 4
    A(f"s_waitcnt vmcnt(4)")
    if OPT.get('qstamps'): stamp(A, 17)
    A("s_barrier")
    stamp(A, 1)
    stamp_cyc(A, 56)
    NV = 4 if OPT['qvar'] == 4 else (2 if OPT['qvar'] == 2 else 1)
    if NV == 4:
        for wv in range(1, 4):
            A(f"s_cmp_eq_u32 s{S_W}, {wv}")
            A(f"s_cbranch_scc1 L_qp{wv}")
    if NV == 2:
        A(f"s_cmp_ge_u32 s{S_W}, 2")
        A(f"s_cbranch_scc1 L_qp2")
    for wv in ((0, 1, 2, 3) if NV == 4 else ((0, 2) if NV == 2 else (0,))):
        if wv: A.label(f"L_qp{wv}")
        seq = list(seq0)
        def vm_for(need):
            last = max(i for i, t in enumerate(seq) if t in need)
            return len(seq) - 1 - last
        arrive = [f"s_lshr_b32 s{S_T0}, s{S_F1}, 5", "v_mov_b32 v2, 1", "s_mov_b64 exec, 1",
                  f"buffer_atomic_add v2, off, {sr(SRD_DBG,4)}, s{S_T0} sc1", "s_mov_b64 exec, -1"] if wv == 0 else []
        if NV < 4 and wv == 0: arrive = [f"s_cmp_eq_u32 s{S_W}, 0", "s_cbranch_scc0 L_noarr"] + arrive + ["L_noarr:"]
        kg0, vg0, kg1 = kv_groups('K', 0), kv_groups('V', 0), kv_groups('K', 1)
        kg0[0] = off_calc() + kg0[0]
        kg1[0] = off_calc() + kg1[0]
        ival = {0: [('xB', xdma(1)), ('W2', wdma(2))], 1: [('W3', wdma(3)), ('W4', wdma(4))], 2: [('xC', xdma(2)), ('W5', wdma(5))],
                3: [('W6', wdma(6)), ('xD', xdma(3))], 4: [('W7', wdma(7))], 5: [('K0', kg0)], 6: [('V0', vg0)], 7: []}
        needs = {1: ['W1'], 3: ['xB', 'W2'], 5: ['W3'], 7: ['xC', 'W4'], 9: ['W5'], 11: ['xD', 'W6'], 13: ['W7'], 15: None}
        plan = {}
        for ks in range(16):
            p = {}
            if ks in needs:
                p['pre'] = ([f"s_waitcnt vmcnt({vm_for(needs[ks])})"] if needs[ks] else []) + ["s_barrier"]
                if ks == OPT.get('arrive_ks', 13) and not OPT.get('noinit'): p['pre'] += arrive
            u = (ks + 1) >> 1
            first = (ks & 1) == 1 or ks == 0
            mine = (ks == 0) or (first and wv < 2) or (not first and wv >= 2)
            fill = []
            if NV == 1:
                allg = [(tag, g_) for tag, gs in ival.get(u, []) for g_ in gs]
                h = len(allg) if ks == 0 else (len(allg) + 1) // 2
                part = allg[:h] if first else allg[h:]
                if ks < 15:
                    for tag, g_ in part: fill.append(g_); seq.append(tag)
            elif ks < 15 and mine:
                for tag, gs in ival.get(u, []):
                    fill += gs; seq += [tag] * len(gs)
                if NV == 4: p['burst_gap'] = (4, 5, 7, 9)[wv] if ks == 0 else (4, 9)[wv & 1]
            if ks == 15 and wv < 2:
                fill = kg1; seq += ['K1'] * 8
                if NV == 4: p['burst_gap'] = (0, 9)[wv]
            p['fill'] = fill
            plan[ks] = p
        if OPT.get('qstamps'):
            for i, ks in enumerate((1, 3, 5, 7, 9, 11, 13, 15)): plan[ks]['stamp'] = 22 + i
        if OPT.get('fine'):
            for i, ks in enumerate(OPT['fine']): plan.setdefault(ks, {})['fine'] = 32 + 4 * i
        gemm_core(A, ACC, FA, FB, xread, wread, plan)
        stamp(A, 2)
        stamp_cyc(A, 57)
        A(f"s_mov_b32 s30, {hex(f32(C_SCALE))}")
        A(f"v_add_u32 v8, s{S_W1K}, v{V_L16}")
        A(f"v_add_u32 v8, {LE}, v8")
        A("s_nop 4")
        for t in range(5):
            for jt in range(2):
                d = ACC + (jt*5 + t)*4
                for h in range(2): A(f"v_pk_mul_f32 {vr(d+2*h,2)}, {vr(d+2*h,2)}, s[30:31] op_sel_hi:[1,0]")
            q = FB[0] + 4*t
            for jt in range(2):
                d = ACC + (jt*5 + t)*4
                A(f"v_cvt_pk_bf16_f32 v{q+2*jt}, v{d}, v{d+1}")
                A(f"v_cvt_pk_bf16_f32 v{q+2*jt+1}, v{d+2}, v{d+3}")
            A(f"ds_write_b128 v8, {vr(q,4)} offset:{t*4096}")
            if wv >= 2 and t == (1, 3)[wv - 2]:
                for g_ in kg1:
                    for x in g_: A(x)
        if wv < (3 if NV == 4 else (2 if NV == 2 else 0)): A("s_branch L_qdone")
    A.label("L_qdone")
    if OPT.get('qstamps'): stamp(A, 18)
    A("s_waitcnt vmcnt(16) lgkmcnt(0)")
    if OPT.get('qstamps'): stamp(A, 19)
    A("s_barrier")
    stamp(A, 30)
    A(f"v_add_u32 v8, {LE}, v{V_L16}")
    ST = 188
    if OPT['standin']:
        for s in range(4): A(f"ds_read_b128 {vr(ST+4*s,4)}, v{VX+s} offset:{K0}")
    for t in range(5):
        for s in range(4): A(f"ds_read_b128 {ar(A_Q+(t*4+s)*4,4)}, v8 offset:{(t*4+s)*1024}")
    for p in range(8): A(k_read(p, 0))
    for g_ in kv_groups('V', 1):
        for x in g_: A(x)
    if OPT.get('qstamps'): stamp(A, 32)
    VL2, VA2, VWD2, VCHK = 244, 245, 247, 248
    A(f"""
    v_lshl_add_u32 v8, v4, 2, v5
    s_lshl_b32 s30, s{S_W}, 2
    v_add_u32 v9, s30, v6
    v_lshlrev_b32 v2, 2, v5
    v_xor_b32 v9, v9, v2
    v_lshlrev_b32 v9, 4, v9
    v_lshl_add_u32 v9, v8, 8, v9
    v_add_u32 v8, s30, v4
    v_lshlrev_b32 v2, 2, v4
    v_xor_b32 v2, v3, v2
    v_lshlrev_b32 v2, 4, v2
    """)
    for i in range(20): A(f"v_mov_b32 v{V_LM+i}, 0")
    if OPT['onerow']:
        A("v_cmp_eq_u32 vcc, 0, v3")
        A(f"v_mov_b32 v{V_ONE}, 0x3f803f80")
        A("s_nop 0")
        A(f"v_cndmask_b32 v{V_ONE}, 0, v{V_ONE}, vcc")
        for i in range(1, 4): A(f"v_mov_b32 v{V_ONE+i}, v{V_ONE}")
    else:
        for i in range(4): A(f"v_mov_b32 v{V_ONE+i}, 0x3f803f80")
    if OPT['standin']:
        A("s_waitcnt lgkmcnt(8)")
        for t in range(5):
            for s in range(4):
                d = V_NEG + 4*t
                A(f"v_mfma_f32_16x16x32_bf16 {vr(d,4)}, {vr(ST+4*s,4)}, {ar(A_Q+(t*4+s)*4,4)}, {'0' if s == 0 else vr(d,4)}")
    if OPT.get('qstamps'): stamp(A, 31)
    A(f"v_add_u32 v{VA2}, 0x10000, v9")
    A(f"v_add_u32 v{VA2+1}, 0x20000, v9")
    A(f"v_lshl_add_u32 v{VWD2}, v8, 10, v2")
    A(f"v_add_u32 v{VL2}, 0x10000, v{V_L16}")
    if OPT['standin']:
        T = 204
        A("s_nop 4")
        for t in range(5):
            d = V_NEG + 4*t
            A(f"v_max3_f32 v{T+t}, v{d}, v{d+1}, v{d+2}")
        for t in range(5): A(f"v_max_f32 v{T+t}, v{T+t}, v{V_NEG+4*t+3}")
        for swap in ("v_permlane32_swap_b32", "v_permlane16_swap_b32"):
            for t in range(5): A(f"v_mov_b32 v{T+8+t}, v{T+t}")
            for t in range(5): A(f"{swap} v{T+t}, v{T+8+t}")
            for t in range(5): A(f"v_max_f32 v{T+t}, v{T+t}, v{T+8+t}")
        for t in range(5):
            for r in range(4): A(f"v_xor_b32 v{V_NEG+4*t+r}, 0x80000000, v{T+t}")
    else:
        for i in range(20): A(f"v_mov_b32 v{V_NEG+i}, 0")
    A("s_waitcnt lgkmcnt(0)")
    A("s_barrier")
    A(f"s_mov_b32 s{S_CNT}, 7")
    if OPT.get('vmstall'):
        A("s_mov_b32 s92, 0"); A("s_mov_b32 s93, 0")
    stamp(A, 3)
    stamp_cyc(A, 20)
    if OPT['peel_first']:
        for k in range(2): main_stage(A, k, first=True)
        A("s_branch L_loop2")
    A.raw(".p2align 6")
    A.label("L_loop")
    for k in range(10):
        if k == 2: A.label("L_loop2")
        main_stage(A, k)
    A(f"s_sub_u32 s{S_CNT}, s{S_CNT}, 1")
    A(f"s_cmp_lg_u32 s{S_CNT}, 0")
    A("s_cbranch_scc1 L_loop")
    if OPT.get('vmstall'):
        A("v_writelane_b32 v39, s92, 61"); A("v_writelane_b32 v39, s93, 62")
    xarea2 = lambda a, t: (a * 5 + t) * 4096
    VA0 = 9
    wslot = [LE, LE + 16384, 81920, 98304, 114688]
    wblk2 = lambda u, e: (wslot[u % 5] if u < 7 else 0) + 8192 * e
    def wdma2(u):
        pre = [f"s_lshl_b32 s{S_T0}, s{S_R}, 1", f"s_add_u32 s{S_T0}, s{S_T0}, {u}", f"s_and_b32 s{S_T0}, s{S_T0}, 7", f"s_lshl_b32 s{S_T0}, s{S_T0}, 16",
               f"s_add_u32 s{S_WK}, s{S_T0}, s{S_WOB}"]
        l = []
        for e in range(2):
            for hh in range(2):
                l.append([f"s_add_u32 m0, s{S_W1K}, {wblk2(u, e) + 4096*hh}", f"s_add_u32 s{S_T0}, s{S_WK}, {(32*e + 16*hh)*1024}",
                          f"buffer_load_dwordx4 v{VWD2}, {sr(SRD_WO,4)}, s{S_T0} offen lds"])
        l[0] = pre + l[0]
        return l
    def xdma2(a):
        pre = [f"s_add_u32 s{S_T0}, s{S_R}, {a}", f"s_and_b32 s{S_T0}, s{S_T0}, 3", f"s_lshl_b32 s{S_T0}, s{S_T0}, 2",
               f"s_add_u32 s{S_T0}, s{S_T0}, s{S_W}", f"s_mul_i32 s{S_T0}, s{S_T0}, 5120", f"s_add_u32 s{S_XOFF}, s{S_T0}, s{S_XB}"]
        l = []
        for t in range(5):
            l.append([f"s_add_u32 m0, s{S_W1K}, {xarea2(a, t)}", f"s_add_u32 s{S_T0}, s{S_XOFF}, {t*1024}",
                      f"buffer_load_dwordx4 v{V_L16}, {sr(SRD_O,4)}, s{S_T0} offen sc1 lds"])
        l[0] = pre + l[0]
        return l
    flat = lambda gs: [x for g_ in gs for x in g_]
    def xread2(ks, t, dst):
        p = xarea2(ks >> 2, t) + (ks & 3) * 1024
        return f"ds_read_b128 {vr(dst,4)}, v{V_L16 if p < 65536 else VL2} offset:{p & 0xffff}"
    def wread2(ks, jt, hf, dst):
        p = wblk2(ks >> 1, ks & 1)
        return f"ds_read_b64_tr_b16 {vr(dst,2)}, v{(VA2 + (p >> 16) - 1) if p >= 65536 else VA0} offset:{(p & 0xffff) + 4096*hf + 8*jt}"
    A(f"s_lshl_b32 s{S_WOB}, s{S_G}, 19")
    A(f"s_lshl_b32 s{S_T1}, s{S_R}, 8")
    A(f"s_add_u32 s{S_WOB}, s{S_WOB}, s{S_T1}")
    wg = wdma2(0) + wdma2(1)
    ex = {7: [(g_, x) for g_, grp in zip((3, 7, 11, 15), wg[:4]) for x in grp], 8: [(g_, x) for g_, grp in zip((3, 7, 11, 15), wg[4:]) for x in grp],
          9: [(3, f"s_lshl_b32 s{S_T2}, s{S_B}, 5"), (3, f"buffer_load_dwordx4 {vr(VCHK,4)}, off, {sr(SRD_DBG,4)}, s{S_T2} sc1"),
              (7, f"buffer_load_dwordx4 {vr(VCHK+4,4)}, off, {sr(SRD_DBG,4)}, s{S_T2} offset:16 sc1")]}
    for k in range(10): main_stage(A, k, last=True, extra=ex.get(k))
    stamp(A, 4)
    stamp_cyc(A, 21)
    A(f"s_lshl_b32 s30, s{S_B}, 7")
    A(f"s_lshl_b32 s31, s{S_G}, 4")
    A(f"s_add_u32 s30, s30, s31")
    A(f"s_mul_i32 s{S_XB}, s30, 5120")
    A("s_barrier")
    xaddr(A)
    side = [x for t in range(3) for x in xsend(t)]
    va = sm_valu(4, 1)
    n_side = len(side)
    for p in range(17):
        if p >= 8: A(pv_mfma(p - 8, 3, 0) if p < 16 else l_mfma(3, 0))
        for x in va[p]: A(x)
        if p < 8 and p % 4 in (1,): A("s_nop 0")
        for _ in range(2):
            if side: A(side.pop(0))
    A("s_nop 1")
    for dt in range(8):
        A(pv_mfma(dt, 4, 1))
        if side: A(side.pop(0))
    A(l_mfma(4, 1))
    for x in side: A(x)
    for x in xsend(3): A(x)
    A("s_nop 3")
    for x in xsend(4) + lsend(): A(x)
    A.label("L_comb2")
    A("s_waitcnt lgkmcnt(0)")
    A("s_barrier")
    stamp(A, 5)
    stamp_cyc(A, 58)
    TL, RC, TR = 216, 120, 60
    A(f"v_add_u32 v9, {XL}, v8")
    for w in range(4):
        for t in range(5): A(f"ds_read_b32 v{TL + w*5 + t}, v9 offset:{w*1280 + t*256}")
    A(f"s_mul_i32 s30, s{S_W}, 30720")
    A(f"v_add_u32 v9, s30, v{V_L16}")
    rq = lambda q, sl: TR + ((q % 5)*3 + sl)*4
    def rd(q):
        for sl in range(3): A(f"ds_read_b128 {vr(rq(q, sl), 4)}, v9 offset:{(sl*10+q)*1024}")
    for q in range(3): rd(q)
    A("s_waitcnt lgkmcnt(9)")
    for t in range(5):
        A(f"v_add_f32 v{TL+t}, v{TL+t}, v{TL+5+t}")
        A(f"v_add_f32 v{TL+10+t}, v{TL+10+t}, v{TL+15+t}")
    for t in range(5): A(f"v_add_f32 v{TL+t}, v{TL+t}, v{TL+10+t}")
    if OPT['onerow']:
        for swap in ("v_permlane32_swap_b32", "v_permlane16_swap_b32"):
            for t in range(5): A(f"v_mov_b32 v{TL+8+t}, v{TL+t}")
            for t in range(5): A(f"{swap} v{TL+t}, v{TL+8+t}")
            for t in range(5): A(f"v_add_f32 v{TL+t}, v{TL+t}, v{TL+8+t}")
    if OPT['fallback']:
        A(f"v_add_f32 v{TL+9}, v{TL}, v{TL+1}")
        A(f"v_add_f32 v{TL+9}, v{TL+9}, v{TL+2}")
        A(f"v_add_f32 v{TL+9}, v{TL+9}, v{TL+3}")
        A(f"v_add_f32 v{TL+9}, v{TL+9}, v{TL+4}")
        A(f"s_mov_b32 s30, {hex(f32(2.0**40))}")
        A(f"v_cmp_ngt_f32 s[{S_BAD}:{S_BAD+1}], s30, v{TL+9}")
    for t in range(5): A(f"v_rcp_f32 v{RC+2*t}, v{TL+t}")
    OF = 100
    for q in range(10):
        if q + 3 < 10: rd(q + 3)
        A(f"s_waitcnt lgkmcnt({min(9, 3*(9-q))})")
        if q == 9: A("s_barrier")
        o = TO + 4*q
        for sl in range(3):
            for h in range(2):
                A(f"v_pk_add_f32 {vr(o+2*h,2)}, {vr(o+2*h,2)}, {vr(rq(q, sl)+2*h,2)}")
        t = q >> 1
        for h in range(2): A(f"v_pk_mul_f32 {vr(o+2*h,2)}, {vr(o+2*h,2)}, {vr(RC+2*t,2)} op_sel_hi:[1,0]")
    if OPT['fallback']:
        A(f"s_cmp_eq_u64 s[{S_BAD}:{S_BAD+1}], 0")
        A("s_cbranch_scc1 L_sum_ok")
        A(f"s_cmp_eq_u32 s{S_FB}, 0")
        A("s_cbranch_scc1 L_fallback")
        A.label("L_sum_ok")
    for t in range(5):
        for i in range(4): A(f"v_cvt_pk_bf16_f32 v{OF+4*t+i}, v{TO + t*8 + 2*i}, v{TO + t*8 + 2*i + 1}")
    stamp(A, 6)
    A(f"s_lshl_b32 s30, s{S_R}, 2")
    A(f"s_add_u32 s30, s30, s{S_W}")
    A(f"s_mul_i32 s30, s30, 5120")
    A(f"s_add_u32 s30, s30, s{S_XB}")
    for t in range(5):
        if t == 4: A("s_add_u32 s30, s30, 4096")
        A(f"buffer_store_dwordx4 {vr(OF+4*t,4)}, v{V_L16}, {sr(SRD_O,4)}, s30 offen offset:{(t*1024) & 4095} sc1")
    A(f"v_add_u32 v8, s{S_W1K}, v{V_L16}")
    for t in range(5): A(f"ds_write_b128 v8, {vr(OF+4*t,4)} offset:{xarea2(0, t)}")
    A(f"v_add_u32 v{VA0}, 0xffff0000, v{VA2}")
    A("s_waitcnt vmcnt(0) lgkmcnt(0)")
    A("s_barrier")
    A(f"s_cmp_eq_u32 s{S_W}, 0")
    A("s_cbranch_scc0 L_noflag1")
    A(f"s_lshl_b32 s{S_T0}, s{S_R}, 2")
    A(f"s_add_u32 s{S_T0}, s{S_T0}, s{S_F1}")
    A("v_mov_b32 v2, 1")
    one_lane(A, [f"buffer_store_dword v2, off, {sr(SRD_FL,4)}, s{S_T0} sc1"])
    A.label("L_noflag1")
    VF1 = 56 - 56 + 120
    A(f"buffer_load_dwordx4 {vr(VF1,4)}, off, {sr(SRD_FL,4)}, s{S_F1} sc1")
    stamp(A, 7)
    def wait_group(A):
        for i in range(1, 8): A(f"v_min_u32 v{VCHK}, v{VCHK}, v{VCHK+i}")
        A("s_nop 0")
        A(f"v_readfirstlane_b32 s{S_T0}, v{VCHK}")
        A("s_nop 3")
        A(f"s_cmp_ge_u32 s{S_T0}, {4 if not OPT.get('noinit') else 0}")
        A(f"s_cselect_b32 s{S_INIT}, 1, 0")
        A(f"s_cmp_ge_u32 s{S_T0}, {4 if not OPT.get('noinit') else 0}")
        A("s_cbranch_scc1 L_done_init")
        A(f"s_lshl_b32 s{S_T2}, s{S_B}, 5")
        poll(A, "init", SRD_DBG, S_T2, 8, 4, VCHK)
        A("s_waitcnt vmcnt(0)")
        A(f"s_cmp_eq_u32 s{S_INIT}, 1")
        A("s_cbranch_scc0 L_look_again")
        for i in range(1, 4): A(f"v_min_u32 v{VF1}, v{VF1}, v{VF1+i}")
        A("s_nop 0")
        A(f"v_readfirstlane_b32 s{S_T0}, v{VF1}")
        A("s_nop 3")
        A(f"s_cmp_ge_u32 s{S_T0}, 1")
        A("s_cbranch_scc1 L_done_f1")
        A.label("L_look_again")
        poll(A, "f1", SRD_FL, S_F1, 4, 1, VCHK)
        stamp(A, 8)
        for x in flat(xdma2(1) + xdma2(2) + xdma2(3)): A(x)
        A("s_waitcnt vmcnt(10)")
        A("s_barrier")
        stamp(A, 9)
    plan2 = {0: dict(fill=wdma2(2)), 1: dict(pre=["s_barrier"], fill=wdma2(3)), 2: dict(fill=wdma2(4)),
             3: dict(pre=["s_barrier"], late=wait_group),
             4: dict(fill=wdma2(5)), 5: dict(fill=wdma2(6)), 6: dict(fill=wdma2(7)),
             7: dict(pre=["s_waitcnt vmcnt(17)", "s_barrier"]),
             9: dict(pre=["s_waitcnt vmcnt(8)", "s_barrier"]),
             11: dict(pre=["s_waitcnt vmcnt(4)", "s_barrier"]),
             13: dict(pre=["s_waitcnt vmcnt(0)", "s_barrier"])}
    gemm_core(A, ACC, FA, FB, xread2, wread2, plan2)
    stamp(A, 10)
    stamp_cyc(A, 59)
    A(f"""
    s_lshl_b32 s30, s{S_B}, 2
    s_add_u32 s30, s30, s{S_R}
    s_lshl_b32 s30, s30, 2
    s_mul_i32 s{S_XB}, s30, 40960
    s_mul_i32 s30, s{S_W}, 40960
    s_add_u32 s30, s30, s{S_XB}
    s_lshl_b32 s31, s{S_G}, 10
    s_add_u32 s30, s30, s31
    """)
    PB = 60
    for t in range(5):
        d0, d1 = ACC + 4*t, ACC + 4*(5 + t)
        A(f"v_cvt_pk_bf16_f32 v{PB+4*t}, v{d0}, v{d0+1}")
        A(f"v_cvt_pk_bf16_f32 v{PB+4*t+1}, v{d0+2}, v{d0+3}")
        A(f"v_cvt_pk_bf16_f32 v{PB+4*t+2}, v{d1}, v{d1+1}")
        A(f"v_cvt_pk_bf16_f32 v{PB+4*t+3}, v{d1+2}, v{d1+3}")
        A(f"s_add_u32 s31, s30, {t*8192}")
        A(f"buffer_store_dwordx4 {vr(PB+4*t,4)}, v{V_L16}, {sr(SRD_PP,4)}, s31 offen sc1")
    A("s_waitcnt vmcnt(0)")
    A("s_barrier")
    A(f"s_cmp_eq_u32 s{S_W}, 0")
    A("s_cbranch_scc0 L_noflag2")
    A(f"s_lshl_b32 s{S_T0}, s{S_G}, 2")
    A(f"s_add_u32 s{S_T0}, s{S_T0}, s{S_F2}")
    A("v_mov_b32 v2, 1")
    one_lane(A, [f"buffer_store_dword v2, off, {sr(SRD_FL,4)}, s{S_T0} sc1"])
    A.label("L_noflag2")
    stamp(A, 11)
    A(f"s_lshl_b32 s30, s{S_W}, 3")
    A(f"s_add_u32 s30, s30, s{S_G}")
    A("s_cmp_ge_u32 s30, 20")
    A("s_cbranch_scc1 L_fin")
    poll(A, "f2", SRD_FL, S_F2, 8, 1, VCHK)
    stamp(A, 12)
    A(f"s_mul_hi_u32 s31, s30, {(1 << 32)//5 + 1}")
    A(f"s_mul_i32 s{S_T0}, s31, 5")
    A(f"s_sub_u32 s{S_T1}, s30, s{S_T0}              ; t")
    A(f"s_mul_i32 s{S_T0}, s31, 40960")
    A(f"s_add_u32 s{S_T0}, s{S_T0}, s{S_XB}")
    A(f"s_lshl_b32 s{S_T2}, s{S_T1}, 13")
    A(f"s_add_u32 s{S_T0}, s{S_T0}, s{S_T2}")
    RB = 60
    for g in range(8):
        if g == 4: A(f"s_add_u32 s{S_T0}, s{S_T0}, 4096")
        A(f"buffer_load_dwordx4 {vr(RB + 4*g, 4)}, v{V_L16}, {sr(SRD_PP,4)}, s{S_T0} offen offset:{(g%4)*1024} sc1")
    A(f"""
    s_mul_i32 s{S_T0}, s{S_B}, 80
    s_lshl_b32 s{S_T1}, s{S_T1}, 4
    s_add_u32 s{S_T0}, s{S_T0}, s{S_T1}
    v_add_u32 v8, s{S_T0}, v3
    v_lshlrev_b32 v8, 10, v8
    s_lshl_b32 s{S_T0}, s{S_R}, 2
    s_add_u32 s{S_T0}, s{S_T0}, s31
    s_lshl_b32 s{S_T0}, s{S_T0}, 6
    v_lshl_add_u32 v8, v4, 4, v8
    v_add_u32 v8, s{S_T0}, v8
    """)
    SUM, UN = 100, 110
    for g in range(8):
        A(f"s_waitcnt vmcnt({7-g})")
        dst = SUM if g == 0 else UN
        for i in range(4):
            A(f"v_lshlrev_b32 v{dst+2*i}, 16, v{RB+4*g+i}")
            A(f"v_and_b32 v{dst+2*i+1}, 0xffff0000, v{RB+4*g+i}")
        if g:
            for i in range(4): A(f"v_pk_add_f32 {vr(SUM+2*i,2)}, {vr(SUM+2*i,2)}, {vr(UN+2*i,2)}")
    for i in range(4): A(f"v_cvt_pk_bf16_f32 v{RB+64+i}, v{SUM+2*i}, v{SUM+2*i+1}")
    A(f"buffer_store_dwordx4 {vr(RB+64,4)}, v8, {sr(SRD_OUT,4)}, 0 offen")
    A.label("L_fin")
    A("s_waitcnt vmcnt(0)")
    stamp(A, 13)
    stamp_cyc(A, 60)
    stamp_out(A)
    if OPT.get('amp'):
        i0, i1, M = OPT['amp']
        A(f"s_add_u32 s30, s{S_R15}, s{S_W}")
        A("s_cmp_eq_u32 s30, 0")
        A("s_cbranch_scc0 L_end")
        A(f"v_readlane_b32 s30, v39, {i0}")
        A(f"v_readlane_b32 s31, v39, {i1}")
        A("s_nop 3")
        A("s_sub_u32 s30, s31, s30")
        A("s_min_u32 s30, s30, 10000")
        A(f"s_mul_i32 s30, s30, {M}")
        A("s_memrealtime s[64:65]")
        A("s_waitcnt lgkmcnt(0)")
        A.label("L_amp")
        A("s_sleep 4")
        A("s_memrealtime s[66:67]")
        A("s_waitcnt lgkmcnt(0)")
        A("s_sub_u32 s31, s66, s64")
        A("s_cmp_lt_u32 s31, s30")
        A("s_cbranch_scc1 L_amp")
    A.label("L_end")
    A("s_endpgm")
    if OPT['wopf']:
        A.label("L_side")
        for i in range(4):
            A(f"s_add_u32 m0, s{S_W1K}, {LE + 4096*i}")
            A(f"s_add_u32 s{S_T0}, s{S_POFF}, {1024*i}")
            A(f"buffer_load_dwordx4 v{V_L16}, {sr(SRD_WO,4)}, s{S_T0} offen lds")
        A(f"s_add_u32 m0, s{S_RW}, {K0}")
        A("s_branch L_side_back")
    A.label("L_text_main_end")
    if OPT['fallback']: gen_fallback(A)
    A.label("L_text_end")
    A("s_endpgm")
    return A.text()

def gen_fallback(A):
    M, AL, T = V_NEG, V_NEG + 8, 148
    SF = 160
    A.label("L_fallback")
    A(f"s_mov_b32 s{S_FB}, 1")
    for i in range(160): A(f"v_accvgpr_write_b32 a{A_O+i}, 0")
    for i in range(10): A(f"v_mov_b32 v{V_L+i}, 0")
    for t in range(5): A(f"v_mov_b32 v{M+t}, 0xff7fffff")
    A(f"s_mov_b32 s{S_CNT}, 16")
    A(f"s_mov_b32 s{S_OFF}, s{S_W8}")
    A.label("L_fb_loop")
    A(f"s_add_u32 s{S_OFF2}, s{S_OFF}, 4096")
    for x in with_m0_gap(kv_dma('K', 0)) + with_m0_gap(kv_dma('V', 0)): A(x)
    A("s_waitcnt vmcnt(0)")
    for p in range(8): A(k_read(p, 0))
    for dt in range(8):
        for hf in range(2): A(v_read(dt, hf, 0))
    A("s_waitcnt lgkmcnt(0)")
    for t in range(5):
        for p in range(8):
            kt, s = p >> 2, p & 3
            d = SF + 8*t + 4*kt
            A(f"v_mfma_f32_16x16x32_bf16 {vr(d,4)}, {vr(V_KF+4*p,4)}, {ar(A_Q+(t*4+s)*4,4)}, {'0' if s == 0 else vr(d,4)}")
    A("s_nop 7")
    for t in range(5):
        d = SF + 8*t
        A(f"v_max3_f32 v{T+t}, v{d}, v{d+1}, v{d+2}")
        A(f"v_max3_f32 v{T+t}, v{T+t}, v{d+3}, v{d+4}")
        A(f"v_max3_f32 v{T+t}, v{T+t}, v{d+5}, v{d+6}")
        A(f"v_max3_f32 v{T+t}, v{T+t}, v{d+7}, v{M+t}")
    A("s_nop 1")
    for swap in ("v_permlane32_swap_b32", "v_permlane16_swap_b32"):
        for t in range(5): A(f"v_mov_b32 v{T+5+t}, v{T+t}")
        for t in range(5): A(f"{swap} v{T+t}, v{T+5+t}")
        for t in range(5): A(f"v_max_f32 v{T+t}, v{T+t}, v{T+5+t}")
    for t in range(5): A(f"v_sub_f32 v{AL+t}, v{M+t}, v{T+t}")
    for t in range(5): A(f"v_exp_f32 v{AL+t}, v{AL+t}")
    for t in range(5): A(f"v_mov_b32 v{M+t}, v{T+t}")
    for t in range(5):
        for i in range(8): A(f"v_sub_f32 v{SF+8*t+i}, v{SF+8*t+i}, v{M+t}")
    for t in range(5):
        for i in range(8): A(f"v_exp_f32 v{SF+8*t+i}, v{SF+8*t+i}")
    A("s_nop 0")
    for t in range(5):
        A(f"v_mul_f32 v{V_L+2*t}, v{V_L+2*t}, v{AL+t}")
        for i in range(8): A(f"v_add_f32 v{V_L+2*t}, v{V_L+2*t}, v{SF+8*t+i}")
    for t in range(5):
        for i in range(32):
            A(f"v_accvgpr_read_b32 v{T+10}, a{A_O+t*32+i}")
            A(f"v_mul_f32 v{T+10}, v{T+10}, v{AL+t}")
            A(f"v_accvgpr_write_b32 a{A_O+t*32+i}, v{T+10}")
    PF = 200
    for t in range(5):
        for i in range(4): A(f"v_cvt_pk_bf16_f32 v{PF+4*t+i}, v{SF+8*t+2*i}, v{SF+8*t+2*i+1}")
    A("s_nop 1")
    for t in range(5):
        for dt in range(8):
            o = A_O + (t*8 + dt)*4
            A(f"v_mfma_f32_16x16x32_bf16 {ar(o,4)}, {vr(V_VF+4*dt,4)}, {vr(PF+4*t,4)}, {ar(o,4)}")
    A("s_nop 7")
    A(f"s_add_u32 s{S_OFF}, s{S_OFF}, 0x8000")
    A(f"s_sub_u32 s{S_CNT}, s{S_CNT}, 1")
    A(f"s_cmp_lg_u32 s{S_CNT}, 0")
    A("s_cbranch_scc1 L_fb_loop")
    XL = 0
    A("s_barrier")
    A(f"v_lshlrev_b32 v8, 2, v1")
    A(f"s_mul_i32 s30, s{S_W}, 1280")
    A(f"s_add_u32 s30, s30, {XL}")
    A(f"v_add_u32 v9, s30, v8")
    for t in range(5): A(f"ds_write_b32 v9, v{M+t} offset:{256*t}")
    A("s_waitcnt lgkmcnt(0)")
    A("s_barrier")
    for w in range(4):
        for t in range(5): A(f"ds_read_b32 v{SF + w*5 + t}, v8 offset:{XL + w*1280 + t*256}")
    A("s_waitcnt lgkmcnt(0)")
    for t in range(5):
        A(f"v_max3_f32 v{T+t}, v{SF+t}, v{SF+5+t}, v{SF+10+t}")
        A(f"v_max_f32 v{T+t}, v{T+t}, v{SF+15+t}")
        A(f"v_sub_f32 v{AL+t}, v{M+t}, v{T+t}")
    for t in range(5): A(f"v_exp_f32 v{AL+t}, v{AL+t}")
    A("s_nop 0")
    for t in range(5): A(f"v_mul_f32 v{V_L+2*t}, v{V_L+2*t}, v{AL+t}")
    for swap in ("v_permlane32_swap_b32", "v_permlane16_swap_b32"):
        for t in range(5): A(f"v_mov_b32 v{V_L+2*t+1}, v{V_L+2*t}")
        for t in range(5): A(f"{swap} v{V_L+2*t}, v{V_L+2*t+1}")
        for t in range(5): A(f"v_add_f32 v{V_L+2*t}, v{V_L+2*t}, v{V_L+2*t+1}")
    for t in range(5):
        for i in range(32):
            A(f"v_accvgpr_read_b32 v{T+10}, a{A_O+t*32+i}")
            A(f"v_mul_f32 v{T+10}, v{T+10}, v{AL+t}")
            A(f"v_accvgpr_write_b32 a{A_O+t*32+i}, v{T+10}")
    if OPT['onerow']:
        A("v_cmp_gt_u32 vcc, 16, v1")
        A("s_nop 1")
        for t in range(5): A(f"v_cndmask_b32 v{V_LM+4*t}, 0, v{V_L+2*t}, vcc")
    else:
        for t in range(5): A(f"v_mov_b32 v{V_LM+4*t}, v{V_L+2*t}")
    A("s_waitcnt vmcnt(0)")
    A("s_barrier")
    xaddr(A)
    A("s_nop 7")
    for t in range(5):
        for x in xsend(t): A(x)
    for x in lsend(): A(x)
    A("s_branch L_comb2")

def build():
    s = HEADER + "; @launch grid=(256,1,1) block=(256,1,1) lds=163840\n"
    s += '.amdgcn_target "amdgcn-amd-amdhsa--gfx950"\n.text\n' + kernel_start(NAME) + gen()
    s += '.section .rodata,"a"\n.p2align 6\n' + kernel_desc(NAME, 512, 256, 102)
    return s

if __name__ == "__main__":
    out = sys.argv[1]
    for kv in sys.argv[2:]:
        k_, v_ = kv.split("=")
        OPT[k_] = eval(v_)
    open(out, "w").write(build())
```

```python
import sys, struct, math
from lib import *

def f32(x): return struct.unpack("<I", struct.pack("<f", x))[0]
C_SCALE = math.log2(math.e) / math.sqrt(128.0)
NAME = "standalone__gqa_block_cached__near_ridge_kernel"

WS_O = 0
WS_P = 8 << 20
WS_F = 24 << 20
WS_ST = 64 << 20
OPT = dict(standin=True, fallback=True, stamps=False, nodma=False, nods=False, novalu=False, nowait=False, wopf=True, order='X', kvpol='', codepf=True, qvar=2, onerow=False, souter=False, peel_first=True, qpipe=True)

V_KA, V_VA, V_KD, V_VD, V_L, V_L16, V_NEG, V_S, V_P, V_KF, V_VF = 10, 14, 22, 26, 28, 38, 40, 60, 76, 84, 116
A_O, A_Q = 0, 160
S_G, S_B, S_R, S_W, S_H, S_RW = 24, 25, 26, 27, 28, 29
S_T, S_R15, S_W8, S_END, S_OFF, S_OFF2, S_CNT, S_W1K, S_XOFF, S_WK, S_ROT, S_FB = 32, 33, 34, 35, 36, 37, 38, 39, 40, 41, 42, 43
S_T0, S_T1, S_T2, S_SPIN = 60, 61, 62, 63
S_TAB = 2
SRD_X, SRD_K, SRD_V, SRD_W, SRD_O, SRD_WO, SRD_PP, SRD_FL, SRD_DBG, SRD_OUT = 4, 8, 12, 16, 20, 44, 48, 52, 56, 84
S_POFF, S_F1, S_F2, S_XB, S_WOB, S_BAD, S_INIT = 80, 81, 82, 83, 88, 90, 89
K0, K1s, V0, V1 = 0, 8192, 16384, 24576
LE = 131072
SPIN_MAX = 20000

def stamp(A, i):
    if not OPT['stamps']: return
    A("s_memrealtime s[98:99]")
    A("s_waitcnt lgkmcnt(0)")
    A(f"v_writelane_b32 v39, s98, {i}")
def stamp_cyc(A, i):
    if not OPT['stamps']: return
    A("s_memtime s[98:99]")
    A("s_waitcnt lgkmcnt(0)")
    A(f"v_writelane_b32 v39, s98, {i}")
def stamp_out(A):
    if not OPT['stamps']: return
    A("s_load_dwordx2 s[92:93], s[0:1], 56")
    A("s_waitcnt lgkmcnt(0)")
    A(f"s_add_u32 s92, s92, {WS_ST}")
    A("s_addc_u32 s93, s93, 0")
    A("s_mov_b32 s94, 0x100000")
    A("s_mov_b32 s95, 0x00020000")
    A(f"s_lshl_b32 s96, s{S_R15}, 2")
    A(f"s_add_u32 s96, s96, s{S_W}")
    A("s_lshl_b32 s96, s96, 8")
    A("v_lshlrev_b32 v2, 2, v1")
    A("buffer_store_dword v39, v2, s[92:95], s96 offen")
    A("s_waitcnt vmcnt(0)")

def gemm_core(A, acc, FA, FB, xread, wread, plan):
    def reads(ks):
        buf = ks & 1
        w = [wread(ks, jt, hf, FA[buf] + 4 * jt + 2 * hf) for jt in range(2) for hf in range(2)]
        x = [xread(ks, t, FB[buf] + 4 * t) for t in range(5)]
        return [w[0], w[1], x[0], w[2], w[3], x[1], x[2], x[3], x[4]]
    for r in reads(0): A(r)
    for ks in range(16):
        buf = ks & 1
        p = plan.get(ks, {})
        fine = p.get('fine')
        if fine is not None: stamp_cyc(A, fine)
        A("s_waitcnt lgkmcnt(0)")
        for x in p.get('pre', []):
            A(x)
            if fine is not None and x.startswith("s_waitcnt vmcnt"): stamp_cyc(A, fine + 1)
            if fine is not None and x == "s_barrier": stamp_cyc(A, fine + 2)
        if p.get('stamp') is not None: stamp(A, p['stamp'])
        extra = list(p.get('fill', []))
        late = p.get('late')
        fill = reads(ks + 1) if (ks < 15 and late is None) else []
        m = 0
        groups = extra; extra = []
        for t in range(5):
            for jt in range(2):
                d = acc + (jt * 5 + t) * 4
                c = "0" if ks == 0 else vr(d, 4)
                A(f"v_mfma_f32_16x16x32_bf16 {vr(d,4)}, {vr(FA[buf]+4*jt,4)}, {vr(FB[buf]+4*t,4)}, {c}")
                n = 0
                while fill and n < 2: A(fill.pop(0)); n += 1
                bg = p.get('burst_gap')
                if bg is not None:
                    if m == bg:
                        for g_ in groups:
                            for x in g_: A(x)
                        groups = []
                elif not fill and groups and m >= 3:
                    k = (len(groups) + (9 - m)) // (10 - m)
                    for _ in range(min(k, len(groups))):
                        for x in groups.pop(0): A(x)
                m += 1
        for g_ in groups:
            for x in g_: A(x)
        for e in extra: A(e)
        if fine is not None: stamp_cyc(A, fine + 3)
        if late is not None:
            late(A) if callable(late) else [A(x) for x in late]
            if ks < 15:
                for r in reads(ks + 1): A(r)

def segments(scheme, phi):
    if scheme == 'rot4': return None
    return {'X': [[1,4,4,4,3], [2,4,4,4,2], [3,4,4,4,1], [4,4,4,4]],
            'Y': [[2,4,4,4,2], [2,1,4,4,4,1], [2,1,1,4,4,4], [2,1,1,1,4,4,3]],
            'Z': [[1,4,4,4,3], [1,1,4,4,4,2], [1,1,1,4,4,4,1], [1,1,1,1,4,4,4]],
            'Y2': [[2,4,4,4,2], [2,2,4,4,4], [2,3,4,4,3], [2,4,4,4,2]],
            'L': [[1]*16]*4,
            'R2': [[2]*8, [1] + [2]*7 + [1], [2]*8, [1] + [2]*7 + [1]],
            'R4': [[4]*4]*4,
            'U': [[1,4,4,4,3]]*4,
            'X2': [[1,4,4,4,3], [1,1,4,4,4,2], [3,4,4,4,1], [4,4,4,4]],
            'X3': [[1,4,4,4,3], [2,4,4,4,2], [1,2,4,4,4,1], [4,4,4,4]],
            'X4': [[2,4,4,4,2], [3,4,4,4,1], [4,4,4,4], [1,4,4,4,3]],
            'R3': [[1,3,3,3,3,3], [2,3,3,3,3,2], [3,3,3,3,3,1], [1,3,3,3,3,3]],
            'R8': [[4,4,4,4], [2,4,4,4,2], [4,4,4,4], [2,4,4,4,2]]}[scheme][phi]
def tile_order(scheme, phi, r):
    seg = segments(scheme, phi)
    if seg is None:
        return [((i + phi) & 12) | ((i + phi + r) & 3) for i in range(16)]
    out = []; s0 = 0
    for n in seg:
        out += [s0 + ((u + r) % n) for u in range(n)]; s0 += n
    assert sorted(out) == list(range(16)), (scheme, phi, r, out)
    return out
def table_setup(A):
    A(f"s_and_b32 s{S_T0}, s{S_B}, 3")
    A(f"s_lshl_b32 s{S_T0}, s{S_T0}, 2")
    A(f"s_add_u32 s{S_T0}, s{S_T0}, s{S_R}")
    for idx in range(16):
        o = tile_order(OPT['order'], idx >> 2, idx & 3)
        v = sum(t << (4 * i) for i, t in enumerate(o))
        if idx == 0:
            A(f"s_mov_b32 s{S_TAB}, {hex(v & 0xffffffff)}"); A(f"s_mov_b32 s{S_TAB+1}, {hex(v >> 32)}")
        else:
            A(f"s_cmp_eq_u32 s{S_T0}, {idx}")
            A(f"s_cselect_b32 s{S_TAB}, {hex(v & 0xffffffff)}, s{S_TAB}")
            A(f"s_cselect_b32 s{S_TAB+1}, {hex(v >> 32)}, s{S_TAB+1}")
    A(f"s_mov_b32 s{S_T}, 0")
def off_calc():
    return [f"s_and_b32 s{S_T0}, s{S_TAB}, 15",
            f"s_lshl_b32 s{S_T0}, s{S_T0}, 15",
            f"s_or_b32 s{S_OFF}, s{S_T0}, s{S_W8}",
            f"s_lshr_b64 s[{S_TAB}:{S_TAB+1}], s[{S_TAB}:{S_TAB+1}], 4",
            f"s_cmp_ge_u32 s{S_T}, 16",
            f"s_cselect_b32 s{S_OFF}, 0x80000, s{S_OFF}",
            f"s_add_u32 s{S_OFF2}, s{S_OFF}, 4096",
            f"s_add_u32 s{S_T}, s{S_T}, 1"]
def kv_dma(which, slot):
    srd = SRD_K if which == 'K' else SRD_V
    base = (K0, K1s)[slot] if which == 'K' else (V0, V1)[slot]
    l = []
    for half in range(2):
        l.append(f"s_add_u32 m0, s{S_RW}, {base + 4096 * half}")
        so = S_OFF if half == 0 else S_OFF2
        for i in range(4):
            vo = V_KD + i if which == 'K' else V_VD + (i & 1)
            l.append(f"buffer_load_dwordx4 v{vo}, {sr(srd,4)}, s{so} offen offset:{1024*i} {OPT['kvpol']} lds".replace("  ", " "))
    return l
def with_m0_gap(l):
    out = []
    for x in l:
        out.append(x)
        if x.startswith("s_add_u32 m0"): out.append("s_nop 0")
    return out
def kv_groups(which, slot):
    d = kv_dma(which, slot)
    return [[d[0], "s_nop 0", d[1]], [d[2]], [d[3]], [d[4]], [d[5], "s_nop 0", d[6]], [d[7]], [d[8]], [d[9]]]
def spread(A, main, groups, start=0):
    n = len(main); g = list(groups); k = len(g)
    pos = [start + (n - start) * (i + 1) // (k + 1) for i in range(k)]
    for i, x in enumerate(main):
        while pos and pos[0] <= i and not x.startswith(("s_addc", "s_cselect", "s_cbranch")):
            pos.pop(0)
            for y in g.pop(0): A(y)
        A(x)
    for gg in g:
        for y in gg: A(y)
def k_read(p, slot):
    kt, s = p >> 2, p & 3
    return f"ds_read_b128 {vr(V_KF + 4*p, 4)}, v{V_KA + s} offset:{(K0, K1s)[slot] + 4096*kt}"
def v_read(dt, hf, slot):
    return f"ds_read_b64_tr_b16 {vr(V_VF + 4*dt + 2*hf, 2)}, v{V_VA + dt} offset:{(V0, V1)[slot] + 4096*hf}"
def frag_of(slot):
    return ((slot & 1) * 4 + (slot >> 1)) if OPT['souter'] else slot
def qk_mfma(slot, tq, sbuf):
    p = frag_of(slot)
    kt, s = p >> 2, p & 3
    d = V_S + 8 * sbuf + 4 * kt
    c = vr(V_NEG + 4 * tq, 4) if s == 0 else vr(d, 4)
    return f"v_mfma_f32_16x16x32_bf16 {vr(d,4)}, {vr(V_KF + 4*p, 4)}, {ar(A_Q + (tq*4 + s)*4, 4)}, {c}"
def pv_mfma(dt, tp, pbuf):
    o = A_O + (tp * 8 + dt) * 4
    return f"v_mfma_f32_16x16x32_bf16 {ar(o,4)}, {vr(V_VF + 4*dt, 4)}, {vr(V_P + 4*pbuf, 4)}, {ar(o,4)}"
V_LM, V_ONE = 148, 168
def l_mfma(tp, pbuf):
    d = V_LM + 4 * tp
    return f"v_mfma_f32_16x16x32_bf16 {vr(d,4)}, {vr(V_ONE,4)}, {vr(V_P + 4*pbuf, 4)}, {vr(d,4)}"
def sm_valu(ts, buf):
    S = V_S + 8 * buf; P = V_P + 4 * buf
    g = [[] for _ in range(17)]
    for q in range(4):
        e0, e1 = S + 2 * q, S + 2 * q + 1
        g[4*q + 0].append(f"v_exp_f32 v{e0}, v{e0}")
        g[4*q + 1].append(f"v_exp_f32 v{e1}, v{e1}")
        g[4*q + 2].append(f"v_cvt_pk_bf16_f32 v{P + q}, v{e0}, v{e1}")
    return g

def stage_plan(km, par):
    it = []
    kd, vd = kv_dma('K', par), kv_dma('V', par)
    kl = kd[1:5] + kd[6:10]; vl = vd[1:5] + vd[6:10]
    if km == 0:
        for i, x in enumerate(off_calc()): it.append((i // 2, None, x))
        it.append((5, None, "s_waitcnt lgkmcnt(0)"))
        it.append((6, None, kd[0]))
        it += [(7, 'K', kl[0]), (11, 'K', kl[1]), (15, 'K', kl[2])]
    if km == 1:
        it += [(3, 'K', kl[3]), (4, None, kd[5]), (7, 'K', kl[4])]
        it.append((9, 'waitV', None))
        rd = [(10, 0, 0), (11, 0, 1), (11, 1, 0), (14, 1, 1), (15, 2, 0), (15, 2, 1), (16, 3, 0), (16, 3, 1)]
        for g_, dt, hf in rd: it.append((g_, None, v_read(dt, hf, par)))
        it.append((12, 'K', kl[5]))
    if km == 2:
        rd = [(2, 4, 0), (2, 4, 1), (3, 5, 0), (3, 5, 1), (6, 6, 0), (6, 6, 1), (7, 7, 0), (7, 7, 1)]
        for g_, dt, hf in rd: it.append((g_, None, v_read(dt, hf, par)))
        it += [(7, None, "s_waitcnt lgkmcnt(8)"), (11, 'K', kl[6]), (11, None, "s_waitcnt lgkmcnt(2)"), (14, None, "s_waitcnt lgkmcnt(0)"), (16, 'K', kl[7])]
    if km == 3:
        it += [(0, None, vd[0]), (3, 'V', vl[0]), (7, 'V', vl[1]), (11, 'V', vl[2]), (15, 'V', vl[3]), (16, 'waitK', None)]
    if km == 4:
        rd = [(2, 0), (3, 1), (3, 2), (6, 3), (7, 4), (7, 5), (10, 6), (11, 7)]
        for g_, p in rd: it.append((g_, None, k_read(frag_of(p), 1 - par)))
        it += [(0, None, vd[5]), (4, 'V', vl[4]), (8, 'V', vl[5]), (12, 'V', vl[6]), (15, 'V', vl[7]), (16, None, "s_waitcnt lgkmcnt(2)")]
    return it
def vm_counts():
    seq = []
    waits = {}
    for j in range(3):
        for k in range(10):
            par = 0 if k < 5 else 1
            n = 2 * j + 2 + par
            for g_, tag, x in sorted(stage_plan(k % 5, par), key=lambda e: e[0]):
                if tag in ('K', 'V'): seq.append((tag, n))
                if tag == 'waitV' and j == 2:
                    need = ('V', 2 * j + par)
                    waits[('V', par)] = len(seq) - 1 - max(i for i, u in enumerate(seq) if u == need)
                if tag == 'waitK' and j == 2:
                    need = ('K', 2 * j + 1 + par)
                    waits[('K', par)] = len(seq) - 1 - max(i for i, u in enumerate(seq) if u == need)
    return waits

def main_stage(A, k, last=False, extra=None, first=False):
    tq, ts, tp = k % 5, (k + 4) % 5, (k + 3) % 5
    nv = [[] for _ in range(17)]
    par = 0 if k < 5 else 1
    km = k % 5
    vm = vm_counts()
    for g_, tag, x in stage_plan(km, par):
        if last:
            if tag in ('K', 'V') or (x and (x.startswith("s_add_u32 m0") or x in off_calc())): continue
            if k == 9 and x and x.startswith(("ds_read", "s_waitcnt")): continue
            if tag == 'waitV': nv[g_].append(f"s_waitcnt vmcnt({16 if par == 0 else 0})"); continue
            if tag == 'waitK':
                if par == 0: nv[g_].append("s_waitcnt vmcnt(8)")
                continue
        if tag == 'waitV': x = f"s_waitcnt vmcnt({vm[('V', par)]})"
        if tag == 'waitK': x = f"s_waitcnt vmcnt({vm[('K', par)]})"
        if tag in ('waitV', 'waitK') and OPT.get('vmstall'):
            acc = 92 if tag == 'waitV' else 93
            nv[g_] += ["s_memtime s[94:95]", "s_waitcnt lgkmcnt(0)", x, "s_memtime s[96:97]", "s_waitcnt lgkmcnt(0)", "s_sub_u32 s96, s96, s94", f"s_add_u32 s{acc}, s{acc}, s96"]
            continue
        nv[g_].append(x)
    if k == 0 and not last and not first and OPT['wopf']:
        nv[16] += [f"s_cmp_eq_u32 s{S_CNT}, 1", "s_cbranch_scc1 L_side", "L_side_back:"]
    if extra:
        for g_, x in extra: nv[g_].append(x)
    va = sm_valu(ts, (k + 1) & 1)
    if first and k == 0: va = [[] for _ in range(17)]
    for p in range(17):
        if p < 8 or not first: A(qk_mfma(p, tq, k & 1) if p < 8 else (pv_mfma(p - 8, tp, k & 1) if p < 16 else l_mfma(tp, k & 1)))
        elif va[p] and va[p][0].startswith("v_cvt"): A("s_nop 0")
        for x in nv[p]:
            if x.endswith(":"): A.raw(x); continue
            if OPT['nodma'] and x.startswith("buffer_load"): continue
            if OPT['nods'] and x.startswith("ds_read"): continue
            if OPT['nowait'] and x.startswith("s_waitcnt"): continue
            A(x)
        if OPT['novalu']: continue
        for x in va[p]: A(x)

XL = 122880
TO, VXA = 176, 236
def xaddr(A):
    for j in range(1, 4):
        A(f"s_add_u32 s30, s{S_W}, {j}")
        A(f"s_and_b32 s30, s30, 3")
        A(f"s_mul_i32 s30, s30, 30720")
        A(f"s_add_u32 s30, s30, {(j-1)*10240}")
        A(f"v_add_u32 v{VXA+j-1}, s30, v{V_L16}")
    A(f"v_lshlrev_b32 v8, 2, v1")
    A(f"s_mul_i32 s30, s{S_W}, 1280")
    A(f"s_add_u32 s30, s30, {XL}")
    A(f"v_add_u32 v{VXA+3}, s30, v8")
def xsend(t):
    l = []
    for j in range(1, 4):
        for h in range(2): l.append(f"ds_write_b128 v{VXA+j-1}, {ar(A_O + (t*8 + 2*j + h)*4, 4)} offset:{(t*2+h)*1024}")
    for h in range(2):
        for r in range(4): l.append(f"v_accvgpr_read_b32 v{TO + (t*2+h)*4 + r}, a{A_O + (t*8 + h)*4 + r}")
    return l
def lsend():
    return [f"ds_write_b32 v{VXA+3}, v{V_LM+4*t} offset:{256*t}" for t in range(5)]

def poll(A, tag, srd, soff, nwords, want, vtmp):
    A(f"s_mov_b32 s{S_SPIN}, {SPIN_MAX}")
    A.label(f"L_poll_{tag}")
    for i in range(nwords // 4):
        A(f"buffer_load_dwordx4 {vr(vtmp + 4*i, 4)}, off, {sr(srd,4)}, s{soff} offset:{16*i} sc1")
    A("s_waitcnt vmcnt(0)")
    for i in range(1, nwords): A(f"v_min_u32 v{vtmp}, v{vtmp}, v{vtmp+i}")
    A("s_nop 0")
    A(f"v_readfirstlane_b32 s{S_T0}, v{vtmp}")
    A("s_nop 3")
    A(f"s_cmp_ge_u32 s{S_T0}, {want}")
    A(f"s_cbranch_scc1 L_done_{tag}")
    A(f"s_sub_u32 s{S_SPIN}, s{S_SPIN}, 1")
    A(f"s_cmp_eq_u32 s{S_SPIN}, 0")
    A(f"s_cbranch_scc1 L_done_{tag}")
    A("s_sleep 1")
    A(f"s_branch L_poll_{tag}")
    A.label(f"L_done_{tag}")

def one_lane(A, instrs):
    A("s_mov_b64 exec, 1")
    for x in instrs: A(x)
    A("s_mov_b64 exec, -1")

def gen():
    A = Asm()
    A("s_cmp_ge_u32 s2, 256")
    A("s_cbranch_scc1 L_end")
    stamp(A, 0)
    stamp_cyc(A, 55)
    A("s_load_dwordx16 s[64:79], s[0:1], 0")
    if OPT['codepf']:
        A("s_getpc_b64 s[30:31]")
        A.label("L_pc")
        A("s_lshr_b32 s60, s2, 3")
        A("v_lshrrev_b32 v2, 6, v0")
        A("v_and_b32 v1, 63, v0")
        A("v_lshl_add_u32 v2, s60, 2, v2")
        A("v_lshl_add_u32 v2, v2, 2, v1")
        A("v_lshlrev_b32 v2, 7, v2")
        A("v_mov_b32 v5, s31")
        A("v_add_co_u32 v4, vcc, s30, v2")
        A("s_nop 1")
        A("v_addc_co_u32 v5, vcc, 0, v5, vcc")
        A("v_cmp_gt_u32 vcc, 4, v1")
        A("s_mov_b32 s60, L_text_main_end-L_pc")
        A("v_cmp_gt_u32 s[62:63], s60, v2")
        A("s_nop 1")
        A("s_and_b64 vcc, vcc, s[62:63]")
        A("s_and_saveexec_b64 s[62:63], vcc")
        A("s_cbranch_execz L_nocpf")
        A("global_load_dword v243, v[4:5], off")
        A.label("L_nocpf")
        A("s_mov_b64 exec, s[62:63]")
    A(f"""
    v_lshrrev_b32 v2, 6, v0
    v_and_b32 v1, 63, v0
    s_and_b32 s{S_G}, s2, 7
    s_lshr_b32 s30, s2, 3
    v_readfirstlane_b32 s{S_W}, v2
    s_lshr_b32 s{S_B}, s30, 2
    s_and_b32 s{S_R}, s30, 3
    s_lshl_b32 s{S_H}, s{S_G}, 2
    s_add_u32 s{S_H}, s{S_H}, s{S_R}
    v_and_b32 v3, 15, v1
    v_lshrrev_b32 v4, 4, v1
    v_bfe_u32 v5, v1, 2, 2
    v_and_b32 v6, 3, v1
    s_lshl_b32 s{S_W1K}, s{S_W}, 10
    s_add_u32 s{S_ROT}, s{S_B}, s{S_R}
    s_and_b32 s{S_ROT}, s{S_ROT}, 3
    """)
    ACC, FA, FB, VX, VAW = 148, (188, 196), (204, 224), 244, 252
    VXD, VWD = 84, 92
    A(f"""
    s_lshl_b32 s30, s{S_W}, 2
    v_add_u32 v8, s30, v4                   ; 4w+gq
    v_xor_b32 v9, v3, v8
    v_lshlrev_b32 v9, 4, v9
    v_lshl_add_u32 v{VXD}, v8, 10, v9
    v_lshlrev_b32 v9, 2, v4
    v_xor_b32 v9, v3, v9
    v_lshlrev_b32 v9, 4, v9
    v_lshl_add_u32 v{VWD}, v8, 13, v9
    s_mul_i32 s31, s{S_B}, 81920
    """)
    for t in range(1, 5): A(f"v_add_u32 v{VXD+t}, {t*16384}, v{VXD}")
    for i in range(1, 4): A(f"v_add_u32 v{VWD+i}, {i*16*8192}, v{VWD}")
    WT = [100, 101, 97, 96, 95, 94, 93, 92]
    XT = [88, 89, 90, 91]
    A(f"s_lshl_b32 s{S_T1}, s{S_H}, 8")
    A(f"s_lshl_b32 s{S_T2}, s{S_ROT}, 1")
    for u in range(8):
        A(f"s_add_u32 s{S_T0}, s{S_T2}, {u}")
        A(f"s_and_b32 s{S_T0}, s{S_T0}, 7")
        A(f"s_lshl_b32 s{S_T0}, s{S_T0}, 19")
        A(f"s_add_u32 s{WT[u]}, s{S_T0}, s{S_T1}")
    for a_ in range(4):
        A(f"s_add_u32 s{S_T0}, s{S_ROT}, {a_}")
        A(f"s_and_b32 s{S_T0}, s{S_T0}, 3")
        A(f"s_lshl_b32 s{S_T0}, s{S_T0}, 8")
        A(f"s_add_u32 s{XT[a_]}, s{S_T0}, s31")
    A("s_waitcnt lgkmcnt(0)")
    if OPT.get('qstamps'): stamp(A, 14)
    A(f"""
    s_mov_b32 s{SRD_X}, s64
    s_mov_b32 s{SRD_X+1}, s65
    s_mov_b32 s{SRD_X+2}, {640*1024}
    s_mov_b32 s{SRD_X+3}, 0x00020000
    s_mov_b32 s{SRD_W}, s70
    s_mov_b32 s{SRD_W+1}, s71
    s_mov_b32 s{SRD_W+2}, {512*8192}
    s_mov_b32 s{SRD_W+3}, 0x00020000
    """)
    pool1 = [w*32768 + V0 + h*4096 for w in range(4) for h in range(2)] + [K1s, K1s + 4096]
    pool2 = [w*32768 + K1s + h*4096 for w in (1, 2, 3) for h in range(2)] + [w*32768 + V1 + h*4096 for w in (0, 1) for h in range(2)]
    xarea = lambda a, t: (pool1 if a < 2 else pool2)[(a & 1) * 5 + t]
    wblk = lambda u, e: [[2*32768 + V1, 3*32768 + V1], [LE, LE + 8192], [LE + 16384, LE + 24576], [K0, 32768 + K0], [2*32768 + K0, 3*32768 + K0]][u % 5][e]
    def xdma(a):
        return [[f"s_add_u32 m0, s{S_W1K}, {xarea(a, t)}", "s_nop 0", f"buffer_load_dwordx4 v{VXD+t}, {sr(SRD_X,4)}, s{XT[a]} offen lds"] for t in range(5)]
    def wdma(u):
        return [[f"s_add_u32 m0, s{S_W1K}, {wblk(u, e) + 4096*hh}", "s_nop 0", f"buffer_load_dwordx4 v{VWD+2*e+hh}, {sr(SRD_W,4)}, s{WT[u]} offen lds"]
                for e in range(2) for hh in range(2)]
    def xread(ks, t, dst):
        p = xarea(ks >> 2, t)
        return f"ds_read_b128 {vr(dst,4)}, v{VX + 4*(p >> 16) + (ks & 3)} offset:{p & 0xffff}"
    def wread(ks, jt, hf, dst):
        p = wblk(ks >> 1, ks & 1)
        return f"ds_read_b64_tr_b16 {vr(dst,2)}, v{VAW + (p >> 16)} offset:{(p & 0xffff) + 1024*hf + 8*jt}"
    for g_ in wdma(0) + xdma(0):
        for x in g_: A(x)
    if OPT.get('touch_kv'):
        A(f"s_lshl_b32 s30, s{S_B}, 3")
        A(f"s_add_u32 s30, s30, s{S_G}")
        A(f"s_lshl_b32 s30, s30, 19")
        A(f"s_add_u32 s{SRD_K}, s66, s30")
        A(f"s_addc_u32 s{SRD_K+1}, s67, 0")
        A(f"s_mov_b32 s{SRD_K+2}, 0x80000")
        A(f"s_mov_b32 s{SRD_K+3}, 0x00020000")
        A(f"s_add_u32 s{SRD_V}, s68, s30")
        A(f"s_addc_u32 s{SRD_V+1}, s69, 0")
        A(f"s_mov_b32 s{SRD_V+2}, 0x80000")
        A(f"s_mov_b32 s{SRD_V+3}, 0x00020000")
        A(f"buffer_load_dword v{V_L}, off, {sr(SRD_K,4)}, 0")
        A(f"buffer_load_dword v{V_L+1}, off, {sr(SRD_V,4)}, 0")
    if OPT.get('qstamps'): stamp(A, 15)
    B = Asm()
    B(f"""
    s_lshl_b32 s{S_RW}, s{S_W}, 15
    s_lshl_b32 s{S_W8}, s{S_W}, 13
    s_mov_b32 s{S_FB}, 0
    s_lshl_b32 s30, s{S_B}, 3
    s_add_u32 s30, s30, s{S_G}               ; b*8+g
    s_lshl_b32 s{S_F1}, s30, 7
    s_lshl_b32 s30, s30, 19
    s_add_u32 s{SRD_K}, s66, s30
    s_addc_u32 s{SRD_K+1}, s67, 0
    s_mov_b32 s{SRD_K+2}, 0x80000
    s_mov_b32 s{SRD_K+3}, 0x00020000
    s_add_u32 s{SRD_V}, s68, s30
    s_addc_u32 s{SRD_V+1}, s69, 0
    s_mov_b32 s{SRD_V+2}, 0x80000
    s_mov_b32 s{SRD_V+3}, 0x00020000
    s_add_u32 s{SRD_O}, s78, {WS_O}
    s_addc_u32 s{SRD_O+1}, s79, 0
    s_mov_b32 s{SRD_O+2}, {5 << 20}
    s_mov_b32 s{SRD_O+3}, 0x00020000
    s_add_u32 s{SRD_PP}, s78, {WS_P}
    s_addc_u32 s{SRD_PP+1}, s79, 0
    s_mov_b32 s{SRD_PP+2}, {5 << 20}
    s_mov_b32 s{SRD_PP+3}, 0x00020000
    s_add_u32 s{SRD_FL}, s78, {WS_F}
    s_addc_u32 s{SRD_FL+1}, s79, 0
    s_mov_b32 s{SRD_FL+2}, 16384
    s_mov_b32 s{SRD_FL+3}, 0x00020000
    s_mov_b32 s{SRD_WO}, s72
    s_mov_b32 s{SRD_WO+1}, s73
    s_mov_b32 s{SRD_WO+2}, {4096*1024}
    s_mov_b32 s{SRD_WO+3}, 0x00020000
    s_mov_b32 s{SRD_DBG}, s76
    s_mov_b32 s{SRD_DBG+1}, s77
    s_mov_b32 s{SRD_DBG+2}, 256
    s_mov_b32 s{SRD_DBG+3}, 0x00020000
    s_mov_b32 s{SRD_OUT}, s74
    s_mov_b32 s{SRD_OUT+1}, s75
    s_mov_b32 s{SRD_OUT+2}, {640*1024}
    s_mov_b32 s{SRD_OUT+3}, 0x00020000
    s_lshl_b32 s30, s{S_B}, 2
    s_add_u32 s30, s30, s{S_R}               ; b*4+r
    s_lshl_b32 s{S_F2}, s30, 7
    s_add_u32 s{S_F2}, s{S_F2}, 8192
    s_lshl_b32 s{S_POFF}, s{S_G}, 19
    s_lshl_b32 s30, s30, 14
    s_add_u32 s{S_POFF}, s{S_POFF}, s30
    s_lshl_b32 s30, s{S_W}, 12
    s_add_u32 s{S_POFF}, s{S_POFF}, s30
    v_lshlrev_b32 v{V_L16}, 4, v1
    v_xor_b32 v7, v4, v3
    v_lshlrev_b32 v7, 4, v7
    v_lshl_add_u32 v7, v3, 8, v7            ; n*256 + (gq^n)*16
    """)
    B(f"s_mov_b32 s{S_R15}, s2")
    table_setup(B)
    for s_ in range(4):
        B(f"v_xor_b32 v{VX+s_}, {64*s_}, v7")
        B(f"v_add_u32 v{VX+4+s_}, 0x10000, v{VX+s_}")
        B(f"v_add_u32 v{V_KA+s_}, s{S_RW}, v{VX+s_}")
    B(f"""
    v_lshl_add_u32 v8, v4, 3, v5
    s_lshl_b32 s30, s{S_W}, 2
    v_add_u32 v9, s30, v6
    v_lshlrev_b32 v2, 2, v5
    v_xor_b32 v9, v9, v2
    v_lshlrev_b32 v9, 4, v9
    v_lshl_add_u32 v9, v8, 8, v9
    v_mov_b32 v{VAW}, v9
    v_add_u32 v{VAW+1}, 0x10000, v9
    v_add_u32 v{VAW+2}, 0x20000, v9
    v_lshl_add_u32 v8, v4, 2, v5
    v_and_b32 v9, 7, v8
    v_lshlrev_b32 v9, 5, v9
    v_lshl_add_u32 v9, v8, 8, v9
    v_lshl_add_u32 v9, v6, 3, v9
    """)
    for dt in range(8):
        B(f"s_lshl_b32 s{S_T1}, s{S_W}, 1")
        B(f"s_add_u32 s{S_T1}, s{S_T1}, {dt}")
        B(f"s_and_b32 s{S_T1}, s{S_T1}, 7")
        B(f"s_lshl_b32 s{S_T1}, s{S_T1}, 5")
        B(f"v_xor_b32 v{V_VA+dt}, s{S_T1}, v9")
        B(f"v_add_u32 v{V_VA+dt}, s{S_RW}, v{V_VA+dt}")
    B(f"""
    v_xor_b32 v9, v3, v4
    v_lshlrev_b32 v9, 4, v9
    v_lshl_add_u32 v9, v4, 8, v9
    """)
    for i in range(4): B(f"v_xor_b32 v{V_KD+i}, {64*i}, v9")
    B(f"""
    v_lshlrev_b32 v9, 1, v4
    v_xor_b32 v9, v3, v9
    v_lshlrev_b32 v9, 4, v9
    v_lshl_add_u32 v{V_VD}, v4, 8, v9
    v_xor_b32 v{V_VD+1}, 128, v{V_VD}
    """)
    for i in range(4 if OPT['peel_first'] else 32): B(f"v_mov_b32 v{V_VF+i}, 0")
    B("s_nop 1")
    for i in range(10): B(f"v_mfma_f32_32x32x16_bf16 {ar(A_O+16*i,16)}, {vr(V_VF,4)}, {vr(V_VF,4)}, 0")
    if not OPT['peel_first']:
        for i in range(4): B(f"v_mov_b32 v{V_P+i}, 0")
        for i in range(8): B(f"v_mov_b32 v{V_S+8+i}, 0xff7fffff")
    spread(A, [x.strip() for x in B.l], wdma(1))
    A(f"s_cmp_eq_u32 s{S_W}, {0 if not OPT.get('noinit') else 7}")
    A("s_cbranch_scc0 L_noclr")
    A(f"s_lshl_b32 s{S_T0}, s{S_R}, 2")
    A(f"s_add_u32 s{S_T0}, s{S_T0}, s{S_F1}")
    A(f"s_lshl_b32 s{S_T1}, s{S_G}, 2")
    A(f"s_add_u32 s{S_T1}, s{S_T1}, s{S_F2}")
    A("v_mov_b32 v2, 0")
    one_lane(A, [f"buffer_store_dword v2, off, {sr(SRD_FL,4)}, s{S_T0} sc1", f"buffer_store_dword v2, off, {sr(SRD_FL,4)}, s{S_T1} sc1"])
    A.label("L_noclr")
    if OPT.get('qstamps'): stamp(A, 16)
    seq0 = ['W0'] * 4 + ['xA'] * 5 + ['W1'] * 4
    A(f"s_waitcnt vmcnt(4)")
    if OPT.get('qstamps'): stamp(A, 17)
    A("s_barrier")
    stamp(A, 1)
    stamp_cyc(A, 56)
    NV = 4 if OPT['qvar'] == 4 else (2 if OPT['qvar'] == 2 else 1)
    if NV == 4:
        for wv in range(1, 4):
            A(f"s_cmp_eq_u32 s{S_W}, {wv}")
            A(f"s_cbranch_scc1 L_qp{wv}")
    if NV == 2:
        A(f"s_cmp_ge_u32 s{S_W}, 2")
        A(f"s_cbranch_scc1 L_qp2")
    for wv in ((0, 1, 2, 3) if NV == 4 else ((0, 2) if NV == 2 else (0,))):
        if wv: A.label(f"L_qp{wv}")
        seq = list(seq0)
        def vm_for(need):
            last = max(i for i, t in enumerate(seq) if t in need)
            return len(seq) - 1 - last
        arrive = [f"s_lshr_b32 s{S_T0}, s{S_F1}, 5", "v_mov_b32 v2, 1", "s_mov_b64 exec, 1",
                  f"buffer_atomic_add v2, off, {sr(SRD_DBG,4)}, s{S_T0} sc1", "s_mov_b64 exec, -1"] if wv == 0 else []
        if NV < 4 and wv == 0: arrive = [f"s_cmp_eq_u32 s{S_W}, 0", "s_cbranch_scc0 L_noarr"] + arrive + ["L_noarr:"]
        kg0, vg0, kg1 = kv_groups('K', 0), kv_groups('V', 0), kv_groups('K', 1)
        kg0[0] = off_calc() + kg0[0]
        kg1[0] = off_calc() + kg1[0]
        ival = {0: [('xB', xdma(1)), ('W2', wdma(2))], 1: [('W3', wdma(3)), ('W4', wdma(4))], 2: [('xC', xdma(2)), ('W5', wdma(5))],
                3: [('W6', wdma(6)), ('xD', xdma(3))], 4: [('W7', wdma(7))], 5: [('K0', kg0)], 6: [('V0', vg0)], 7: []}
        needs = {1: ['W1'], 3: ['xB', 'W2'], 5: ['W3'], 7: ['xC', 'W4'], 9: ['W5'], 11: ['xD', 'W6'], 13: ['W7'], 15: None}
        plan = {}
        for ks in range(16):
            p = {}
            if ks in needs:
                p['pre'] = ([f"s_waitcnt vmcnt({vm_for(needs[ks])})"] if needs[ks] else []) + ["s_barrier"]
                if ks == OPT.get('arrive_ks', 13) and not OPT.get('noinit'): p['pre'] += arrive
            u = (ks + 1) >> 1
            first = (ks & 1) == 1 or ks == 0
            mine = (ks == 0) or (first and wv < 2) or (not first and wv >= 2)
            fill = []
            if NV == 1:
                allg = [(tag, g_) for tag, gs in ival.get(u, []) for g_ in gs]
                h = len(allg) if ks == 0 else (len(allg) + 1) // 2
                part = allg[:h] if first else allg[h:]
                if ks < 15:
                    for tag, g_ in part: fill.append(g_); seq.append(tag)
            elif ks < 15 and mine:
                for tag, gs in ival.get(u, []):
                    fill += gs; seq += [tag] * len(gs)
                if NV == 4: p['burst_gap'] = (4, 5, 7, 9)[wv] if ks == 0 else (4, 9)[wv & 1]
            if ks == 15 and wv < 2:
                fill = kg1; seq += ['K1'] * 8
                if NV == 4: p['burst_gap'] = (0, 9)[wv]
            p['fill'] = fill
            plan[ks] = p
        if OPT.get('qstamps'):
            for i, ks in enumerate((1, 3, 5, 7, 9, 11, 13, 15)): plan[ks]['stamp'] = 22 + i
        if OPT.get('fine'):
            for i, ks in enumerate(OPT['fine']): plan.setdefault(ks, {})['fine'] = 32 + 4 * i
        gemm_core(A, ACC, FA, FB, xread, wread, plan)
        stamp(A, 2)
        stamp_cyc(A, 57)
        A(f"s_mov_b32 s30, {hex(f32(C_SCALE))}")
        A(f"v_add_u32 v8, s{S_W1K}, v{V_L16}")
        A(f"v_add_u32 v8, {LE}, v8")
        A("s_nop 4")
        for t in range(5):
            for jt in range(2):
                d = ACC + (jt*5 + t)*4
                for h in range(2): A(f"v_pk_mul_f32 {vr(d+2*h,2)}, {vr(d+2*h,2)}, s[30:31] op_sel_hi:[1,0]")
            q = FB[0] + 4*t
            for jt in range(2):
                d = ACC + (jt*5 + t)*4
                A(f"v_cvt_pk_bf16_f32 v{q+2*jt}, v{d}, v{d+1}")
                A(f"v_cvt_pk_bf16_f32 v{q+2*jt+1}, v{d+2}, v{d+3}")
            A(f"ds_write_b128 v8, {vr(q,4)} offset:{t*4096}")
            if wv >= 2 and t == (1, 3)[wv - 2]:
                for g_ in kg1:
                    for x in g_: A(x)
        if wv < (3 if NV == 4 else (2 if NV == 2 else 0)): A("s_branch L_qdone")
    A.label("L_qdone")
    if OPT.get('qstamps'): stamp(A, 18)
    A("s_waitcnt vmcnt(16) lgkmcnt(0)")
    if OPT.get('qstamps'): stamp(A, 19)
    A("s_barrier")
    stamp(A, 30)
    A(f"v_add_u32 v8, {LE}, v{V_L16}")
    ST = 188
    if OPT['standin']:
        for s in range(4): A(f"ds_read_b128 {vr(ST+4*s,4)}, v{VX+s} offset:{K0}")
    for t in range(5):
        for s in range(4): A(f"ds_read_b128 {ar(A_Q+(t*4+s)*4,4)}, v8 offset:{(t*4+s)*1024}")
    if not OPT['qpipe']:
        for p in range(8): A(k_read(p, 0))
        for g_ in kv_groups('V', 1):
            for x in g_: A(x)
    if OPT.get('qstamps'): stamp(A, 32)
    VL2, VA2, VWD2, VCHK = 244, 245, 247, 248
    A(f"""
    v_lshl_add_u32 v8, v4, 2, v5
    s_lshl_b32 s30, s{S_W}, 2
    v_add_u32 v9, s30, v6
    v_lshlrev_b32 v2, 2, v5
    v_xor_b32 v9, v9, v2
    v_lshlrev_b32 v9, 4, v9
    v_lshl_add_u32 v9, v8, 8, v9
    v_add_u32 v8, s30, v4
    v_lshlrev_b32 v2, 2, v4
    v_xor_b32 v2, v3, v2
    v_lshlrev_b32 v2, 4, v2
    """)
    for i in range(20): A(f"v_mov_b32 v{V_LM+i}, 0")
    if OPT['onerow']:
        A("v_cmp_eq_u32 vcc, 0, v3")
        A(f"v_mov_b32 v{V_ONE}, 0x3f803f80")
        A("s_nop 0")
        A(f"v_cndmask_b32 v{V_ONE}, 0, v{V_ONE}, vcc")
        for i in range(1, 4): A(f"v_mov_b32 v{V_ONE+i}, v{V_ONE}")
    else:
        for i in range(4): A(f"v_mov_b32 v{V_ONE+i}, 0x3f803f80")
    if OPT['standin'] and OPT['qpipe']:
        later = [[k_read(p, 0)] for p in range(8)] + kv_groups('V', 1)
        nds = 0
        for t in range(5):
            A(f"s_waitcnt lgkmcnt({min(15, 4*(4-t) + nds)})")
            for s in range(4):
                d = V_NEG + 4*t
                A(f"v_mfma_f32_16x16x32_bf16 {vr(d,4)}, {vr(ST+4*s,4)}, {ar(A_Q+(t*4+s)*4,4)}, {'0' if s == 0 else vr(d,4)}")
                if later:
                    g_ = later.pop(0)
                    for x in g_: A(x)
                    if g_[0].startswith("ds_read"): nds += 1
    elif OPT['standin']:
        A("s_waitcnt lgkmcnt(8)")
        for t in range(5):
            for s in range(4):
                d = V_NEG + 4*t
                A(f"v_mfma_f32_16x16x32_bf16 {vr(d,4)}, {vr(ST+4*s,4)}, {ar(A_Q+(t*4+s)*4,4)}, {'0' if s == 0 else vr(d,4)}")
    if OPT.get('qstamps'): stamp(A, 31)
    A(f"v_add_u32 v{VA2}, 0x10000, v9")
    A(f"v_add_u32 v{VA2+1}, 0x20000, v9")
    A(f"v_lshl_add_u32 v{VWD2}, v8, 10, v2")
    A(f"v_add_u32 v{VL2}, 0x10000, v{V_L16}")
    if OPT['standin']:
        T = 204
        A("s_nop 4")
        for t in range(5):
            d = V_NEG + 4*t
            A(f"v_max3_f32 v{T+t}, v{d}, v{d+1}, v{d+2}")
        for t in range(5): A(f"v_max_f32 v{T+t}, v{T+t}, v{V_NEG+4*t+3}")
        for swap in ("v_permlane32_swap_b32", "v_permlane16_swap_b32"):
            for t in range(5): A(f"v_mov_b32 v{T+8+t}, v{T+t}")
            for t in range(5): A(f"{swap} v{T+t}, v{T+8+t}")
            for t in range(5): A(f"v_max_f32 v{T+t}, v{T+t}, v{T+8+t}")
        for t in range(5):
            for r in range(4): A(f"v_xor_b32 v{V_NEG+4*t+r}, 0x80000000, v{T+t}")
    else:
        for i in range(20): A(f"v_mov_b32 v{V_NEG+i}, 0")
    A("s_waitcnt lgkmcnt(0)")
    A("s_barrier")
    A(f"s_mov_b32 s{S_CNT}, 7")
    if OPT.get('vmstall'):
        A("s_mov_b32 s92, 0"); A("s_mov_b32 s93, 0")
    stamp(A, 3)
    stamp_cyc(A, 20)
    if OPT['peel_first']:
        for k in range(2): main_stage(A, k, first=True)
        A("s_branch L_loop2")
    A.raw(".p2align 6")
    A.label("L_loop")
    for k in range(10):
        if k == 2: A.label("L_loop2")
        main_stage(A, k)
    A(f"s_sub_u32 s{S_CNT}, s{S_CNT}, 1")
    A(f"s_cmp_lg_u32 s{S_CNT}, 0")
    A("s_cbranch_scc1 L_loop")
    if OPT.get('vmstall'):
        A("v_writelane_b32 v39, s92, 61"); A("v_writelane_b32 v39, s93, 62")
    xarea2 = lambda a, t: (a * 5 + t) * 4096
    VA0 = 9
    wslot = [LE, LE + 16384, 81920, 98304, 114688]
    wblk2 = lambda u, e: (wslot[u % 5] if u < 7 else 0) + 8192 * e
    def wdma2(u):
        pre = [f"s_lshl_b32 s{S_T0}, s{S_R}, 1", f"s_add_u32 s{S_T0}, s{S_T0}, {u}", f"s_and_b32 s{S_T0}, s{S_T0}, 7", f"s_lshl_b32 s{S_T0}, s{S_T0}, 16",
               f"s_add_u32 s{S_WK}, s{S_T0}, s{S_WOB}"]
        l = []
        for e in range(2):
            for hh in range(2):
                l.append([f"s_add_u32 m0, s{S_W1K}, {wblk2(u, e) + 4096*hh}", f"s_add_u32 s{S_T0}, s{S_WK}, {(32*e + 16*hh)*1024}",
                          f"buffer_load_dwordx4 v{VWD2}, {sr(SRD_WO,4)}, s{S_T0} offen lds"])
        l[0] = pre + l[0]
        return l
    def xdma2(a):
        pre = [f"s_add_u32 s{S_T0}, s{S_R}, {a}", f"s_and_b32 s{S_T0}, s{S_T0}, 3", f"s_lshl_b32 s{S_T0}, s{S_T0}, 2",
               f"s_add_u32 s{S_T0}, s{S_T0}, s{S_W}", f"s_mul_i32 s{S_T0}, s{S_T0}, 5120", f"s_add_u32 s{S_XOFF}, s{S_T0}, s{S_XB}"]
        l = []
        for t in range(5):
            l.append([f"s_add_u32 m0, s{S_W1K}, {xarea2(a, t)}", f"s_add_u32 s{S_T0}, s{S_XOFF}, {t*1024}",
                      f"buffer_load_dwordx4 v{V_L16}, {sr(SRD_O,4)}, s{S_T0} offen sc1 lds"])
        l[0] = pre + l[0]
        return l
    flat = lambda gs: [x for g_ in gs for x in g_]
    def xread2(ks, t, dst):
        p = xarea2(ks >> 2, t) + (ks & 3) * 1024
        return f"ds_read_b128 {vr(dst,4)}, v{V_L16 if p < 65536 else VL2} offset:{p & 0xffff}"
    def wread2(ks, jt, hf, dst):
        p = wblk2(ks >> 1, ks & 1)
        return f"ds_read_b64_tr_b16 {vr(dst,2)}, v{(VA2 + (p >> 16) - 1) if p >= 65536 else VA0} offset:{(p & 0xffff) + 4096*hf + 8*jt}"
    A(f"s_lshl_b32 s{S_WOB}, s{S_G}, 19")
    A(f"s_lshl_b32 s{S_T1}, s{S_R}, 8")
    A(f"s_add_u32 s{S_WOB}, s{S_WOB}, s{S_T1}")
    wg = wdma2(0) + wdma2(1)
    ex = {7: [(g_, x) for g_, grp in zip((3, 7, 11, 15), wg[:4]) for x in grp], 8: [(g_, x) for g_, grp in zip((3, 7, 11, 15), wg[4:]) for x in grp],
          9: [(3, f"s_lshl_b32 s{S_T2}, s{S_B}, 5"), (3, f"buffer_load_dwordx4 {vr(VCHK,4)}, off, {sr(SRD_DBG,4)}, s{S_T2} sc1"),
              (7, f"buffer_load_dwordx4 {vr(VCHK+4,4)}, off, {sr(SRD_DBG,4)}, s{S_T2} offset:16 sc1")]}
    for k in range(10): main_stage(A, k, last=True, extra=ex.get(k))
    stamp(A, 4)
    stamp_cyc(A, 21)
    A(f"s_lshl_b32 s30, s{S_B}, 7")
    A(f"s_lshl_b32 s31, s{S_G}, 4")
    A(f"s_add_u32 s30, s30, s31")
    A(f"s_mul_i32 s{S_XB}, s30, 5120")
    A("s_barrier")
    xaddr(A)
    side = [x for t in range(3) for x in xsend(t)]
    va = sm_valu(4, 1)
    n_side = len(side)
    for p in range(17):
        if p >= 8: A(pv_mfma(p - 8, 3, 0) if p < 16 else l_mfma(3, 0))
        for x in va[p]: A(x)
        if p < 8 and p % 4 in (1,): A("s_nop 0")
        for _ in range(2):
            if side: A(side.pop(0))
    A("s_nop 1")
    for dt in range(8):
        A(pv_mfma(dt, 4, 1))
        if side: A(side.pop(0))
    A(l_mfma(4, 1))
    for x in side: A(x)
    for x in xsend(3): A(x)
    A("s_nop 3")
    for x in xsend(4) + lsend(): A(x)
    A.label("L_comb2")
    A("s_waitcnt lgkmcnt(0)")
    A("s_barrier")
    stamp(A, 5)
    stamp_cyc(A, 58)
    TL, RC, TR = 216, 120, 60
    A(f"v_add_u32 v9, {XL}, v8")
    for w in range(4):
        for t in range(5): A(f"ds_read_b32 v{TL + w*5 + t}, v9 offset:{w*1280 + t*256}")
    A(f"s_mul_i32 s30, s{S_W}, 30720")
    A(f"v_add_u32 v9, s30, v{V_L16}")
    rq = lambda q, sl: TR + ((q % 5)*3 + sl)*4
    def rd(q):
        for sl in range(3): A(f"ds_read_b128 {vr(rq(q, sl), 4)}, v9 offset:{(sl*10+q)*1024}")
    for q in range(3): rd(q)
    A("s_waitcnt lgkmcnt(9)")
    for t in range(5):
        A(f"v_add_f32 v{TL+t}, v{TL+t}, v{TL+5+t}")
        A(f"v_add_f32 v{TL+10+t}, v{TL+10+t}, v{TL+15+t}")
    for t in range(5): A(f"v_add_f32 v{TL+t}, v{TL+t}, v{TL+10+t}")
    if OPT['onerow']:
        for swap in ("v_permlane32_swap_b32", "v_permlane16_swap_b32"):
            for t in range(5): A(f"v_mov_b32 v{TL+8+t}, v{TL+t}")
            for t in range(5): A(f"{swap} v{TL+t}, v{TL+8+t}")
            for t in range(5): A(f"v_add_f32 v{TL+t}, v{TL+t}, v{TL+8+t}")
    if OPT['fallback']:
        A(f"v_add_f32 v{TL+9}, v{TL}, v{TL+1}")
        A(f"v_add_f32 v{TL+9}, v{TL+9}, v{TL+2}")
        A(f"v_add_f32 v{TL+9}, v{TL+9}, v{TL+3}")
        A(f"v_add_f32 v{TL+9}, v{TL+9}, v{TL+4}")
        A(f"s_mov_b32 s30, {hex(f32(2.0**40))}")
        A(f"v_cmp_ngt_f32 s[{S_BAD}:{S_BAD+1}], s30, v{TL+9}")
    for t in range(5): A(f"v_rcp_f32 v{RC+2*t}, v{TL+t}")
    OF = 100
    for q in range(10):
        if q + 3 < 10: rd(q + 3)
        A(f"s_waitcnt lgkmcnt({min(9, 3*(9-q))})")
        if q == 9: A("s_barrier")
        o = TO + 4*q
        for sl in range(3):
            for h in range(2):
                A(f"v_pk_add_f32 {vr(o+2*h,2)}, {vr(o+2*h,2)}, {vr(rq(q, sl)+2*h,2)}")
        t = q >> 1
        for h in range(2): A(f"v_pk_mul_f32 {vr(o+2*h,2)}, {vr(o+2*h,2)}, {vr(RC+2*t,2)} op_sel_hi:[1,0]")
    if OPT['fallback']:
        A(f"s_cmp_eq_u64 s[{S_BAD}:{S_BAD+1}], 0")
        A("s_cbranch_scc1 L_sum_ok")
        A(f"s_cmp_eq_u32 s{S_FB}, 0")
        A("s_cbranch_scc1 L_fallback")
        A.label("L_sum_ok")
    for t in range(5):
        for i in range(4): A(f"v_cvt_pk_bf16_f32 v{OF+4*t+i}, v{TO + t*8 + 2*i}, v{TO + t*8 + 2*i + 1}")
    stamp(A, 6)
    A(f"s_lshl_b32 s30, s{S_R}, 2")
    A(f"s_add_u32 s30, s30, s{S_W}")
    A(f"s_mul_i32 s30, s30, 5120")
    A(f"s_add_u32 s30, s30, s{S_XB}")
    for t in range(5):
        if t == 4: A("s_add_u32 s30, s30, 4096")
        A(f"buffer_store_dwordx4 {vr(OF+4*t,4)}, v{V_L16}, {sr(SRD_O,4)}, s30 offen offset:{(t*1024) & 4095} sc1")
    A(f"v_add_u32 v8, s{S_W1K}, v{V_L16}")
    for t in range(5): A(f"ds_write_b128 v8, {vr(OF+4*t,4)} offset:{xarea2(0, t)}")
    A(f"v_add_u32 v{VA0}, 0xffff0000, v{VA2}")
    A("s_waitcnt vmcnt(0) lgkmcnt(0)")
    A("s_barrier")
    A(f"s_cmp_eq_u32 s{S_W}, 0")
    A("s_cbranch_scc0 L_noflag1")
    A(f"s_lshl_b32 s{S_T0}, s{S_R}, 2")
    A(f"s_add_u32 s{S_T0}, s{S_T0}, s{S_F1}")
    A("v_mov_b32 v2, 1")
    one_lane(A, [f"buffer_store_dword v2, off, {sr(SRD_FL,4)}, s{S_T0} sc1"])
    A.label("L_noflag1")
    VF1 = 56 - 56 + 120
    A(f"buffer_load_dwordx4 {vr(VF1,4)}, off, {sr(SRD_FL,4)}, s{S_F1} sc1")
    stamp(A, 7)
    def wait_group(A):
        for i in range(1, 8): A(f"v_min_u32 v{VCHK}, v{VCHK}, v{VCHK+i}")
        A("s_nop 0")
        A(f"v_readfirstlane_b32 s{S_T0}, v{VCHK}")
        A("s_nop 3")
        A(f"s_cmp_ge_u32 s{S_T0}, {4 if not OPT.get('noinit') else 0}")
        A(f"s_cselect_b32 s{S_INIT}, 1, 0")
        A(f"s_cmp_ge_u32 s{S_T0}, {4 if not OPT.get('noinit') else 0}")
        A("s_cbranch_scc1 L_done_init")
        A(f"s_lshl_b32 s{S_T2}, s{S_B}, 5")
        poll(A, "init", SRD_DBG, S_T2, 8, 4, VCHK)
        A("s_waitcnt vmcnt(0)")
        A(f"s_cmp_eq_u32 s{S_INIT}, 1")
        A("s_cbranch_scc0 L_look_again")
        for i in range(1, 4): A(f"v_min_u32 v{VF1}, v{VF1}, v{VF1+i}")
        A("s_nop 0")
        A(f"v_readfirstlane_b32 s{S_T0}, v{VF1}")
        A("s_nop 3")
        A(f"s_cmp_ge_u32 s{S_T0}, 1")
        A("s_cbranch_scc1 L_done_f1")
        A.label("L_look_again")
        poll(A, "f1", SRD_FL, S_F1, 4, 1, VCHK)
        stamp(A, 8)
        for x in flat(xdma2(1) + xdma2(2) + xdma2(3)): A(x)
        A("s_waitcnt vmcnt(10)")
        A("s_barrier")
        stamp(A, 9)
    plan2 = {0: dict(fill=wdma2(2)), 1: dict(pre=["s_barrier"], fill=wdma2(3)), 2: dict(fill=wdma2(4)),
             3: dict(pre=["s_barrier"], late=wait_group),
             4: dict(fill=wdma2(5)), 5: dict(fill=wdma2(6)), 6: dict(fill=wdma2(7)),
             7: dict(pre=["s_waitcnt vmcnt(17)", "s_barrier"]),
             9: dict(pre=["s_waitcnt vmcnt(8)", "s_barrier"]),
             11: dict(pre=["s_waitcnt vmcnt(4)", "s_barrier"]),
             13: dict(pre=["s_waitcnt vmcnt(0)", "s_barrier"])}
    gemm_core(A, ACC, FA, FB, xread2, wread2, plan2)
    stamp(A, 10)
    stamp_cyc(A, 59)
    A(f"""
    s_lshl_b32 s30, s{S_B}, 2
    s_add_u32 s30, s30, s{S_R}
    s_lshl_b32 s30, s30, 2
    s_mul_i32 s{S_XB}, s30, 40960
    s_mul_i32 s30, s{S_W}, 40960
    s_add_u32 s30, s30, s{S_XB}
    s_lshl_b32 s31, s{S_G}, 10
    s_add_u32 s30, s30, s31
    """)
    PB = 60
    for t in range(5):
        d0, d1 = ACC + 4*t, ACC + 4*(5 + t)
        A(f"v_cvt_pk_bf16_f32 v{PB+4*t}, v{d0}, v{d0+1}")
        A(f"v_cvt_pk_bf16_f32 v{PB+4*t+1}, v{d0+2}, v{d0+3}")
        A(f"v_cvt_pk_bf16_f32 v{PB+4*t+2}, v{d1}, v{d1+1}")
        A(f"v_cvt_pk_bf16_f32 v{PB+4*t+3}, v{d1+2}, v{d1+3}")
        A(f"s_add_u32 s31, s30, {t*8192}")
        A(f"buffer_store_dwordx4 {vr(PB+4*t,4)}, v{V_L16}, {sr(SRD_PP,4)}, s31 offen sc1")
    A("s_waitcnt vmcnt(0)")
    A("s_barrier")
    A(f"s_cmp_eq_u32 s{S_W}, 0")
    A("s_cbranch_scc0 L_noflag2")
    A(f"s_lshl_b32 s{S_T0}, s{S_G}, 2")
    A(f"s_add_u32 s{S_T0}, s{S_T0}, s{S_F2}")
    A("v_mov_b32 v2, 1")
    one_lane(A, [f"buffer_store_dword v2, off, {sr(SRD_FL,4)}, s{S_T0} sc1"])
    A.label("L_noflag2")
    stamp(A, 11)
    A(f"s_lshl_b32 s30, s{S_W}, 3")
    A(f"s_add_u32 s30, s30, s{S_G}")
    A("s_cmp_ge_u32 s30, 20")
    A("s_cbranch_scc1 L_fin")
    poll(A, "f2", SRD_FL, S_F2, 8, 1, VCHK)
    stamp(A, 12)
    A(f"s_mul_hi_u32 s31, s30, {(1 << 32)//5 + 1}")
    A(f"s_mul_i32 s{S_T0}, s31, 5")
    A(f"s_sub_u32 s{S_T1}, s30, s{S_T0}              ; t")
    A(f"s_mul_i32 s{S_T0}, s31, 40960")
    A(f"s_add_u32 s{S_T0}, s{S_T0}, s{S_XB}")
    A(f"s_lshl_b32 s{S_T2}, s{S_T1}, 13")
    A(f"s_add_u32 s{S_T0}, s{S_T0}, s{S_T2}")
    RB = 60
    for g in range(8):
        if g == 4: A(f"s_add_u32 s{S_T0}, s{S_T0}, 4096")
        A(f"buffer_load_dwordx4 {vr(RB + 4*g, 4)}, v{V_L16}, {sr(SRD_PP,4)}, s{S_T0} offen offset:{(g%4)*1024} sc1")
    A(f"""
    s_mul_i32 s{S_T0}, s{S_B}, 80
    s_lshl_b32 s{S_T1}, s{S_T1}, 4
    s_add_u32 s{S_T0}, s{S_T0}, s{S_T1}
    v_add_u32 v8, s{S_T0}, v3
    v_lshlrev_b32 v8, 10, v8
    s_lshl_b32 s{S_T0}, s{S_R}, 2
    s_add_u32 s{S_T0}, s{S_T0}, s31
    s_lshl_b32 s{S_T0}, s{S_T0}, 6
    v_lshl_add_u32 v8, v4, 4, v8
    v_add_u32 v8, s{S_T0}, v8
    """)
    SUM, UN = 100, 110
    for g in range(8):
        A(f"s_waitcnt vmcnt({7-g})")
        dst = SUM if g == 0 else UN
        for i in range(4):
            A(f"v_lshlrev_b32 v{dst+2*i}, 16, v{RB+4*g+i}")
            A(f"v_and_b32 v{dst+2*i+1}, 0xffff0000, v{RB+4*g+i}")
        if g:
            for i in range(4): A(f"v_pk_add_f32 {vr(SUM+2*i,2)}, {vr(SUM+2*i,2)}, {vr(UN+2*i,2)}")
    for i in range(4): A(f"v_cvt_pk_bf16_f32 v{RB+64+i}, v{SUM+2*i}, v{SUM+2*i+1}")
    A(f"buffer_store_dwordx4 {vr(RB+64,4)}, v8, {sr(SRD_OUT,4)}, 0 offen")
    A.label("L_fin")
    A("s_waitcnt vmcnt(0)")
    stamp(A, 13)
    stamp_cyc(A, 60)
    stamp_out(A)
    if OPT.get('amp'):
        i0, i1, M = OPT['amp']
        A(f"s_add_u32 s30, s{S_R15}, s{S_W}")
        A("s_cmp_eq_u32 s30, 0")
        A("s_cbranch_scc0 L_end")
        A(f"v_readlane_b32 s30, v39, {i0}")
        A(f"v_readlane_b32 s31, v39, {i1}")
        A("s_nop 3")
        A("s_sub_u32 s30, s31, s30")
        A("s_min_u32 s30, s30, 10000")
        A(f"s_mul_i32 s30, s30, {M}")
        A("s_memrealtime s[64:65]")
        A("s_waitcnt lgkmcnt(0)")
        A.label("L_amp")
        A("s_sleep 4")
        A("s_memrealtime s[66:67]")
        A("s_waitcnt lgkmcnt(0)")
        A("s_sub_u32 s31, s66, s64")
        A("s_cmp_lt_u32 s31, s30")
        A("s_cbranch_scc1 L_amp")
    A.label("L_end")
    A("s_endpgm")
    if OPT['wopf']:
        A.label("L_side")
        for i in range(4):
            A(f"s_add_u32 m0, s{S_W1K}, {LE + 4096*i}")
            A(f"s_add_u32 s{S_T0}, s{S_POFF}, {1024*i}")
            A(f"buffer_load_dwordx4 v{V_L16}, {sr(SRD_WO,4)}, s{S_T0} offen lds")
        A(f"s_add_u32 m0, s{S_RW}, {K0}")
        A("s_branch L_side_back")
    A.label("L_text_main_end")
    if OPT['fallback']: gen_fallback(A)
    A.label("L_text_end")
    A("s_endpgm")
    return A.text()

def gen_fallback(A):
    M, AL, T = V_NEG, V_NEG + 8, 148
    SF = 160
    A.label("L_fallback")
    A(f"s_mov_b32 s{S_FB}, 1")
    for i in range(160): A(f"v_accvgpr_write_b32 a{A_O+i}, 0")
    for i in range(10): A(f"v_mov_b32 v{V_L+i}, 0")
    for t in range(5): A(f"v_mov_b32 v{M+t}, 0xff7fffff")
    A(f"s_mov_b32 s{S_CNT}, 16")
    A(f"s_mov_b32 s{S_OFF}, s{S_W8}")
    A.label("L_fb_loop")
    A(f"s_add_u32 s{S_OFF2}, s{S_OFF}, 4096")
    for x in with_m0_gap(kv_dma('K', 0)) + with_m0_gap(kv_dma('V', 0)): A(x)
    A("s_waitcnt vmcnt(0)")
    for p in range(8): A(k_read(p, 0))
    for dt in range(8):
        for hf in range(2): A(v_read(dt, hf, 0))
    A("s_waitcnt lgkmcnt(0)")
    for t in range(5):
        for p in range(8):
            kt, s = p >> 2, p & 3
            d = SF + 8*t + 4*kt
            A(f"v_mfma_f32_16x16x32_bf16 {vr(d,4)}, {vr(V_KF+4*p,4)}, {ar(A_Q+(t*4+s)*4,4)}, {'0' if s == 0 else vr(d,4)}")
    A("s_nop 7")
    for t in range(5):
        d = SF + 8*t
        A(f"v_max3_f32 v{T+t}, v{d}, v{d+1}, v{d+2}")
        A(f"v_max3_f32 v{T+t}, v{T+t}, v{d+3}, v{d+4}")
        A(f"v_max3_f32 v{T+t}, v{T+t}, v{d+5}, v{d+6}")
        A(f"v_max3_f32 v{T+t}, v{T+t}, v{d+7}, v{M+t}")
    A("s_nop 1")
    for swap in ("v_permlane32_swap_b32", "v_permlane16_swap_b32"):
        for t in range(5): A(f"v_mov_b32 v{T+5+t}, v{T+t}")
        for t in range(5): A(f"{swap} v{T+t}, v{T+5+t}")
        for t in range(5): A(f"v_max_f32 v{T+t}, v{T+t}, v{T+5+t}")
    for t in range(5): A(f"v_sub_f32 v{AL+t}, v{M+t}, v{T+t}")
    for t in range(5): A(f"v_exp_f32 v{AL+t}, v{AL+t}")
    for t in range(5): A(f"v_mov_b32 v{M+t}, v{T+t}")
    for t in range(5):
        for i in range(8): A(f"v_sub_f32 v{SF+8*t+i}, v{SF+8*t+i}, v{M+t}")
    for t in range(5):
        for i in range(8): A(f"v_exp_f32 v{SF+8*t+i}, v{SF+8*t+i}")
    A("s_nop 0")
    for t in range(5):
        A(f"v_mul_f32 v{V_L+2*t}, v{V_L+2*t}, v{AL+t}")
        for i in range(8): A(f"v_add_f32 v{V_L+2*t}, v{V_L+2*t}, v{SF+8*t+i}")
    for t in range(5):
        for i in range(32):
            A(f"v_accvgpr_read_b32 v{T+10}, a{A_O+t*32+i}")
            A(f"v_mul_f32 v{T+10}, v{T+10}, v{AL+t}")
            A(f"v_accvgpr_write_b32 a{A_O+t*32+i}, v{T+10}")
    PF = 200
    for t in range(5):
        for i in range(4): A(f"v_cvt_pk_bf16_f32 v{PF+4*t+i}, v{SF+8*t+2*i}, v{SF+8*t+2*i+1}")
    A("s_nop 1")
    for t in range(5):
        for dt in range(8):
            o = A_O + (t*8 + dt)*4
            A(f"v_mfma_f32_16x16x32_bf16 {ar(o,4)}, {vr(V_VF+4*dt,4)}, {vr(PF+4*t,4)}, {ar(o,4)}")
    A("s_nop 7")
    A(f"s_add_u32 s{S_OFF}, s{S_OFF}, 0x8000")
    A(f"s_sub_u32 s{S_CNT}, s{S_CNT}, 1")
    A(f"s_cmp_lg_u32 s{S_CNT}, 0")
    A("s_cbranch_scc1 L_fb_loop")
    XL = 0
    A("s_barrier")
    A(f"v_lshlrev_b32 v8, 2, v1")
    A(f"s_mul_i32 s30, s{S_W}, 1280")
    A(f"s_add_u32 s30, s30, {XL}")
    A(f"v_add_u32 v9, s30, v8")
    for t in range(5): A(f"ds_write_b32 v9, v{M+t} offset:{256*t}")
    A("s_waitcnt lgkmcnt(0)")
    A("s_barrier")
    for w in range(4):
        for t in range(5): A(f"ds_read_b32 v{SF + w*5 + t}, v8 offset:{XL + w*1280 + t*256}")
    A("s_waitcnt lgkmcnt(0)")
    for t in range(5):
        A(f"v_max3_f32 v{T+t}, v{SF+t}, v{SF+5+t}, v{SF+10+t}")
        A(f"v_max_f32 v{T+t}, v{T+t}, v{SF+15+t}")
        A(f"v_sub_f32 v{AL+t}, v{M+t}, v{T+t}")
    for t in range(5): A(f"v_exp_f32 v{AL+t}, v{AL+t}")
    A("s_nop 0")
    for t in range(5): A(f"v_mul_f32 v{V_L+2*t}, v{V_L+2*t}, v{AL+t}")
    for swap in ("v_permlane32_swap_b32", "v_permlane16_swap_b32"):
        for t in range(5): A(f"v_mov_b32 v{V_L+2*t+1}, v{V_L+2*t}")
        for t in range(5): A(f"{swap} v{V_L+2*t}, v{V_L+2*t+1}")
        for t in range(5): A(f"v_add_f32 v{V_L+2*t}, v{V_L+2*t}, v{V_L+2*t+1}")
    for t in range(5):
        for i in range(32):
            A(f"v_accvgpr_read_b32 v{T+10}, a{A_O+t*32+i}")
            A(f"v_mul_f32 v{T+10}, v{T+10}, v{AL+t}")
            A(f"v_accvgpr_write_b32 a{A_O+t*32+i}, v{T+10}")
    if OPT['onerow']:
        A("v_cmp_gt_u32 vcc, 16, v1")
        A("s_nop 1")
        for t in range(5): A(f"v_cndmask_b32 v{V_LM+4*t}, 0, v{V_L+2*t}, vcc")
    else:
        for t in range(5): A(f"v_mov_b32 v{V_LM+4*t}, v{V_L+2*t}")
    A("s_waitcnt vmcnt(0)")
    A("s_barrier")
    xaddr(A)
    A("s_nop 7")
    for t in range(5):
        for x in xsend(t): A(x)
    for x in lsend(): A(x)
    A("s_branch L_comb2")

def build():
    s = HEADER + "; @launch grid=(256,1,1) block=(256,1,1) lds=163840\n"
    s += '.amdgcn_target "amdgcn-amd-amdhsa--gfx950"\n.text\n' + kernel_start(NAME) + gen()
    s += '.section .rodata,"a"\n.p2align 6\n' + kernel_desc(NAME, 512, 256, 102)
    return s

if __name__ == "__main__":
    out = sys.argv[1]
    for kv in sys.argv[2:]:
        k_, v_ = kv.split("=")
        OPT[k_] = eval(v_)
    open(out, "w").write(build())
```

```python
import sys, struct, math
from lib import *

def f32(x): return struct.unpack("<I", struct.pack("<f", x))[0]
C_SCALE = math.log2(math.e) / math.sqrt(128.0)
NAME = "standalone__gqa_block_cached__near_ridge_kernel"

WS_O = 0
WS_P = 8 << 20
WS_F = 24 << 20
WS_ST = 64 << 20
OPT = dict(standin=True, fallback=True, stamps=False, nodma=False, nods=False, novalu=False, nowait=False, wopf=True, order='X', kvpol='', codepf=True, qvar=2, onerow=False, souter=False, peel_first=True, qpipe=True)

V_KA, V_VA, V_KD, V_VD, V_L, V_L16, V_NEG, V_S, V_P, V_KF, V_VF = 10, 14, 22, 26, 28, 38, 40, 60, 76, 84, 116
A_O, A_Q = 0, 160
S_G, S_B, S_R, S_W, S_H, S_RW = 24, 25, 26, 27, 28, 29
S_T, S_R15, S_W8, S_END, S_OFF, S_OFF2, S_CNT, S_W1K, S_XOFF, S_WK, S_ROT, S_FB = 32, 33, 34, 35, 36, 37, 38, 39, 40, 41, 42, 43
S_T0, S_T1, S_T2, S_SPIN = 60, 61, 62, 63
S_TAB = 2
SRD_X, SRD_K, SRD_V, SRD_W, SRD_O, SRD_WO, SRD_PP, SRD_FL, SRD_DBG, SRD_OUT = 4, 8, 12, 16, 20, 44, 48, 52, 56, 84
S_POFF, S_F1, S_F2, S_XB, S_WOB, S_BAD, S_INIT = 80, 81, 82, 83, 88, 90, 89
K0, K1s, V0, V1 = 0, 8192, 16384, 24576
LE = 131072
SPIN_MAX = 20000

def stamp(A, i):
    if not OPT['stamps']: return
    A("s_memrealtime s[98:99]")
    A("s_waitcnt lgkmcnt(0)")
    A(f"v_writelane_b32 v39, s98, {i}")
def stamp_cyc(A, i):
    if not OPT['stamps']: return
    A("s_memtime s[98:99]")
    A("s_waitcnt lgkmcnt(0)")
    A(f"v_writelane_b32 v39, s98, {i}")
def stamp_out(A):
    if not OPT['stamps']: return
    A("s_load_dwordx2 s[92:93], s[0:1], 56")
    A("s_waitcnt lgkmcnt(0)")
    A(f"s_add_u32 s92, s92, {WS_ST}")
    A("s_addc_u32 s93, s93, 0")
    A("s_mov_b32 s94, 0x100000")
    A("s_mov_b32 s95, 0x00020000")
    A(f"s_lshl_b32 s96, s{S_R15}, 2")
    A(f"s_add_u32 s96, s96, s{S_W}")
    A("s_lshl_b32 s96, s96, 8")
    A("v_lshlrev_b32 v2, 2, v1")
    A("buffer_store_dword v39, v2, s[92:95], s96 offen")
    A("s_waitcnt vmcnt(0)")

def gemm_core(A, acc, FA, FB, xread, wread, plan):
    def reads(ks):
        buf = ks & 1
        w = [wread(ks, jt, hf, FA[buf] + 4 * jt + 2 * hf) for jt in range(2) for hf in range(2)]
        x = [xread(ks, t, FB[buf] + 4 * t) for t in range(5)]
        return [w[0], w[1], x[0], w[2], w[3], x[1], x[2], x[3], x[4]]
    for r in reads(0): A(r)
    for ks in range(16):
        buf = ks & 1
        p = plan.get(ks, {})
        fine = p.get('fine')
        if fine is not None: stamp_cyc(A, fine)
        A("s_waitcnt lgkmcnt(0)")
        for x in p.get('pre', []):
            A(x)
            if fine is not None and x.startswith("s_waitcnt vmcnt"): stamp_cyc(A, fine + 1)
            if fine is not None and x == "s_barrier": stamp_cyc(A, fine + 2)
        if p.get('stamp') is not None: stamp(A, p['stamp'])
        extra = list(p.get('fill', []))
        late = p.get('late')
        fill = reads(ks + 1) if (ks < 15 and late is None) else []
        m = 0
        groups = extra; extra = []
        for t in range(5):
            for jt in range(2):
                d = acc + (jt * 5 + t) * 4
                c = "0" if ks == 0 else vr(d, 4)
                A(f"v_mfma_f32_16x16x32_bf16 {vr(d,4)}, {vr(FA[buf]+4*jt,4)}, {vr(FB[buf]+4*t,4)}, {c}")
                n = 0
                while fill and n < 2: A(fill.pop(0)); n += 1
                bg = p.get('burst_gap')
                if bg is not None:
                    if m == bg:
                        for g_ in groups:
                            for x in g_: A(x)
                        groups = []
                elif not fill and groups and m >= 3:
                    k = (len(groups) + (9 - m)) // (10 - m)
                    for _ in range(min(k, len(groups))):
                        for x in groups.pop(0): A(x)
                m += 1
        for g_ in groups:
            for x in g_: A(x)
        for e in extra: A(e)
        if fine is not None: stamp_cyc(A, fine + 3)
        if late is not None:
            late(A) if callable(late) else [A(x) for x in late]
            if ks < 15:
                for r in reads(ks + 1): A(r)

def segments(scheme, phi):
    if scheme == 'rot4': return None
    return {'X': [[1,4,4,4,3], [2,4,4,4,2], [3,4,4,4,1], [4,4,4,4]],
            'Y': [[2,4,4,4,2], [2,1,4,4,4,1], [2,1,1,4,4,4], [2,1,1,1,4,4,3]],
            'Z': [[1,4,4,4,3], [1,1,4,4,4,2], [1,1,1,4,4,4,1], [1,1,1,1,4,4,4]],
            'Y2': [[2,4,4,4,2], [2,2,4,4,4], [2,3,4,4,3], [2,4,4,4,2]],
            'L': [[1]*16]*4,
            'R2': [[2]*8, [1] + [2]*7 + [1], [2]*8, [1] + [2]*7 + [1]],
            'R4': [[4]*4]*4,
            'U': [[1,4,4,4,3]]*4,
            'X2': [[1,4,4,4,3], [1,1,4,4,4,2], [3,4,4,4,1], [4,4,4,4]],
            'X3': [[1,4,4,4,3], [2,4,4,4,2], [1,2,4,4,4,1], [4,4,4,4]],
            'X4': [[2,4,4,4,2], [3,4,4,4,1], [4,4,4,4], [1,4,4,4,3]],
            'R3': [[1,3,3,3,3,3], [2,3,3,3,3,2], [3,3,3,3,3,1], [1,3,3,3,3,3]],
            'R8': [[4,4,4,4], [2,4,4,4,2], [4,4,4,4], [2,4,4,4,2]]}[scheme][phi]
def tile_order(scheme, phi, r):
    seg = segments(scheme, phi)
    if seg is None:
        return [((i + phi) & 12) | ((i + phi + r) & 3) for i in range(16)]
    out = []; s0 = 0
    for n in seg:
        out += [s0 + ((u + r) % n) for u in range(n)]; s0 += n
    assert sorted(out) == list(range(16)), (scheme, phi, r, out)
    return out
def table_setup(A):
    A(f"s_and_b32 s{S_T0}, s{S_B}, 3")
    A(f"s_lshl_b32 s{S_T0}, s{S_T0}, 2")
    A(f"s_add_u32 s{S_T0}, s{S_T0}, s{S_R}")
    for idx in range(16):
        o = tile_order(OPT['order'], idx >> 2, idx & 3)
        v = sum(t << (4 * i) for i, t in enumerate(o))
        if idx == 0:
            A(f"s_mov_b32 s{S_TAB}, {hex(v & 0xffffffff)}"); A(f"s_mov_b32 s{S_TAB+1}, {hex(v >> 32)}")
        else:
            A(f"s_cmp_eq_u32 s{S_T0}, {idx}")
            A(f"s_cselect_b32 s{S_TAB}, {hex(v & 0xffffffff)}, s{S_TAB}")
            A(f"s_cselect_b32 s{S_TAB+1}, {hex(v >> 32)}, s{S_TAB+1}")
    A(f"s_mov_b32 s{S_T}, 0")
def off_calc():
    return [f"s_and_b32 s{S_T0}, s{S_TAB}, 15",
            f"s_lshl_b32 s{S_T0}, s{S_T0}, 15",
            f"s_or_b32 s{S_OFF}, s{S_T0}, s{S_W8}",
            f"s_lshr_b64 s[{S_TAB}:{S_TAB+1}], s[{S_TAB}:{S_TAB+1}], 4",
            f"s_cmp_ge_u32 s{S_T}, 16",
            f"s_cselect_b32 s{S_OFF}, 0x80000, s{S_OFF}",
            f"s_add_u32 s{S_OFF2}, s{S_OFF}, 4096",
            f"s_add_u32 s{S_T}, s{S_T}, 1"]
def kv_dma(which, slot):
    srd = SRD_K if which == 'K' else SRD_V
    base = (K0, K1s)[slot] if which == 'K' else (V0, V1)[slot]
    l = []
    for half in range(2):
        l.append(f"s_add_u32 m0, s{S_RW}, {base + 4096 * half}")
        so = S_OFF if half == 0 else S_OFF2
        for i in range(4):
            vo = V_KD + i if which == 'K' else V_VD + (i & 1)
            l.append(f"buffer_load_dwordx4 v{vo}, {sr(srd,4)}, s{so} offen offset:{1024*i} {OPT['kvpol']} lds".replace("  ", " "))
    return l
def with_m0_gap(l):
    out = []
    for x in l:
        out.append(x)
        if x.startswith("s_add_u32 m0"): out.append("s_nop 0")
    return out
def kv_groups(which, slot):
    d = kv_dma(which, slot)
    return [[d[0], "s_nop 0", d[1]], [d[2]], [d[3]], [d[4]], [d[5], "s_nop 0", d[6]], [d[7]], [d[8]], [d[9]]]
def spread(A, main, groups, start=0):
    n = len(main); g = list(groups); k = len(g)
    pos = [start + (n - start) * (i + 1) // (k + 1) for i in range(k)]
    for i, x in enumerate(main):
        while pos and pos[0] <= i and not x.startswith(("s_addc", "s_cselect", "s_cbranch")):
            pos.pop(0)
            for y in g.pop(0): A(y)
        A(x)
    for gg in g:
        for y in gg: A(y)
def k_read(p, slot):
    kt, s = p >> 2, p & 3
    return f"ds_read_b128 {vr(V_KF + 4*p, 4)}, v{V_KA + s} offset:{(K0, K1s)[slot] + 4096*kt}"
def v_read(dt, hf, slot):
    return f"ds_read_b64_tr_b16 {vr(V_VF + 4*dt + 2*hf, 2)}, v{V_VA + dt} offset:{(V0, V1)[slot] + 4096*hf}"
def frag_of(slot):
    return ((slot & 1) * 4 + (slot >> 1)) if OPT['souter'] else slot
def qk_mfma(slot, tq, sbuf):
    p = frag_of(slot)
    kt, s = p >> 2, p & 3
    d = V_S + 8 * sbuf + 4 * kt
    c = vr(V_NEG + 4 * tq, 4) if s == 0 else vr(d, 4)
    return f"v_mfma_f32_16x16x32_bf16 {vr(d,4)}, {vr(V_KF + 4*p, 4)}, {ar(A_Q + (tq*4 + s)*4, 4)}, {c}"
def pv_mfma(dt, tp, pbuf):
    o = A_O + (tp * 8 + dt) * 4
    return f"v_mfma_f32_16x16x32_bf16 {ar(o,4)}, {vr(V_VF + 4*dt, 4)}, {vr(V_P + 4*pbuf, 4)}, {ar(o,4)}"
V_LM, V_ONE = 148, 168
def l_mfma(tp, pbuf):
    d = V_LM + 4 * tp
    return f"v_mfma_f32_16x16x32_bf16 {vr(d,4)}, {vr(V_ONE,4)}, {vr(V_P + 4*pbuf, 4)}, {vr(d,4)}"
def sm_valu(ts, buf):
    S = V_S + 8 * buf; P = V_P + 4 * buf
    g = [[] for _ in range(17)]
    for q in range(4):
        e0, e1 = S + 2 * q, S + 2 * q + 1
        g[4*q + 0].append(f"v_exp_f32 v{e0}, v{e0}")
        g[4*q + 1].append(f"v_exp_f32 v{e1}, v{e1}")
        g[4*q + 2].append(f"v_cvt_pk_bf16_f32 v{P + q}, v{e0}, v{e1}")
    return g

def stage_plan(km, par):
    it = []
    kd, vd = kv_dma('K', par), kv_dma('V', par)
    kl = kd[1:5] + kd[6:10]; vl = vd[1:5] + vd[6:10]
    if km == 0:
        for i, x in enumerate(off_calc()): it.append((i // 2, None, x))
        it.append((5, None, "s_waitcnt lgkmcnt(0)"))
        it.append((6, None, kd[0]))
        it += [(7, 'K', kl[0]), (11, 'K', kl[1]), (15, 'K', kl[2])]
    if km == 1:
        it += [(3, 'K', kl[3]), (4, None, kd[5]), (7, 'K', kl[4])]
        it.append((9, 'waitV', None))
        rd = [(10, 0, 0), (11, 0, 1), (11, 1, 0), (14, 1, 1), (15, 2, 0), (15, 2, 1), (16, 3, 0), (16, 3, 1)]
        for g_, dt, hf in rd: it.append((g_, None, v_read(dt, hf, par)))
        it.append((12, 'K', kl[5]))
    if km == 2:
        rd = [(2, 4, 0), (2, 4, 1), (3, 5, 0), (3, 5, 1), (6, 6, 0), (6, 6, 1), (7, 7, 0), (7, 7, 1)]
        for g_, dt, hf in rd: it.append((g_, None, v_read(dt, hf, par)))
        it += [(7, None, "s_waitcnt lgkmcnt(8)"), (11, 'K', kl[6]), (11, None, "s_waitcnt lgkmcnt(2)"), (14, None, "s_waitcnt lgkmcnt(0)"), (16, 'K', kl[7])]
    if km == 3:
        it += [(0, None, vd[0]), (3, 'V', vl[0]), (7, 'V', vl[1]), (11, 'V', vl[2]), (15, 'V', vl[3]), (16, 'waitK', None)]
    if km == 4:
        rd = [(2, 0), (3, 1), (3, 2), (6, 3), (7, 4), (7, 5), (10, 6), (11, 7)]
        for g_, p in rd: it.append((g_, None, k_read(frag_of(p), 1 - par)))
        it += [(0, None, vd[5]), (4, 'V', vl[4]), (8, 'V', vl[5]), (12, 'V', vl[6]), (15, 'V', vl[7]), (16, None, "s_waitcnt lgkmcnt(2)")]
    return it
def vm_counts():
    seq = []
    waits = {}
    for j in range(3):
        for k in range(10):
            par = 0 if k < 5 else 1
            n = 2 * j + 2 + par
            for g_, tag, x in sorted(stage_plan(k % 5, par), key=lambda e: e[0]):
                if tag in ('K', 'V'): seq.append((tag, n))
                if tag == 'waitV' and j == 2:
                    need = ('V', 2 * j + par)
                    waits[('V', par)] = len(seq) - 1 - max(i for i, u in enumerate(seq) if u == need)
                if tag == 'waitK' and j == 2:
                    need = ('K', 2 * j + 1 + par)
                    waits[('K', par)] = len(seq) - 1 - max(i for i, u in enumerate(seq) if u == need)
    return waits

def main_stage(A, k, last=False, extra=None, first=False):
    tq, ts, tp = k % 5, (k + 4) % 5, (k + 3) % 5
    nv = [[] for _ in range(17)]
    par = 0 if k < 5 else 1
    km = k % 5
    vm = vm_counts()
    for g_, tag, x in stage_plan(km, par):
        if last:
            if tag in ('K', 'V') or (x and (x.startswith("s_add_u32 m0") or x in off_calc())): continue
            if k == 9 and x and x.startswith(("ds_read", "s_waitcnt")): continue
            if tag == 'waitV': nv[g_].append(f"s_waitcnt vmcnt({16 if par == 0 else 0})"); continue
            if tag == 'waitK':
                if par == 0: nv[g_].append("s_waitcnt vmcnt(8)")
                continue
        if tag == 'waitV': x = f"s_waitcnt vmcnt({vm[('V', par)]})"
        if tag == 'waitK': x = f"s_waitcnt vmcnt({vm[('K', par)]})"
        if tag in ('waitV', 'waitK') and OPT.get('vmstall'):
            acc = 92 if tag == 'waitV' else 93
            nv[g_] += ["s_memtime s[94:95]", "s_waitcnt lgkmcnt(0)", x, "s_memtime s[96:97]", "s_waitcnt lgkmcnt(0)", "s_sub_u32 s96, s96, s94", f"s_add_u32 s{acc}, s{acc}, s96"]
            continue
        nv[g_].append(x)
    if k == 0 and not last and not first and OPT['wopf']:
        nv[16] += [f"s_cmp_eq_u32 s{S_CNT}, 1", "s_cbranch_scc1 L_side", "L_side_back:"]
    if extra:
        for g_, x in extra: nv[g_].append(x)
    va = sm_valu(ts, (k + 1) & 1)
    if first and k == 0: va = [[] for _ in range(17)]
    for p in range(17):
        if p < 8 or not first: A(qk_mfma(p, tq, k & 1) if p < 8 else (pv_mfma(p - 8, tp, k & 1) if p < 16 else l_mfma(tp, k & 1)))
        elif va[p] and va[p][0].startswith("v_cvt"): A("s_nop 0")
        for x in nv[p]:
            if x.endswith(":"): A.raw(x); continue
            if OPT['nodma'] and x.startswith("buffer_load"): continue
            if OPT['nods'] and x.startswith("ds_read"): continue
            if OPT['nowait'] and x.startswith("s_waitcnt"): continue
            A(x)
        if OPT['novalu']: continue
        for x in va[p]: A(x)

XL = 122880
TO, VXA = 176, 236
def xaddr(A):
    for j in range(1, 4):
        A(f"s_add_u32 s30, s{S_W}, {j}")
        A(f"s_and_b32 s30, s30, 3")
        A(f"s_mul_i32 s30, s30, 30720")
        A(f"s_add_u32 s30, s30, {(j-1)*10240}")
        A(f"v_add_u32 v{VXA+j-1}, s30, v{V_L16}")
    A(f"v_lshlrev_b32 v8, 2, v1")
    A(f"s_mul_i32 s30, s{S_W}, 1280")
    A(f"s_add_u32 s30, s30, {XL}")
    A(f"v_add_u32 v{VXA+3}, s30, v8")
def xsend(t):
    l = []
    for j in range(1, 4):
        for h in range(2): l.append(f"ds_write_b128 v{VXA+j-1}, {ar(A_O + (t*8 + 2*j + h)*4, 4)} offset:{(t*2+h)*1024}")
    for h in range(2):
        for r in range(4): l.append(f"v_accvgpr_read_b32 v{TO + (t*2+h)*4 + r}, a{A_O + (t*8 + h)*4 + r}")
    return l
def lsend():
    return [f"ds_write_b32 v{VXA+3}, v{V_LM+4*t} offset:{256*t}" for t in range(5)]

def poll(A, tag, srd, soff, nwords, want, vtmp):
    A(f"s_mov_b32 s{S_SPIN}, {SPIN_MAX}")
    A.label(f"L_poll_{tag}")
    for i in range(nwords // 4):
        A(f"buffer_load_dwordx4 {vr(vtmp + 4*i, 4)}, off, {sr(srd,4)}, s{soff} offset:{16*i} sc1")
    A("s_waitcnt vmcnt(0)")
    for i in range(1, nwords): A(f"v_min_u32 v{vtmp}, v{vtmp}, v{vtmp+i}")
    A("s_nop 0")
    A(f"v_readfirstlane_b32 s{S_T0}, v{vtmp}")
    A("s_nop 3")
    A(f"s_cmp_ge_u32 s{S_T0}, {want}")
    A(f"s_cbranch_scc1 L_done_{tag}")
    A(f"s_sub_u32 s{S_SPIN}, s{S_SPIN}, 1")
    A(f"s_cmp_eq_u32 s{S_SPIN}, 0")
    A(f"s_cbranch_scc1 L_done_{tag}")
    A("s_sleep 1")
    A(f"s_branch L_poll_{tag}")
    A.label(f"L_done_{tag}")

def one_lane(A, instrs):
    A("s_mov_b64 exec, 1")
    for x in instrs: A(x)
    A("s_mov_b64 exec, -1")

def gen():
    A = Asm()
    A("s_cmp_ge_u32 s2, 256")
    A("s_cbranch_scc1 L_end")
    stamp(A, 0)
    stamp_cyc(A, 55)
    A("s_load_dwordx16 s[64:79], s[0:1], 0")
    if OPT['codepf']:
        A("s_getpc_b64 s[30:31]")
        A.label("L_pc")
        A("s_lshr_b32 s60, s2, 3")
        A("v_lshrrev_b32 v2, 6, v0")
        A("v_and_b32 v1, 63, v0")
        A("v_lshl_add_u32 v2, s60, 2, v2")
        A("v_lshl_add_u32 v2, v2, 2, v1")
        A("v_lshlrev_b32 v2, 7, v2")
        A("v_mov_b32 v5, s31")
        A("v_add_co_u32 v4, vcc, s30, v2")
        A("s_nop 1")
        A("v_addc_co_u32 v5, vcc, 0, v5, vcc")
        A("v_cmp_gt_u32 vcc, 4, v1")
        A("s_mov_b32 s60, L_text_main_end-L_pc")
        A("v_cmp_gt_u32 s[62:63], s60, v2")
        A("s_nop 1")
        A("s_and_b64 vcc, vcc, s[62:63]")
        A("s_and_saveexec_b64 s[62:63], vcc")
        A("s_cbranch_execz L_nocpf")
        A("global_load_dword v243, v[4:5], off")
        A.label("L_nocpf")
        A("s_mov_b64 exec, s[62:63]")
    A(f"""
    v_lshrrev_b32 v2, 6, v0
    v_and_b32 v1, 63, v0
    s_and_b32 s{S_G}, s2, 7
    s_lshr_b32 s30, s2, 3
    v_readfirstlane_b32 s{S_W}, v2
    s_lshr_b32 s{S_B}, s30, 2
    s_and_b32 s{S_R}, s30, 3
    s_lshl_b32 s{S_H}, s{S_G}, 2
    s_add_u32 s{S_H}, s{S_H}, s{S_R}
    v_and_b32 v3, 15, v1
    v_lshrrev_b32 v4, 4, v1
    v_bfe_u32 v5, v1, 2, 2
    v_and_b32 v6, 3, v1
    s_lshl_b32 s{S_W1K}, s{S_W}, 10
    s_add_u32 s{S_ROT}, s{S_B}, s{S_R}
    s_and_b32 s{S_ROT}, s{S_ROT}, 3
    """)
    ACC, FA, FB, VX, VAW = 148, (188, 196), (204, 224), 244, 252
    VXD, VWD = 84, 92
    A(f"""
    s_lshl_b32 s30, s{S_W}, 2
    v_add_u32 v8, s30, v4                   ; 4w+gq
    v_xor_b32 v9, v3, v8
    v_lshlrev_b32 v9, 4, v9
    v_lshl_add_u32 v{VXD}, v8, 10, v9
    v_lshlrev_b32 v9, 2, v4
    v_xor_b32 v9, v3, v9
    v_lshlrev_b32 v9, 4, v9
    v_lshl_add_u32 v{VWD}, v8, 13, v9
    s_mul_i32 s31, s{S_B}, 81920
    """)
    for t in range(1, 5): A(f"v_add_u32 v{VXD+t}, {t*16384}, v{VXD}")
    for i in range(1, 4): A(f"v_add_u32 v{VWD+i}, {i*16*8192}, v{VWD}")
    WT = [100, 101, 97, 96, 95, 94, 93, 92]
    XT = [88, 89, 90, 91]
    A(f"s_lshl_b32 s{S_T1}, s{S_H}, 8")
    A(f"s_lshl_b32 s{S_T2}, s{S_ROT}, 1")
    for u in range(8):
        A(f"s_add_u32 s{S_T0}, s{S_T2}, {u}")
        A(f"s_and_b32 s{S_T0}, s{S_T0}, 7")
        A(f"s_lshl_b32 s{S_T0}, s{S_T0}, 19")
        A(f"s_add_u32 s{WT[u]}, s{S_T0}, s{S_T1}")
    for a_ in range(4):
        A(f"s_add_u32 s{S_T0}, s{S_ROT}, {a_}")
        A(f"s_and_b32 s{S_T0}, s{S_T0}, 3")
        A(f"s_lshl_b32 s{S_T0}, s{S_T0}, 8")
        A(f"s_add_u32 s{XT[a_]}, s{S_T0}, s31")
    A("s_waitcnt lgkmcnt(0)")
    if OPT.get('qstamps'): stamp(A, 14)
    A(f"""
    s_mov_b32 s{SRD_X}, s64
    s_mov_b32 s{SRD_X+1}, s65
    s_mov_b32 s{SRD_X+2}, {640*1024}
    s_mov_b32 s{SRD_X+3}, 0x00020000
    s_mov_b32 s{SRD_W}, s70
    s_mov_b32 s{SRD_W+1}, s71
    s_mov_b32 s{SRD_W+2}, {512*8192}
    s_mov_b32 s{SRD_W+3}, 0x00020000
    """)
    pool1 = [w*32768 + V0 + h*4096 for w in range(4) for h in range(2)] + [K1s, K1s + 4096]
    pool2 = [w*32768 + K1s + h*4096 for w in (1, 2, 3) for h in range(2)] + [w*32768 + V1 + h*4096 for w in (0, 1) for h in range(2)]
    xarea = lambda a, t: (pool1 if a < 2 else pool2)[(a & 1) * 5 + t]
    wblk = lambda u, e: [[2*32768 + V1, 3*32768 + V1], [LE, LE + 8192], [LE + 16384, LE + 24576], [K0, 32768 + K0], [2*32768 + K0, 3*32768 + K0]][u % 5][e]
    def xdma(a):
        return [[f"s_add_u32 m0, s{S_W1K}, {xarea(a, t)}", "s_nop 0", f"buffer_load_dwordx4 v{VXD+t}, {sr(SRD_X,4)}, s{XT[a]} offen lds"] for t in range(5)]
    def wdma(u):
        return [[f"s_add_u32 m0, s{S_W1K}, {wblk(u, e) + 4096*hh}", "s_nop 0", f"buffer_load_dwordx4 v{VWD+2*e+hh}, {sr(SRD_W,4)}, s{WT[u]} offen lds"]
                for e in range(2) for hh in range(2)]
    def xread(ks, t, dst):
        p = xarea(ks >> 2, t)
        return f"ds_read_b128 {vr(dst,4)}, v{VX + 4*(p >> 16) + (ks & 3)} offset:{p & 0xffff}"
    def wread(ks, jt, hf, dst):
        p = wblk(ks >> 1, ks & 1)
        return f"ds_read_b64_tr_b16 {vr(dst,2)}, v{VAW + (p >> 16)} offset:{(p & 0xffff) + 1024*hf + 8*jt}"
    for g_ in wdma(0) + xdma(0):
        for x in g_: A(x)
    if OPT.get('touch_kv'):
        A(f"s_lshl_b32 s30, s{S_B}, 3")
        A(f"s_add_u32 s30, s30, s{S_G}")
        A(f"s_lshl_b32 s30, s30, 19")
        A(f"s_add_u32 s{SRD_K}, s66, s30")
        A(f"s_addc_u32 s{SRD_K+1}, s67, 0")
        A(f"s_mov_b32 s{SRD_K+2}, 0x80000")
        A(f"s_mov_b32 s{SRD_K+3}, 0x00020000")
        A(f"s_add_u32 s{SRD_V}, s68, s30")
        A(f"s_addc_u32 s{SRD_V+1}, s69, 0")
        A(f"s_mov_b32 s{SRD_V+2}, 0x80000")
        A(f"s_mov_b32 s{SRD_V+3}, 0x00020000")
        A(f"buffer_load_dword v{V_L}, off, {sr(SRD_K,4)}, 0")
        A(f"buffer_load_dword v{V_L+1}, off, {sr(SRD_V,4)}, 0")
    if OPT.get('qstamps'): stamp(A, 15)
    B = Asm()
    B(f"""
    s_lshl_b32 s{S_RW}, s{S_W}, 15
    s_lshl_b32 s{S_W8}, s{S_W}, 13
    s_mov_b32 s{S_FB}, 0
    s_lshl_b32 s30, s{S_B}, 3
    s_add_u32 s30, s30, s{S_G}               ; b*8+g
    s_lshl_b32 s{S_F1}, s30, 7
    s_lshl_b32 s30, s30, 19
    s_add_u32 s{SRD_K}, s66, s30
    s_addc_u32 s{SRD_K+1}, s67, 0
    s_mov_b32 s{SRD_K+2}, 0x80000
    s_mov_b32 s{SRD_K+3}, 0x00020000
    s_add_u32 s{SRD_V}, s68, s30
    s_addc_u32 s{SRD_V+1}, s69, 0
    s_mov_b32 s{SRD_V+2}, 0x80000
    s_mov_b32 s{SRD_V+3}, 0x00020000
    s_add_u32 s{SRD_O}, s78, {WS_O}
    s_addc_u32 s{SRD_O+1}, s79, 0
    s_mov_b32 s{SRD_O+2}, {5 << 20}
    s_mov_b32 s{SRD_O+3}, 0x00020000
    s_add_u32 s{SRD_PP}, s78, {WS_P}
    s_addc_u32 s{SRD_PP+1}, s79, 0
    s_mov_b32 s{SRD_PP+2}, {5 << 20}
    s_mov_b32 s{SRD_PP+3}, 0x00020000
    s_add_u32 s{SRD_FL}, s78, {WS_F}
    s_addc_u32 s{SRD_FL+1}, s79, 0
    s_mov_b32 s{SRD_FL+2}, 16384
    s_mov_b32 s{SRD_FL+3}, 0x00020000
    s_mov_b32 s{SRD_WO}, s72
    s_mov_b32 s{SRD_WO+1}, s73
    s_mov_b32 s{SRD_WO+2}, {4096*1024}
    s_mov_b32 s{SRD_WO+3}, 0x00020000
    s_mov_b32 s{SRD_DBG}, s76
    s_mov_b32 s{SRD_DBG+1}, s77
    s_mov_b32 s{SRD_DBG+2}, 256
    s_mov_b32 s{SRD_DBG+3}, 0x00020000
    s_mov_b32 s{SRD_OUT}, s74
    s_mov_b32 s{SRD_OUT+1}, s75
    s_mov_b32 s{SRD_OUT+2}, {640*1024}
    s_mov_b32 s{SRD_OUT+3}, 0x00020000
    s_lshl_b32 s30, s{S_B}, 2
    s_add_u32 s30, s30, s{S_R}               ; b*4+r
    s_lshl_b32 s{S_F2}, s30, 7
    s_add_u32 s{S_F2}, s{S_F2}, 8192
    s_lshl_b32 s{S_POFF}, s{S_G}, 19
    s_lshl_b32 s30, s30, 14
    s_add_u32 s{S_POFF}, s{S_POFF}, s30
    s_lshl_b32 s30, s{S_W}, 12
    s_add_u32 s{S_POFF}, s{S_POFF}, s30
    v_lshlrev_b32 v{V_L16}, 4, v1
    v_xor_b32 v7, v4, v3
    v_lshlrev_b32 v7, 4, v7
    v_lshl_add_u32 v7, v3, 8, v7            ; n*256 + (gq^n)*16
    """)
    B(f"s_mov_b32 s{S_R15}, s2")
    table_setup(B)
    for s_ in range(4):
        B(f"v_xor_b32 v{VX+s_}, {64*s_}, v7")
        B(f"v_add_u32 v{VX+4+s_}, 0x10000, v{VX+s_}")
        B(f"v_add_u32 v{V_KA+s_}, s{S_RW}, v{VX+s_}")
    B(f"""
    v_lshl_add_u32 v8, v4, 3, v5
    s_lshl_b32 s30, s{S_W}, 2
    v_add_u32 v9, s30, v6
    v_lshlrev_b32 v2, 2, v5
    v_xor_b32 v9, v9, v2
    v_lshlrev_b32 v9, 4, v9
    v_lshl_add_u32 v9, v8, 8, v9
    v_mov_b32 v{VAW}, v9
    v_add_u32 v{VAW+1}, 0x10000, v9
    v_add_u32 v{VAW+2}, 0x20000, v9
    v_lshl_add_u32 v8, v4, 2, v5
    v_and_b32 v9, 7, v8
    v_lshlrev_b32 v9, 5, v9
    v_lshl_add_u32 v9, v8, 8, v9
    v_lshl_add_u32 v9, v6, 3, v9
    """)
    for dt in range(8):
        B(f"s_lshl_b32 s{S_T1}, s{S_W}, 1")
        B(f"s_add_u32 s{S_T1}, s{S_T1}, {dt}")
        B(f"s_and_b32 s{S_T1}, s{S_T1}, 7")
        B(f"s_lshl_b32 s{S_T1}, s{S_T1}, 5")
        B(f"v_xor_b32 v{V_VA+dt}, s{S_T1}, v9")
        B(f"v_add_u32 v{V_VA+dt}, s{S_RW}, v{V_VA+dt}")
    B(f"""
    v_xor_b32 v9, v3, v4
    v_lshlrev_b32 v9, 4, v9
    v_lshl_add_u32 v9, v4, 8, v9
    """)
    for i in range(4): B(f"v_xor_b32 v{V_KD+i}, {64*i}, v9")
    B(f"""
    v_lshlrev_b32 v9, 1, v4
    v_xor_b32 v9, v3, v9
    v_lshlrev_b32 v9, 4, v9
    v_lshl_add_u32 v{V_VD}, v4, 8, v9
    v_xor_b32 v{V_VD+1}, 128, v{V_VD}
    """)
    for i in range(4 if OPT['peel_first'] else 32): B(f"v_mov_b32 v{V_VF+i}, 0")
    B("s_nop 1")
    for i in range(10): B(f"v_mfma_f32_32x32x16_bf16 {ar(A_O+16*i,16)}, {vr(V_VF,4)}, {vr(V_VF,4)}, 0")
    if not OPT['peel_first']:
        for i in range(4): B(f"v_mov_b32 v{V_P+i}, 0")
        for i in range(8): B(f"v_mov_b32 v{V_S+8+i}, 0xff7fffff")
    spread(A, [x.strip() for x in B.l], wdma(1))
    A(f"s_cmp_eq_u32 s{S_W}, {0 if not OPT.get('noinit') else 7}")
    A("s_cbranch_scc0 L_noclr")
    A(f"s_lshl_b32 s{S_T0}, s{S_R}, 2")
    A(f"s_add_u32 s{S_T0}, s{S_T0}, s{S_F1}")
    A(f"s_lshl_b32 s{S_T1}, s{S_G}, 2")
    A(f"s_add_u32 s{S_T1}, s{S_T1}, s{S_F2}")
    A("v_mov_b32 v2, 0")
    one_lane(A, [f"buffer_store_dword v2, off, {sr(SRD_FL,4)}, s{S_T0} sc1", f"buffer_store_dword v2, off, {sr(SRD_FL,4)}, s{S_T1} sc1"])
    A.label("L_noclr")
    if OPT.get('qstamps'): stamp(A, 16)
    seq0 = ['W0'] * 4 + ['xA'] * 5 + ['W1'] * 4
    A(f"s_waitcnt vmcnt(4)")
    if OPT.get('qstamps'): stamp(A, 17)
    A("s_barrier")
    stamp(A, 1)
    stamp_cyc(A, 56)
    NV = 4 if OPT['qvar'] == 4 else (2 if OPT['qvar'] == 2 else 1)
    if NV == 4:
        for wv in range(1, 4):
            A(f"s_cmp_eq_u32 s{S_W}, {wv}")
            A(f"s_cbranch_scc1 L_qp{wv}")
    if NV == 2:
        A(f"s_cmp_ge_u32 s{S_W}, 2")
        A(f"s_cbranch_scc1 L_qp2")
    for wv in ((0, 1, 2, 3) if NV == 4 else ((0, 2) if NV == 2 else (0,))):
        if wv: A.label(f"L_qp{wv}")
        seq = list(seq0)
        def vm_for(need):
            last = max(i for i, t in enumerate(seq) if t in need)
            return len(seq) - 1 - last
        arrive = [f"s_lshr_b32 s{S_T0}, s{S_F1}, 5", "v_mov_b32 v2, 1", "s_mov_b64 exec, 1",
                  f"buffer_atomic_add v2, off, {sr(SRD_DBG,4)}, s{S_T0} sc1", "s_mov_b64 exec, -1"] if wv == 0 else []
        if NV < 4 and wv == 0: arrive = [f"s_cmp_eq_u32 s{S_W}, 0", "s_cbranch_scc0 L_noarr"] + arrive + ["L_noarr:"]
        kg0, vg0, kg1 = kv_groups('K', 0), kv_groups('V', 0), kv_groups('K', 1)
        kg0[0] = off_calc() + kg0[0]
        kg1[0] = off_calc() + kg1[0]
        ival = {0: [('xB', xdma(1)), ('W2', wdma(2))], 1: [('W3', wdma(3)), ('W4', wdma(4))], 2: [('xC', xdma(2)), ('W5', wdma(5))],
                3: [('W6', wdma(6)), ('xD', xdma(3))], 4: [('W7', wdma(7))], 5: [('K0', kg0)], 6: [('V0', vg0)], 7: []}
        needs = {1: ['W1'], 3: ['xB', 'W2'], 5: ['W3'], 7: ['xC', 'W4'], 9: ['W5'], 11: ['xD', 'W6'], 13: ['W7'], 15: None}
        plan = {}
        for ks in range(16):
            p = {}
            if ks in needs:
                p['pre'] = ([f"s_waitcnt vmcnt({vm_for(needs[ks])})"] if needs[ks] else []) + ["s_barrier"]
                if ks == OPT.get('arrive_ks', 13) and not OPT.get('noinit'): p['pre'] += arrive
            u = (ks + 1) >> 1
            first = (ks & 1) == 1 or ks == 0
            mine = (ks == 0) or (first and wv < 2) or (not first and wv >= 2)
            fill = []
            if NV == 1:
                allg = [(tag, g_) for tag, gs in ival.get(u, []) for g_ in gs]
                h = len(allg) if ks == 0 else (len(allg) + 1) // 2
                part = allg[:h] if first else allg[h:]
                if ks < 15:
                    for tag, g_ in part: fill.append(g_); seq.append(tag)
            elif ks < 15 and mine:
                for tag, gs in ival.get(u, []):
                    fill += gs; seq += [tag] * len(gs)
                if NV == 4: p['burst_gap'] = (4, 5, 7, 9)[wv] if ks == 0 else (4, 9)[wv & 1]
            if ks == 15 and wv < 2:
                fill = kg1; seq += ['K1'] * 8
                if NV == 4: p['burst_gap'] = (0, 9)[wv]
            p['fill'] = fill
            plan[ks] = p
        if OPT.get('qstamps'):
            for i, ks in enumerate((1, 3, 5, 7, 9, 11, 13, 15)): plan[ks]['stamp'] = 22 + i
        if OPT.get('fine'):
            for i, ks in enumerate(OPT['fine']): plan.setdefault(ks, {})['fine'] = 32 + 4 * i
        gemm_core(A, ACC, FA, FB, xread, wread, plan)
        stamp(A, 2)
        stamp_cyc(A, 57)
        A(f"s_mov_b32 s30, {hex(f32(C_SCALE))}")
        A(f"v_add_u32 v8, s{S_W1K}, v{V_L16}")
        A(f"v_add_u32 v8, {LE}, v8")
        A("s_nop 4")
        for t in range(5):
            for jt in range(2):
                d = ACC + (jt*5 + t)*4
                for h in range(2): A(f"v_pk_mul_f32 {vr(d+2*h,2)}, {vr(d+2*h,2)}, s[30:31] op_sel_hi:[1,0]")
            q = FB[0] + 4*t
            for jt in range(2):
                d = ACC + (jt*5 + t)*4
                A(f"v_cvt_pk_bf16_f32 v{q+2*jt}, v{d}, v{d+1}")
                A(f"v_cvt_pk_bf16_f32 v{q+2*jt+1}, v{d+2}, v{d+3}")
            A(f"ds_write_b128 v8, {vr(q,4)} offset:{t*4096}")
            if wv >= 2 and t == (1, 3)[wv - 2]:
                for g_ in kg1:
                    for x in g_: A(x)
        if wv < (3 if NV == 4 else (2 if NV == 2 else 0)): A("s_branch L_qdone")
    A.label("L_qdone")
    if OPT.get('qstamps'): stamp(A, 18)
    A("s_waitcnt vmcnt(16) lgkmcnt(0)")
    if OPT.get('qstamps'): stamp(A, 19)
    A("s_barrier")
    stamp(A, 30)
    A(f"v_add_u32 v8, {LE}, v{V_L16}")
    ST = 188
    if OPT['standin']:
        for s in range(4): A(f"ds_read_b128 {vr(ST+4*s,4)}, v{VX+s} offset:{K0}")
    for t in range(5):
        for s in range(4): A(f"ds_read_b128 {ar(A_Q+(t*4+s)*4,4)}, v8 offset:{(t*4+s)*1024}")
    if not OPT['qpipe']:
        for p in range(8): A(k_read(p, 0))
        for g_ in kv_groups('V', 1):
            for x in g_: A(x)
    if OPT.get('qstamps'): stamp(A, 32)
    VL2, VA2, VWD2, VCHK = 244, 245, 247, 248
    A(f"""
    v_lshl_add_u32 v8, v4, 2, v5
    s_lshl_b32 s30, s{S_W}, 2
    v_add_u32 v9, s30, v6
    v_lshlrev_b32 v2, 2, v5
    v_xor_b32 v9, v9, v2
    v_lshlrev_b32 v9, 4, v9
    v_lshl_add_u32 v9, v8, 8, v9
    v_add_u32 v8, s30, v4
    v_lshlrev_b32 v2, 2, v4
    v_xor_b32 v2, v3, v2
    v_lshlrev_b32 v2, 4, v2
    """)
    for i in range(20): A(f"v_mov_b32 v{V_LM+i}, 0")
    if OPT['onerow']:
        A("v_cmp_eq_u32 vcc, 0, v3")
        A(f"v_mov_b32 v{V_ONE}, 0x3f803f80")
        A("s_nop 0")
        A(f"v_cndmask_b32 v{V_ONE}, 0, v{V_ONE}, vcc")
        for i in range(1, 4): A(f"v_mov_b32 v{V_ONE+i}, v{V_ONE}")
    else:
        for i in range(4): A(f"v_mov_b32 v{V_ONE+i}, 0x3f803f80")
    if OPT['standin'] and OPT['qpipe']:
        later = [[k_read(p, 0)] for p in range(8)] + kv_groups('V', 1)
        nds = 0
        for t in range(5):
            A(f"s_waitcnt lgkmcnt({min(15, 4*(4-t) + nds)})")
            for s in range(4):
                d = V_NEG + 4*t
                A(f"v_mfma_f32_16x16x32_bf16 {vr(d,4)}, {vr(ST+4*s,4)}, {ar(A_Q+(t*4+s)*4,4)}, {'0' if s == 0 else vr(d,4)}")
                if later:
                    g_ = later.pop(0)
                    for x in g_: A(x)
                    if g_[0].startswith("ds_read"): nds += 1
    elif OPT['standin']:
        A("s_waitcnt lgkmcnt(8)")
        for t in range(5):
            for s in range(4):
                d = V_NEG + 4*t
                A(f"v_mfma_f32_16x16x32_bf16 {vr(d,4)}, {vr(ST+4*s,4)}, {ar(A_Q+(t*4+s)*4,4)}, {'0' if s == 0 else vr(d,4)}")
    if OPT.get('qstamps'): stamp(A, 31)
    A(f"v_add_u32 v{VA2}, 0x10000, v9")
    A(f"v_add_u32 v{VA2+1}, 0x20000, v9")
    A(f"v_lshl_add_u32 v{VWD2}, v8, 10, v2")
    A(f"v_add_u32 v{VL2}, 0x10000, v{V_L16}")
    if OPT['standin']:
        T = 204
        A("s_nop 4")
        for t in range(5):
            d = V_NEG + 4*t
            A(f"v_max3_f32 v{T+t}, v{d}, v{d+1}, v{d+2}")
        for t in range(5): A(f"v_max_f32 v{T+t}, v{T+t}, v{V_NEG+4*t+3}")
        for swap in ("v_permlane32_swap_b32", "v_permlane16_swap_b32"):
            for t in range(5): A(f"v_mov_b32 v{T+8+t}, v{T+t}")
            for t in range(5): A(f"{swap} v{T+t}, v{T+8+t}")
            for t in range(5): A(f"v_max_f32 v{T+t}, v{T+t}, v{T+8+t}")
        for t in range(5):
            for r in range(4): A(f"v_xor_b32 v{V_NEG+4*t+r}, 0x80000000, v{T+t}")
    else:
        for i in range(20): A(f"v_mov_b32 v{V_NEG+i}, 0")
    A("s_waitcnt lgkmcnt(0)")
    A("s_barrier")
    A(f"s_mov_b32 s{S_CNT}, 7")
    if OPT.get('vmstall'):
        A("s_mov_b32 s92, 0"); A("s_mov_b32 s93, 0")
    stamp(A, 3)
    stamp_cyc(A, 20)
    if OPT['peel_first']:
        for k in range(2): main_stage(A, k, first=True)
        A("s_branch L_loop2")
    A.raw(".p2align 6")
    A.label("L_loop")
    for k in range(10):
        if k == 2: A.label("L_loop2")
        main_stage(A, k)
    A(f"s_sub_u32 s{S_CNT}, s{S_CNT}, 1")
    A(f"s_cmp_lg_u32 s{S_CNT}, 0")
    A("s_cbranch_scc1 L_loop")
    if OPT.get('vmstall'):
        A("v_writelane_b32 v39, s92, 61"); A("v_writelane_b32 v39, s93, 62")
    xarea2 = lambda a, t: (a * 5 + t) * 4096
    VA0 = 9
    wslot = [LE, LE + 16384, 81920, 98304, 114688]
    wblk2 = lambda u, e: (wslot[u % 5] if u < 7 else 0) + 8192 * e
    def wdma2(u):
        pre = [f"s_lshl_b32 s{S_T0}, s{S_R}, 1", f"s_add_u32 s{S_T0}, s{S_T0}, {u}", f"s_and_b32 s{S_T0}, s{S_T0}, 7", f"s_lshl_b32 s{S_T0}, s{S_T0}, 16",
               f"s_add_u32 s{S_WK}, s{S_T0}, s{S_WOB}"]
        l = []
        for e in range(2):
            for hh in range(2):
                l.append([f"s_add_u32 m0, s{S_W1K}, {wblk2(u, e) + 4096*hh}", f"s_add_u32 s{S_T0}, s{S_WK}, {(32*e + 16*hh)*1024}",
                          f"buffer_load_dwordx4 v{VWD2}, {sr(SRD_WO,4)}, s{S_T0} offen lds"])
        l[0] = pre + l[0]
        return l
    def xdma2(a):
        pre = [f"s_add_u32 s{S_T0}, s{S_R}, {a}", f"s_and_b32 s{S_T0}, s{S_T0}, 3", f"s_lshl_b32 s{S_T0}, s{S_T0}, 2",
               f"s_add_u32 s{S_T0}, s{S_T0}, s{S_W}", f"s_mul_i32 s{S_T0}, s{S_T0}, 5120", f"s_add_u32 s{S_XOFF}, s{S_T0}, s{S_XB}"]
        l = []
        for t in range(5):
            l.append([f"s_add_u32 m0, s{S_W1K}, {xarea2(a, t)}", f"s_add_u32 s{S_T0}, s{S_XOFF}, {t*1024}",
                      f"buffer_load_dwordx4 v{V_L16}, {sr(SRD_O,4)}, s{S_T0} offen sc1 lds"])
        l[0] = pre + l[0]
        return l
    flat = lambda gs: [x for g_ in gs for x in g_]
    def xread2(ks, t, dst):
        p = xarea2(ks >> 2, t) + (ks & 3) * 1024
        return f"ds_read_b128 {vr(dst,4)}, v{V_L16 if p < 65536 else VL2} offset:{p & 0xffff}"
    def wread2(ks, jt, hf, dst):
        p = wblk2(ks >> 1, ks & 1)
        return f"ds_read_b64_tr_b16 {vr(dst,2)}, v{(VA2 + (p >> 16) - 1) if p >= 65536 else VA0} offset:{(p & 0xffff) + 4096*hf + 8*jt}"
    A(f"s_lshl_b32 s{S_WOB}, s{S_G}, 19")
    A(f"s_lshl_b32 s{S_T1}, s{S_R}, 8")
    A(f"s_add_u32 s{S_WOB}, s{S_WOB}, s{S_T1}")
    wg = wdma2(0) + wdma2(1)
    ex = {7: [(g_, x) for g_, grp in zip((3, 7, 11, 15), wg[:4]) for x in grp], 8: [(g_, x) for g_, grp in zip((3, 7, 11, 15), wg[4:]) for x in grp],
          9: [(3, f"s_lshl_b32 s{S_T2}, s{S_B}, 5"), (3, f"buffer_load_dwordx4 {vr(VCHK,4)}, off, {sr(SRD_DBG,4)}, s{S_T2} sc1"),
              (7, f"buffer_load_dwordx4 {vr(VCHK+4,4)}, off, {sr(SRD_DBG,4)}, s{S_T2} offset:16 sc1")]}
    for k in range(10): main_stage(A, k, last=True, extra=ex.get(k))
    stamp(A, 4)
    stamp_cyc(A, 21)
    A(f"s_lshl_b32 s30, s{S_B}, 7")
    A(f"s_lshl_b32 s31, s{S_G}, 4")
    A(f"s_add_u32 s30, s30, s31")
    A(f"s_mul_i32 s{S_XB}, s30, 5120")
    A("s_barrier")
    xaddr(A)
    side = [x for t in range(3) for x in xsend(t)]
    va = sm_valu(4, 1)
    n_side = len(side)
    for p in range(17):
        if p >= 8: A(pv_mfma(p - 8, 3, 0) if p < 16 else l_mfma(3, 0))
        for x in va[p]: A(x)
        if p < 8 and p % 4 in (1,): A("s_nop 0")
        for _ in range(2):
            if side: A(side.pop(0))
    A("s_nop 1")
    for dt in range(8):
        A(pv_mfma(dt, 4, 1))
        if side: A(side.pop(0))
    A(l_mfma(4, 1))
    for x in side: A(x)
    for x in xsend(3): A(x)
    A("s_nop 3")
    for x in xsend(4) + lsend(): A(x)
    A.label("L_comb2")
    A("s_waitcnt lgkmcnt(0)")
    A("s_barrier")
    stamp(A, 5)
    stamp_cyc(A, 58)
    TL, RC, TR = 216, 120, 60
    A(f"v_add_u32 v9, {XL}, v8")
    for w in range(4):
        for t in range(5): A(f"ds_read_b32 v{TL + w*5 + t}, v9 offset:{w*1280 + t*256}")
    A(f"s_mul_i32 s30, s{S_W}, 30720")
    A(f"v_add_u32 v9, s30, v{V_L16}")
    rq = lambda q, sl: TR + ((q % 5)*3 + sl)*4
    def rd(q):
        for sl in range(3): A(f"ds_read_b128 {vr(rq(q, sl), 4)}, v9 offset:{(sl*10+q)*1024}")
    for q in range(3): rd(q)
    A("s_waitcnt lgkmcnt(9)")
    for t in range(5):
        A(f"v_add_f32 v{TL+t}, v{TL+t}, v{TL+5+t}")
        A(f"v_add_f32 v{TL+10+t}, v{TL+10+t}, v{TL+15+t}")
    for t in range(5): A(f"v_add_f32 v{TL+t}, v{TL+t}, v{TL+10+t}")
    if OPT['onerow']:
        for swap in ("v_permlane32_swap_b32", "v_permlane16_swap_b32"):
            for t in range(5): A(f"v_mov_b32 v{TL+8+t}, v{TL+t}")
            for t in range(5): A(f"{swap} v{TL+t}, v{TL+8+t}")
            for t in range(5): A(f"v_add_f32 v{TL+t}, v{TL+t}, v{TL+8+t}")
    if OPT['fallback']:
        A(f"v_add_f32 v{TL+9}, v{TL}, v{TL+1}")
        A(f"v_add_f32 v{TL+9}, v{TL+9}, v{TL+2}")
        A(f"v_add_f32 v{TL+9}, v{TL+9}, v{TL+3}")
        A(f"v_add_f32 v{TL+9}, v{TL+9}, v{TL+4}")
        A(f"s_mov_b32 s30, {hex(f32(2.0**40))}")
        A(f"v_cmp_ngt_f32 s[{S_BAD}:{S_BAD+1}], s30, v{TL+9}")
    for t in range(5): A(f"v_rcp_f32 v{RC+2*t}, v{TL+t}")
    OF = 100
    for q in range(10):
        if q + 3 < 10: rd(q + 3)
        A(f"s_waitcnt lgkmcnt({min(9, 3*(9-q))})")
        if q == 9: A("s_barrier")
        o = TO + 4*q
        for sl in range(3):
            for h in range(2):
                A(f"v_pk_add_f32 {vr(o+2*h,2)}, {vr(o+2*h,2)}, {vr(rq(q, sl)+2*h,2)}")
        t = q >> 1
        for h in range(2): A(f"v_pk_mul_f32 {vr(o+2*h,2)}, {vr(o+2*h,2)}, {vr(RC+2*t,2)} op_sel_hi:[1,0]")
    if OPT['fallback']:
        A(f"s_cmp_eq_u64 s[{S_BAD}:{S_BAD+1}], 0")
        A("s_cbranch_scc1 L_sum_ok")
        A(f"s_cmp_eq_u32 s{S_FB}, 0")
        A("s_cbranch_scc1 L_fallback")
        A.label("L_sum_ok")
    for t in range(5):
        for i in range(4): A(f"v_cvt_pk_bf16_f32 v{OF+4*t+i}, v{TO + t*8 + 2*i}, v{TO + t*8 + 2*i + 1}")
    stamp(A, 6)
    A(f"s_lshl_b32 s30, s{S_R}, 2")
    A(f"s_add_u32 s30, s30, s{S_W}")
    A(f"s_mul_i32 s30, s30, 5120")
    A(f"s_add_u32 s30, s30, s{S_XB}")
    for t in range(5):
        if t == 4: A("s_add_u32 s30, s30, 4096")
        A(f"buffer_store_dwordx4 {vr(OF+4*t,4)}, v{V_L16}, {sr(SRD_O,4)}, s30 offen offset:{(t*1024) & 4095} sc1")
    A(f"v_add_u32 v8, s{S_W1K}, v{V_L16}")
    for t in range(5): A(f"ds_write_b128 v8, {vr(OF+4*t,4)} offset:{xarea2(0, t)}")
    A(f"v_add_u32 v{VA0}, 0xffff0000, v{VA2}")
    A("s_waitcnt vmcnt(0) lgkmcnt(0)")
    A("s_barrier")
    A(f"s_cmp_eq_u32 s{S_W}, 0")
    A("s_cbranch_scc0 L_noflag1")
    A(f"s_lshl_b32 s{S_T0}, s{S_R}, 2")
    A(f"s_add_u32 s{S_T0}, s{S_T0}, s{S_F1}")
    A("v_mov_b32 v2, 1")
    one_lane(A, [f"buffer_store_dword v2, off, {sr(SRD_FL,4)}, s{S_T0} sc1"])
    A.label("L_noflag1")
    VF1 = 56 - 56 + 120
    A(f"buffer_load_dwordx4 {vr(VF1,4)}, off, {sr(SRD_FL,4)}, s{S_F1} sc1")
    stamp(A, 7)
    def wait_group(A):
        for i in range(1, 8): A(f"v_min_u32 v{VCHK}, v{VCHK}, v{VCHK+i}")
        A("s_nop 0")
        A(f"v_readfirstlane_b32 s{S_T0}, v{VCHK}")
        A("s_nop 3")
        A(f"s_cmp_ge_u32 s{S_T0}, {4 if not OPT.get('noinit') else 0}")
        A(f"s_cselect_b32 s{S_INIT}, 1, 0")
        A(f"s_cmp_ge_u32 s{S_T0}, {4 if not OPT.get('noinit') else 0}")
        A("s_cbranch_scc1 L_done_init")
        A(f"s_lshl_b32 s{S_T2}, s{S_B}, 5")
        poll(A, "init", SRD_DBG, S_T2, 8, 4, VCHK)
        A("s_waitcnt vmcnt(0)")
        A(f"s_cmp_eq_u32 s{S_INIT}, 1")
        A("s_cbranch_scc0 L_look_again")
        for i in range(1, 4): A(f"v_min_u32 v{VF1}, v{VF1}, v{VF1+i}")
        A("s_nop 0")
        A(f"v_readfirstlane_b32 s{S_T0}, v{VF1}")
        A("s_nop 3")
        A(f"s_cmp_ge_u32 s{S_T0}, 1")
        A("s_cbranch_scc1 L_done_f1")
        A.label("L_look_again")
        poll(A, "f1", SRD_FL, S_F1, 4, 1, VCHK)
        stamp(A, 8)
        for x in flat(xdma2(1) + xdma2(2) + xdma2(3)): A(x)
        A("s_waitcnt vmcnt(10)")
        A("s_barrier")
        stamp(A, 9)
    plan2 = {0: dict(fill=wdma2(2)), 1: dict(pre=["s_barrier"], fill=wdma2(3)), 2: dict(fill=wdma2(4)),
             3: dict(pre=["s_barrier"], late=wait_group),
             4: dict(fill=wdma2(5)), 5: dict(fill=wdma2(6)), 6: dict(fill=wdma2(7)),
             7: dict(pre=["s_waitcnt vmcnt(17)", "s_barrier"]),
             9: dict(pre=["s_waitcnt vmcnt(8)", "s_barrier"]),
             11: dict(pre=["s_waitcnt vmcnt(4)", "s_barrier"]),
             13: dict(pre=["s_waitcnt vmcnt(0)", "s_barrier"])}
    gemm_core(A, ACC, FA, FB, xread2, wread2, plan2)
    stamp(A, 10)
    stamp_cyc(A, 59)
    A(f"""
    s_lshl_b32 s30, s{S_B}, 2
    s_add_u32 s30, s30, s{S_R}
    s_lshl_b32 s30, s30, 2
    s_mul_i32 s{S_XB}, s30, 40960
    s_mul_i32 s30, s{S_W}, 40960
    s_add_u32 s30, s30, s{S_XB}
    s_lshl_b32 s31, s{S_G}, 10
    s_add_u32 s30, s30, s31
    """)
    PB = 60
    for t in range(5):
        d0, d1 = ACC + 4*t, ACC + 4*(5 + t)
        A(f"v_cvt_pk_bf16_f32 v{PB+4*t}, v{d0}, v{d0+1}")
        A(f"v_cvt_pk_bf16_f32 v{PB+4*t+1}, v{d0+2}, v{d0+3}")
        A(f"v_cvt_pk_bf16_f32 v{PB+4*t+2}, v{d1}, v{d1+1}")
        A(f"v_cvt_pk_bf16_f32 v{PB+4*t+3}, v{d1+2}, v{d1+3}")
        A(f"s_add_u32 s31, s30, {t*8192}")
        A(f"buffer_store_dwordx4 {vr(PB+4*t,4)}, v{V_L16}, {sr(SRD_PP,4)}, s31 offen sc1")
    A("s_waitcnt vmcnt(0)")
    A("s_barrier")
    A(f"s_cmp_eq_u32 s{S_W}, 0")
    A("s_cbranch_scc0 L_noflag2")
    A(f"s_lshl_b32 s{S_T0}, s{S_G}, 2")
    A(f"s_add_u32 s{S_T0}, s{S_T0}, s{S_F2}")
    A("v_mov_b32 v2, 1")
    one_lane(A, [f"buffer_store_dword v2, off, {sr(SRD_FL,4)}, s{S_T0} sc1"])
    A.label("L_noflag2")
    stamp(A, 11)
    A(f"s_lshl_b32 s30, s{S_W}, 3")
    A(f"s_add_u32 s30, s30, s{S_G}")
    A("s_cmp_ge_u32 s30, 20")
    A("s_cbranch_scc1 L_fin")
    poll(A, "f2", SRD_FL, S_F2, 8, 1, VCHK)
    stamp(A, 12)
    A(f"s_mul_hi_u32 s31, s30, {(1 << 32)//5 + 1}")
    A(f"s_mul_i32 s{S_T0}, s31, 5")
    A(f"s_sub_u32 s{S_T1}, s30, s{S_T0}              ; t")
    A(f"s_mul_i32 s{S_T0}, s31, 40960")
    A(f"s_add_u32 s{S_T0}, s{S_T0}, s{S_XB}")
    A(f"s_lshl_b32 s{S_T2}, s{S_T1}, 13")
    A(f"s_add_u32 s{S_T0}, s{S_T0}, s{S_T2}")
    RB = 60
    for g in range(8):
        if g == 4: A(f"s_add_u32 s{S_T0}, s{S_T0}, 4096")
        A(f"buffer_load_dwordx4 {vr(RB + 4*g, 4)}, v{V_L16}, {sr(SRD_PP,4)}, s{S_T0} offen offset:{(g%4)*1024} sc1")
    A(f"""
    s_mul_i32 s{S_T0}, s{S_B}, 80
    s_lshl_b32 s{S_T1}, s{S_T1}, 4
    s_add_u32 s{S_T0}, s{S_T0}, s{S_T1}
    v_add_u32 v8, s{S_T0}, v3
    v_lshlrev_b32 v8, 10, v8
    s_lshl_b32 s{S_T0}, s{S_R}, 2
    s_add_u32 s{S_T0}, s{S_T0}, s31
    s_lshl_b32 s{S_T0}, s{S_T0}, 6
    v_lshl_add_u32 v8, v4, 4, v8
    v_add_u32 v8, s{S_T0}, v8
    """)
    SUM, UN = 100, 110
    for g in range(8):
        A(f"s_waitcnt vmcnt({7-g})")
        dst = SUM if g == 0 else UN
        for i in range(4):
            A(f"v_lshlrev_b32 v{dst+2*i}, 16, v{RB+4*g+i}")
            A(f"v_and_b32 v{dst+2*i+1}, 0xffff0000, v{RB+4*g+i}")
        if g:
            for i in range(4): A(f"v_pk_add_f32 {vr(SUM+2*i,2)}, {vr(SUM+2*i,2)}, {vr(UN+2*i,2)}")
    for i in range(4): A(f"v_cvt_pk_bf16_f32 v{RB+64+i}, v{SUM+2*i}, v{SUM+2*i+1}")
    A(f"buffer_store_dwordx4 {vr(RB+64,4)}, v8, {sr(SRD_OUT,4)}, 0 offen")
    A.label("L_fin")
    A("s_waitcnt vmcnt(0)")
    stamp(A, 13)
    stamp_cyc(A, 60)
    stamp_out(A)
    if OPT.get('amp'):
        i0, i1, M = OPT['amp']
        A(f"s_add_u32 s30, s{S_R15}, s{S_W}")
        A("s_cmp_eq_u32 s30, 0")
        A("s_cbranch_scc0 L_end")
        A(f"v_readlane_b32 s30, v39, {i0}")
        A(f"v_readlane_b32 s31, v39, {i1}")
        A("s_nop 3")
        A("s_sub_u32 s30, s31, s30")
        A("s_min_u32 s30, s30, 10000")
        A(f"s_mul_i32 s30, s30, {M}")
        A("s_memrealtime s[64:65]")
        A("s_waitcnt lgkmcnt(0)")
        A.label("L_amp")
        A("s_sleep 4")
        A("s_memrealtime s[66:67]")
        A("s_waitcnt lgkmcnt(0)")
        A("s_sub_u32 s31, s66, s64")
        A("s_cmp_lt_u32 s31, s30")
        A("s_cbranch_scc1 L_amp")
    A.label("L_end")
    A("s_endpgm")
    if OPT['wopf']:
        A.label("L_side")
        for i in range(4):
            A(f"s_add_u32 m0, s{S_W1K}, {LE + 4096*i}")
            A(f"s_add_u32 s{S_T0}, s{S_POFF}, {1024*i}")
            A(f"buffer_load_dwordx4 v{V_L16}, {sr(SRD_WO,4)}, s{S_T0} offen lds")
        A(f"s_add_u32 m0, s{S_RW}, {K0}")
        A("s_branch L_side_back")
    A.label("L_text_main_end")
    if OPT['fallback']: gen_fallback(A)
    A.label("L_text_end")
    A("s_endpgm")
    return A.text()

def gen_fallback(A):
    M, AL, T = V_NEG, V_NEG + 8, 148
    SF = 160
    A.label("L_fallback")
    A(f"s_mov_b32 s{S_FB}, 1")
    for i in range(160): A(f"v_accvgpr_write_b32 a{A_O+i}, 0")
    for i in range(10): A(f"v_mov_b32 v{V_L+i}, 0")
    for t in range(5): A(f"v_mov_b32 v{M+t}, 0xff7fffff")
    A(f"s_mov_b32 s{S_CNT}, 16")
    A(f"s_mov_b32 s{S_OFF}, s{S_W8}")
    A.label("L_fb_loop")
    A(f"s_add_u32 s{S_OFF2}, s{S_OFF}, 4096")
    for x in with_m0_gap(kv_dma('K', 0)) + with_m0_gap(kv_dma('V', 0)): A(x)
    A("s_waitcnt vmcnt(0)")
    for p in range(8): A(k_read(p, 0))
    for dt in range(8):
        for hf in range(2): A(v_read(dt, hf, 0))
    A("s_waitcnt lgkmcnt(0)")
    for t in range(5):
        for p in range(8):
            kt, s = p >> 2, p & 3
            d = SF + 8*t + 4*kt
            A(f"v_mfma_f32_16x16x32_bf16 {vr(d,4)}, {vr(V_KF+4*p,4)}, {ar(A_Q+(t*4+s)*4,4)}, {'0' if s == 0 else vr(d,4)}")
    A("s_nop 7")
    for t in range(5):
        d = SF + 8*t
        A(f"v_max3_f32 v{T+t}, v{d}, v{d+1}, v{d+2}")
        A(f"v_max3_f32 v{T+t}, v{T+t}, v{d+3}, v{d+4}")
        A(f"v_max3_f32 v{T+t}, v{T+t}, v{d+5}, v{d+6}")
        A(f"v_max3_f32 v{T+t}, v{T+t}, v{d+7}, v{M+t}")
    A("s_nop 1")
    for swap in ("v_permlane32_swap_b32", "v_permlane16_swap_b32"):
        for t in range(5): A(f"v_mov_b32 v{T+5+t}, v{T+t}")
        for t in range(5): A(f"{swap} v{T+t}, v{T+5+t}")
        for t in range(5): A(f"v_max_f32 v{T+t}, v{T+t}, v{T+5+t}")
    for t in range(5): A(f"v_sub_f32 v{AL+t}, v{M+t}, v{T+t}")
    for t in range(5): A(f"v_exp_f32 v{AL+t}, v{AL+t}")
    for t in range(5): A(f"v_mov_b32 v{M+t}, v{T+t}")
    for t in range(5):
        for i in range(8): A(f"v_sub_f32 v{SF+8*t+i}, v{SF+8*t+i}, v{M+t}")
    for t in range(5):
        for i in range(8): A(f"v_exp_f32 v{SF+8*t+i}, v{SF+8*t+i}")
    A("s_nop 0")
    for t in range(5):
        A(f"v_mul_f32 v{V_L+2*t}, v{V_L+2*t}, v{AL+t}")
        for i in range(8): A(f"v_add_f32 v{V_L+2*t}, v{V_L+2*t}, v{SF+8*t+i}")
    for t in range(5):
        for i in range(32):
            A(f"v_accvgpr_read_b32 v{T+10}, a{A_O+t*32+i}")
            A(f"v_mul_f32 v{T+10}, v{T+10}, v{AL+t}")
            A(f"v_accvgpr_write_b32 a{A_O+t*32+i}, v{T+10}")
    PF = 200
    for t in range(5):
        for i in range(4): A(f"v_cvt_pk_bf16_f32 v{PF+4*t+i}, v{SF+8*t+2*i}, v{SF+8*t+2*i+1}")
    A("s_nop 1")
    for t in range(5):
        for dt in range(8):
            o = A_O + (t*8 + dt)*4
            A(f"v_mfma_f32_16x16x32_bf16 {ar(o,4)}, {vr(V_VF+4*dt,4)}, {vr(PF+4*t,4)}, {ar(o,4)}")
    A("s_nop 7")
    A(f"s_add_u32 s{S_OFF}, s{S_OFF}, 0x8000")
    A(f"s_sub_u32 s{S_CNT}, s{S_CNT}, 1")
    A(f"s_cmp_lg_u32 s{S_CNT}, 0")
    A("s_cbranch_scc1 L_fb_loop")
    XL = 0
    A("s_barrier")
    A(f"v_lshlrev_b32 v8, 2, v1")
    A(f"s_mul_i32 s30, s{S_W}, 1280")
    A(f"s_add_u32 s30, s30, {XL}")
    A(f"v_add_u32 v9, s30, v8")
    for t in range(5): A(f"ds_write_b32 v9, v{M+t} offset:{256*t}")
    A("s_waitcnt lgkmcnt(0)")
    A("s_barrier")
    for w in range(4):
        for t in range(5): A(f"ds_read_b32 v{SF + w*5 + t}, v8 offset:{XL + w*1280 + t*256}")
    A("s_waitcnt lgkmcnt(0)")
    for t in range(5):
        A(f"v_max3_f32 v{T+t}, v{SF+t}, v{SF+5+t}, v{SF+10+t}")
        A(f"v_max_f32 v{T+t}, v{T+t}, v{SF+15+t}")
        A(f"v_sub_f32 v{AL+t}, v{M+t}, v{T+t}")
    for t in range(5): A(f"v_exp_f32 v{AL+t}, v{AL+t}")
    A("s_nop 0")
    for t in range(5): A(f"v_mul_f32 v{V_L+2*t}, v{V_L+2*t}, v{AL+t}")
    for swap in ("v_permlane32_swap_b32", "v_permlane16_swap_b32"):
        for t in range(5): A(f"v_mov_b32 v{V_L+2*t+1}, v{V_L+2*t}")
        for t in range(5): A(f"{swap} v{V_L+2*t}, v{V_L+2*t+1}")
        for t in range(5): A(f"v_add_f32 v{V_L+2*t}, v{V_L+2*t}, v{V_L+2*t+1}")
    for t in range(5):
        for i in range(32):
            A(f"v_accvgpr_read_b32 v{T+10}, a{A_O+t*32+i}")
            A(f"v_mul_f32 v{T+10}, v{T+10}, v{AL+t}")
            A(f"v_accvgpr_write_b32 a{A_O+t*32+i}, v{T+10}")
    if OPT['onerow']:
        A("v_cmp_gt_u32 vcc, 16, v1")
        A("s_nop 1")
        for t in range(5): A(f"v_cndmask_b32 v{V_LM+4*t}, 0, v{V_L+2*t}, vcc")
    else:
        for t in range(5): A(f"v_mov_b32 v{V_LM+4*t}, v{V_L+2*t}")
    A("s_waitcnt vmcnt(0)")
    A("s_barrier")
    xaddr(A)
    A("s_nop 7")
    for t in range(5):
        for x in xsend(t): A(x)
    for x in lsend(): A(x)
    A("s_branch L_comb2")

DOC = """;
;
"""
def build():
    s = HEADER + DOC + "; @launch grid=(256,1,1) block=(256,1,1) lds=163840\n"
    s += '.amdgcn_target "amdgcn-amd-amdhsa--gfx950"\n.text\n' + kernel_start(NAME) + gen()
    s += '.section .rodata,"a"\n.p2align 6\n' + kernel_desc(NAME, 512, 256, 102)
    return s

if __name__ == "__main__":
    out = sys.argv[1]
    for kv in sys.argv[2:]:
        k_, v_ = kv.split("=")
        OPT[k_] = eval(v_)
    open(out, "w").write(build())
```
